```python
import torch

def _softmax(x, axis=-1):
    return torch.softmax(x, dim=axis)
def _gelu(x):
    return torch.nn.functional.gelu(x, approximate="tanh")
def _silu(x):
    return torch.nn.functional.silu(x)
def _sigmoid(x):
    return torch.sigmoid(x)
def _layernorm(x, axis=-1, eps=1e-5):
    m = x.mean(dim=axis, keepdim=True)
    v = x.var(dim=axis, keepdim=True, unbiased=False)
    return (x - m) / torch.sqrt(v + eps)
def _scatter_add(tgt, idx, src, axis=0):
    return tgt.clone().index_add_(axis, idx, src)
def _segment_sum(src, seg, n):
    out = torch.zeros((n,) + src.shape[1:], dtype=src.dtype)
    return out.index_add_(0, seg, src)
def _pad(x, pw):
    flat = tuple(v for pair in reversed(pw) for v in pair)
    return torch.nn.functional.pad(x, flat)

kernel_name = 'recurrent_scan__gqa_block_cached__swiglu_ffn__decode'

def setup_inputs():

    _w = (lambda a: (lambda t: t.to(torch.bfloat16) if t.is_floating_point() else t)(torch.as_tensor(a)))
    def _A_setup():
        B, Sq, D = 2, 1, 576
        Hq, Hkv, Sk, Dh = 32, 16, 32768, 128
        assert Hq % Hkv == 0, (Hq, Hkv)
        return {
            "x": _w((lambda *s: torch.randn(*s, dtype=torch.bfloat16) * 0.05)(B, Sq, D)),
            "k_cache": _w((lambda *s: torch.randn(*s, dtype=torch.bfloat16) * 1.6)(B, Hkv, Sk, Dh)),
            "v_cache": _w((lambda *s: torch.randn(*s, dtype=torch.bfloat16) * 0.2)(B, Hkv, Sk, Dh)),
            "wq": _w((lambda *s: torch.randn(*s, dtype=torch.bfloat16) * 1.6)(D, Hq * Dh) * (D ** -0.5)),
            "wo": _w((lambda *s: torch.randn(*s, dtype=torch.bfloat16) * 0.2)(Hq * Dh, D) * ((Hq * Dh) ** -0.5)),
        }
    _A_in = _A_setup()

    def _B_setup():
        B, S, D, F = 2, 1, 576, 4608
        return {
            "x": _w((lambda *s: torch.randn(*s, dtype=torch.bfloat16) * 0.05)(B, S, D)),
            "w_gate": _w((lambda *s: torch.randn(*s, dtype=torch.bfloat16) * 0.1)(D, F)),
            "w_up": _w((lambda *s: torch.randn(*s, dtype=torch.bfloat16) * 0.1)(D, F)),
            "w_down": _w((lambda *s: torch.randn(*s, dtype=torch.bfloat16) * 0.1)(F, D)),
        }
    _B_in = _B_setup()

    return {
        "A_x": _A_in["x"],
        "A_k_cache": _A_in["k_cache"],
        "A_v_cache": _A_in["v_cache"],
        "A_wq": _A_in["wq"],
        "A_wo": _A_in["wo"],
        "B_x": _B_in["x"],
        "B_w_gate": _B_in["w_gate"],
        "B_w_up": _B_in["w_up"],
        "B_w_down": _B_in["w_down"],
    }

def reference(A_x, A_k_cache, A_v_cache, A_wq, A_wo, B_x, B_w_gate, B_w_up, B_w_down):
    def _A_ref(x, k_cache, v_cache, wq, wo):
        B, Sq, D = x.shape
        Hq, Dh = 32, 128
        Hkv = k_cache.shape[1]
        rep = Hq // Hkv
        q = (lambda x, *d: x.permute(*d))((x @ wq).reshape(B, Sq, Hq, Dh), 0, 2, 1, 3)
        k = (lambda x, n, axis: torch.repeat_interleave(x, n, dim=axis))(k_cache, rep, axis=1)
        v = (lambda x, n, axis: torch.repeat_interleave(x, n, dim=axis))(v_cache, rep, axis=1)
        scores = torch.einsum("bhqd,bhkd->bhqk", q, k) * (Dh ** -0.5)
        p = _softmax(scores, axis=-1)
        o = torch.einsum("bhqk,bhkd->bhqd", p, v)
        return (lambda x, *d: x.permute(*d))(o, 0, 2, 1, 3).reshape(B, Sq, Hq * Dh) @ wo

    def _B_ref(x, w_gate, w_up, w_down):
        g = _silu(x @ w_gate)
        u = x @ w_up
        return (g * u) @ w_down

    x = A_x
    xn = _layernorm(x, axis=-1)
    s = _A_ref(xn, A_k_cache, A_v_cache, A_wq, A_wo)
    g = _silu(_B_ref(xn, B_w_gate, B_w_up, B_w_down))
    return x + s * g
```

```python
import re

TRANS = ('v_exp_f32', 'v_log_f32', 'v_rcp_f32', 'v_rsq_f32', 'v_sqrt_f32', 'v_sin_f32', 'v_cos_f32')

def regs_of(tok):
    tok = tok.strip()
    tok = tok.lstrip('-')
    m = re.fullmatch(r'abs\((.*)\)', tok)
    if m: tok = m.group(1)
    m = re.fullmatch(r'\|(.*)\|', tok)
    if m: tok = m.group(1)
    m = re.fullmatch(r'([vsa])(\d+)', tok)
    if m: return [(m.group(1), int(m.group(2)))]
    m = re.fullmatch(r'([vsa])\[(\d+):(\d+)\]', tok)
    if m: return [(m.group(1), i) for i in range(int(m.group(2)), int(m.group(3)) + 1)]
    if tok in ('vcc', 'vcc_lo', 'vcc_hi'): return [('x', 'vcc')]
    if tok in ('exec', 'exec_lo', 'exec_hi'): return [('x', 'exec')]
    if tok == 'm0': return [('x', 'm0')]
    return []

def split_ops(s):
    out, depth, cur = [], 0, ''
    for ch in s:
        if ch in '[(': depth += 1
        if ch in '])': depth -= 1
        if ch == ',' and depth == 0:
            out.append(cur.strip()); cur = ''
        else:
            cur += ch
    if cur.strip(): out.append(cur.strip())
    return out

class Ins:
    def __init__(self, text):
        self.text = text
        t = text.split(';')[0].strip()
        self.label = t.endswith(':')
        self.directive = t.startswith('.')
        self.op = t.split()[0] if t else ''
        rest = t[len(self.op):].strip()
        ops = split_ops(rest)
        if ops:
            last = ops[-1].split()
            self.mods = ' '.join(last[1:])
            ops[-1] = last[0]
        else:
            self.mods = ''
        self.ops = ops
        op = self.op
        self.kind = None
        w, r = [], []
        R = lambda i: regs_of(ops[i]) if i < len(ops) else []
        if self.label or self.directive or not op:
            self.kind = 'none'
        elif op.startswith('v_mfma'):
            self.kind = 'mfma'
            w = R(0); self.srcA = R(1); self.srcB = R(2); self.srcC = R(3); r = self.srcA + self.srcB + self.srcC
        elif op.startswith('v_cmp'):
            self.kind = 'valu'
            w = R(0); r = R(1) + R(2)
            if op.startswith('v_cmpx'): w += [('x', 'exec')]
        elif op.startswith('v_readfirstlane') or op.startswith('v_readlane'):
            self.kind = 'valu'
            w = R(0); r = R(1) + R(2)
        elif op.startswith('v_permlane'):
            self.kind = 'valu'
            w = R(0) + R(1); r = R(0) + R(1)
        elif op.startswith('v_'):
            self.kind = 'valu'
            w = R(0)
            start = 1
            if re.match(r'v_(add|sub|subrev)_co_u32|v_(addc|subb)_co|v_div_scale|v_mad_u64', op):
                w += R(1); start = 2
            for i in range(start, len(ops)): r += R(i)
            if op.startswith('v_fmac') or op.startswith('v_pk_fmac') or op.startswith('v_writelane'): r += R(0)
            if '_dpp' in op: r += R(0)
            if op.startswith('v_cndmask') and len(ops) == 3: r += [('x', 'vcc')]
        elif op.startswith('buffer_') or op.startswith('global_'):
            self.kind = 'vmem'
            islds = ' lds' in (' ' + self.mods) or 'load_lds' in op
            if op in ('buffer_inv', 'buffer_wbl2'):
                pass
            elif 'load' in op:
                if islds:
                    for i in range(len(ops)): r += R(i)
                    r += [('x', 'm0')]
                    self.islds = True
                else:
                    w = R(0)
                    for i in range(1, len(ops)): r += R(i)
            elif 'store' in op:
                for i in range(len(ops)): r += R(i)
                self.data = R(0) if op.startswith('buffer_') else R(1)
            elif 'atomic' in op:
                for i in range(len(ops)): r += R(i)
                if 'sc0' in self.mods: w = R(0)
        elif op.startswith('ds_'):
            self.kind = 'ds'
            if 'read' in op or 'rtn' in op or 'permute' in op or 'swizzle' in op:
                w = R(0)
                for i in range(1, len(ops)): r += R(i)
            else:
                for i in range(len(ops)): r += R(i)
        elif op.startswith('s_'):
            self.kind = 'salu'
            if op.startswith('s_cmp') or op.startswith('s_bitcmp') or op.startswith('s_cbranch') or op in ('s_branch', 's_waitcnt', 's_barrier', 's_nop', 's_endpgm', 's_sleep', 's_setprio', 's_setpc_b64'):
                for i in range(len(ops)): r += R(i)
            else:
                w = R(0)
                for i in range(1, len(ops)): r += R(i)
                if 'saveexec' in op: w += [('x', 'exec')]
        else:
            raise ValueError('unknown instruction ' + text)
        self.w = set(w); self.r = set(r)
        self.dpp = '_dpp' in op
        self.trans = op.replace('_e32', '').replace('_e64', '') in TRANS

    def states(self):
        if self.kind == 'none': return 0
        if self.op == 's_nop': return int(self.ops[0], 0) + 1
        return 1

def need(p, c):
    n = 0
    vw = {x for x in p.w if x[0] in 'va'}
    sw = {x for x in p.w if x[0] == 's' or x == ('x', 'vcc')}
    if p.kind == 'valu':
        if c.kind == 'mfma' and vw & c.r: n = max(n, 2)
        if c.kind == 'valu':
            if c.dpp and vw & set(regs_of(c.ops[1])): n = max(n, 2)
            if c.op.startswith('v_permlane') and vw & c.r: n = max(n, 2)
            if (c.op.startswith('v_readfirstlane') or c.op.startswith('v_readlane')) and vw & c.r: n = max(n, 1)
            if p.trans and not c.trans and vw & c.r: n = max(n, 1)
            if p.trans and c.trans and vw & c.r: n = max(n, 1)
            if sw & c.r: n = max(n, 4 if (c.op.startswith('v_readlane') or c.op.startswith('v_writelane')) else 2)
            if ('x', 'exec') in p.w: n = max(n, 5 if c.dpp else 4)
        if c.kind == 'vmem' and sw & c.r: n = max(n, 5)
        if c.kind == 'mfma' and ('x', 'exec') in p.w: n = max(n, 4)
        if c.kind == 'salu' and sw & c.r: n = max(n, 1)
    if p.kind == 'mfma':
        passes = 4 if '16x16x32' in p.op else 8
        big = {4: 8, 8: 12}[passes]
        if c.kind == 'mfma':
            if vw & (set(c.srcA) | set(c.srcB)): n = max(n, big)
            if vw & set(c.srcC):
                if set(c.srcC) == vw and c.op == p.op: pass
                else: n = max(n, big - 2)
            if vw & c.w and not (set(c.srcC) == vw): n = max(n, big)
        elif c.kind in ('valu', 'vmem', 'ds'):
            if vw & (c.r | c.w): n = max(n, big)
            if c.kind == 'valu' and set(p.srcC) & c.w: n = max(n, {4: 3, 8: 7}[passes])
    if p.kind == 'salu':
        if ('x', 'm0') in p.w and getattr(c, 'islds', False): n = max(n, 1)
        if ('x', 'exec') in p.w and c.kind == 'valu' and c.dpp: n = max(n, 1)
    if p.kind == 'vmem' and hasattr(p, 'data') and len(p.data) >= 3:
        if set(p.data) & c.w: n = max(n, 2 if c.kind == 'valu' else 1)
    return n

class Asm:
    def __init__(self):
        self.ins = []
    def __call__(self, text):
        for line in text.split('\n'):
            line = line.strip()
            if line: self.ins.append(Ins(line))
    def finish(self):
        out = []
        for c in self.ins:
            if c.kind != 'none':
                req = 0
                dist = 0
                for p in reversed(out):
                    if p.kind == 'none': continue
                    if p.op in ('s_branch', 's_endpgm', 's_setpc_b64'): break
                    n = need(p, c)
                    req = max(req, n - dist)
                    dist += p.states()
                    if dist >= 20: break
                while req > 0:
                    k = min(req, 16)
                    out.append(Ins(f's_nop {k-1}'))
                    req -= k
            out.append(c)
        labels = {i.text.split(';')[0].strip()[:-1]: idx for idx, i in enumerate(out) if i.label}
        problems = []
        for idx, b in enumerate(out):
            if b.op.startswith('s_cbranch') or b.op == 's_branch':
                tgt = labels[b.ops[0]]
                prods = []
                dist = 1
                for p in reversed(out[:idx]):
                    if p.kind == 'none': continue
                    if p.op in ('s_branch', 's_endpgm', 's_setpc_b64'): break
                    prods.append((p, dist))
                    dist += p.states()
                    if dist >= 20: break
                d2 = 0
                for c in out[tgt:]:
                    if c.kind == 'none': continue
                    for p, d in prods:
                        if need(p, c) > d + d2:
                            problems.append(f'edge hazard: [{p.text}] -> branch {b.text} -> [{c.text}] need {need(p,c)} have {d+d2}')
                    d2 += c.states()
                    if c.op in ('s_branch', 's_endpgm', 's_setpc_b64') or d2 >= 20: break
        if problems:
            raise RuntimeError('\n'.join(problems))
        lines = []
        for i in out:
            lines.append(i.text if (i.label or i.directive) else '    ' + i.text)
        return '\n'.join(lines) + '\n'
```

```python
import sys, struct
from asmlib import Asm

KNAME = 'recurrent_scan__gqa_block_cached__swiglu_ffn__decode_kernel'
def f32(x): return '0x%08x' % struct.unpack('<I', struct.pack('<f', x))[0]

WS_EPOCH = 0x0
WS_QP = 0x10000
WS_AP = 0x50000
WS_AML = 0xD0000
WS_SP = 0xE0000
WS_DP = 0x130000
WS_ST = 0x200000
WS_SIZE = 0x400000
L_T = 0
L_Q = 4608
L_T2 = 5120
L_XO = 6144
L_XM = 10240
L_WO = 10304
LDS_BYTES = L_WO + 147456

HEADER = open('recurrent_scan__gqa_block_cached__swiglu_ffn__decode.s.ref').read().split('; Override launch')[0]

def gen(W=6, stamps=False, kvflags='nt', wflags='nt'):
    A = Asm()
    sX, sK, sV, sWQ, sWO, sWG, sWU, sWD, sOUT, sDBG, sWSP = 4, 6, 8, 10, 12, 16, 18, 20, 22, 24, 26
    rK, rV, rWS, rA, rB, rO = 28, 32, 36, 40, 44, 48
    sWave, sG, sJ, sB, sH, sR, sTag, sOff, sCnt, sT0, sT1, sT2 = 3, 52, 53, 54, 55, 56, 57, 58, 59, 60, 61, 62
    sScale, sLog2e, sNLog2e, sSpin = 63, 64, 65, 66
    sHi = 68
    sLo8 = 70
    sF0, sF1 = 72, 73
    sRole = 74
    sSt = 76
    def srd(r): return f's[{r}:{r+3}]'
    def v4(r): return f'v[{r}:{r+3}]'
    def v2(r): return f'v[{r}:{r+1}]'
    nstamp = [0]
    def stamp(idx):
        if not stamps: return
        A(f's_memrealtime s[{sSt}:{sSt+1}]')
        A(f's_mul_i32 s{sSt+2}, s2, 5')
        A(f's_add_u32 s{sSt+2}, s{sSt+2}, s{sWave}')
        A(f's_lshl_b32 s{sSt+2}, s{sSt+2}, 8')
        A(f's_add_u32 s{sSt+2}, s{sSt+2}, {WS_ST + idx*8}')
        A('s_waitcnt lgkmcnt(0)')
        A(f'v_mov_b32 v158, s{sSt}')
        A(f'v_mov_b32 v159, s{sSt+1}')
        A(f's_mov_b64 s[{sSt+4}:{sSt+5}], exec')
        A('s_mov_b64 exec, 1')
        A(f'buffer_store_dwordx2 v[158:159], off, {srd(rWS)}, s{sSt+2}')
        A(f's_mov_b64 exec, s[{sSt+4}:{sSt+5}]')

    def mk_srd(r, base, off_sgpr, size):
        if off_sgpr is None:
            A(f's_mov_b32 s{r}, s{base}')
            A(f's_mov_b32 s{r+1}, s{base+1}')
        else:
            A(f's_add_u32 s{r}, s{base}, s{off_sgpr}')
            A(f's_addc_u32 s{r+1}, s{base+1}, 0')
        if isinstance(size, int): A(f's_mov_b32 s{r+2}, {size}')
        else: A(size)
        A(f's_mov_b32 s{r+3}, 0x20000')

    def xor16_add(op, x, t):
        A(f'v_mov_b32 v{t}, v{x}')
        A(f'v_permlane16_swap_b32 v{x}, v{t}')
        A(f'{op} v{x}, v{x}, v{t}')
    def xor32_add(op, x, t):
        A(f'v_mov_b32 v{t}, v{x}')
        A(f'v_permlane32_swap_b32 v{x}, v{t}')
        A(f'{op} v{x}, v{x}, v{t}')
    DPP = 'row_mask:0xf bank_mask:0xf'
    def row_sum16(x):
        A(f'v_add_f32_dpp v{x}, v{x}, v{x} quad_perm:[1,0,3,2] {DPP}')
        A(f'v_add_f32_dpp v{x}, v{x}, v{x} quad_perm:[2,3,0,1] {DPP}')
        A(f'v_add_f32_dpp v{x}, v{x}, v{x} row_half_mirror {DPP}')
        A(f'v_add_f32_dpp v{x}, v{x}, v{x} row_mirror {DPP}')
    def rnd_bf16(dst, src):
        A(f'v_cvt_pk_bf16_f32 v{dst}, v{src}, v{src}')
        A(f'v_and_b32 v{dst}, 0xffff0000, v{dst}')
    def mkA(dst, x):
        for w in range(4):
            A(f'v_and_b32 v{dst+w}, v{x}, v{4+w}')
    def check_tags(tagregs, tmin, tmax, retry_label, name):
        tr = list(tagregs)
        A(f'v_min3_u32 v{tmin}, v{tr[0]}, v{tr[1]}, s{sTag}')
        A(f'v_max3_u32 v{tmax}, v{tr[0]}, v{tr[1]}, s{sTag}')
        for i in range(2, len(tr), 2):
            A(f'v_min3_u32 v{tmin}, v{tr[i]}, v{tr[i+1]}, v{tmin}')
            A(f'v_max3_u32 v{tmax}, v{tr[i]}, v{tr[i+1]}, v{tmax}')
        A(f'v_cmp_ne_u32 vcc, v{tmin}, v{tmax}')
        A(f's_cbranch_vccz {name}_ok')
        A(f's_sub_u32 s{sSpin}, s{sSpin}, 1')
        A(f's_cmp_gt_i32 s{sSpin}, 0')
        A(f's_cbranch_scc1 {retry_label}')
        A(f'{name}_ok:')
    def silu(dst, x, t):
        A(f'v_mul_f32 v{t}, s{sNLog2e}, v{x}')
        A(f'v_exp_f32 v{t}, v{t}')
        A(f'v_add_f32 v{t}, 1.0, v{t}')
        A(f'v_rcp_f32 v{t}, v{t}')
        A(f'v_mul_f32 v{dst}, v{x}, v{t}')
    def publish4(vals, q0, q1, voff, soff, imm=0):
        A(f'v_mov_b32 v{q0}, v{vals}')
        A(f'v_mov_b32 v{q0+2}, v{vals+1}')
        A(f'v_mov_b32 v{q1}, v{vals+2}')
        A(f'v_mov_b32 v{q1+2}, v{vals+3}')
        A(f'buffer_store_dwordx4 {v4(q0)}, v{voff}, {srd(rWS)}, s{soff} offen offset:{imm} sc1')
        A(f'buffer_store_dwordx4 {v4(q1)}, v{voff}, {srd(rWS)}, s{soff} offen offset:{imm+16} sc1')
    def set_tags(*regs):
        for r in regs: A(f'v_mov_b32 v{r}, s{sTag}')

    A(f'{KNAME}:')
    A('s_cmp_ge_u32 s2, 256')
    A('s_cbranch_scc1 L_end')
    A('s_load_dwordx16 s[4:19], s[0:1], 0')
    A('s_load_dwordx8 s[20:27], s[0:1], 64')
    A('v_lshrrev_b32 v1, 6, v0')
    A('v_and_b32 v0, 63, v0')
    A(f'v_readfirstlane_b32 s{sWave}, v1')
    A(f's_lshr_b32 s{sG}, s2, 3')
    A(f's_and_b32 s{sJ}, s2, 7')
    A(f's_lshr_b32 s{sB}, s2, 7')
    A(f's_and_b32 s{sH}, s{sG}, 15')
    A(f's_sub_u32 s{sR}, s{sJ}, s{sG}')
    A(f's_and_b32 s{sR}, s{sR}, 7')
    A(f's_mov_b32 s{sScale}, {f32(128 ** -0.5)}')
    A(f's_mov_b32 s{sLog2e}, {f32(1.4426950408889634)}')
    A(f's_mov_b32 s{sNLog2e}, {f32(-1.4426950408889634)}')
    A(f's_mov_b32 s{sSpin}, 0x8000')
    A(f's_mov_b32 s{sHi}, 0')
    A(f's_mov_b32 s{sHi+1}, -1')
    A(f's_mov_b32 s{sLo8}, 0x00ff00ff')
    A(f's_mov_b32 s{sLo8+1}, 0x00ff00ff')
    A('v_and_b32 v1, 1, v0')
    A('v_lshlrev_b32 v1, 4, v1')
    A('v_mov_b32 v2, 0xffff')
    A('v_lshlrev_b32 v1, v1, v2')
    A('v_bfe_u32 v2, v0, 1, 2')
    for w in range(4):
        A(f'v_cmp_eq_u32 vcc, {w}, v2')
        A(f'v_cndmask_b32 v{4+w}, 0, v1, vcc')
    A('s_waitcnt lgkmcnt(0)')
    mk_srd(rWS, sWSP, None, WS_SIZE)
    A(f's_lshl_b32 s{sT0}, s{sG}, 23')
    mk_srd(rK, sK, sT0, 1 << 23)
    mk_srd(rV, sV, sT0, 1 << 23)
    mk_srd(rB, sX, None, 2304)
    mk_srd(rO, sOUT, None, 2304)
    A(f's_lshl_b32 s{sT0}, s{sB}, 3')
    A(f's_add_u32 s{sT0}, s{sT0}, s{sJ}')
    A(f's_lshr_b32 s{sT1}, s{sT0}, 2')
    A(f's_and_b32 s{sT0}, s{sT0}, 3')
    A(f's_mul_i32 s{sT2}, s{sT1}, {144*8192}')
    A(f's_lshl_b32 s{sOff}, s{sH}, 9')
    A(f's_add_u32 s{sT2}, s{sT2}, s{sOff}')
    A(f's_lshl_b32 s{sOff}, s{sT0}, 7')
    A(f's_add_u32 s{sT2}, s{sT2}, s{sOff}')
    mk_srd(rA, sWQ, sT2, f's_sub_u32 s{rA+2}, {576*8192}, s{sT2}')
    stamp(0)
    A(f's_cmp_eq_u32 s{sWave}, 0')
    A('s_cbranch_scc1 L_side')

    vKoff, vVoff, vM, vML, vQ, acc, vL = 8, 9, 10, 11, 12, 16, 20
    D = 24; S = 40; U = 44; T = 46; T2 = 47; AF = 48
    slotK = [64, 96]; slotV = [80, 112]
    A(f'v_and_b32 v{vKoff}, 15, v0')
    A(f'v_lshlrev_b32 v{vKoff}, 6, v{vKoff}')
    A('v_lshrrev_b32 v1, 4, v0')
    A(f'v_lshl_add_u32 v{vKoff}, v1, 4, v{vKoff}')
    A(f'v_lshlrev_b32 v{vVoff}, 4, v0')
    A(f's_lshl_b32 s{sOff}, s{sJ}, 2')
    A(f's_add_u32 s{sOff}, s{sOff}, s{sWave}')
    A(f's_sub_u32 s{sOff}, s{sOff}, 1')
    A(f's_lshl_b32 s{sOff}, s{sOff}, 12')
    def ld(slot, n):
        if n < 4:
            A(f'buffer_load_dwordx4 {v4(slotK[slot]+4*n)}, v{vKoff}, {srd(rK)}, s{sOff} offen offset:{n*1024} {kvflags}')
        else:
            A(f'buffer_load_dwordx4 {v4(slotV[slot]+4*(n-4))}, v{vVoff}, {srd(rV)}, s{sOff} offen offset:{(n-4)*1024} {kvflags}')
    A('s_barrier')
    for n in range(8): ld(0, n)
    A(f's_add_u32 s{sOff}, s{sOff}, {32*4096}')
    A(f'v_mov_b32 v{vM}, 0xff800000')
    A(f'v_mov_b32 v{vML}, 0')
    A(f'v_mov_b32 v{vL}, 0')
    for r in range(4): A(f'v_mov_b32 v{acc+r}, 0')
    A('v_bfe_u32 v1, v0, 3, 1')
    A('v_lshlrev_b32 v1, 8, v1')
    A('v_and_b32 v2, 3, v0')
    A('v_lshl_add_u32 v1, v2, 6, v1')
    A('v_lshrrev_b32 v2, 4, v0')
    A('v_lshl_add_u32 v1, v2, 4, v1')
    A(f's_mov_b32 s{sCnt}, 32')
    A('s_barrier')
    A(f'ds_read_b128 {v4(vQ)}, v1 offset:{L_Q}')
    A('s_waitcnt lgkmcnt(0)')
    stamp(1)
    A('L_loop:')
    for s in range(2):
        o = 1 - s
        chunks = []
        def qk():
            for n in range(4):
                A(f'v_mfma_f32_16x16x32_bf16 {v4(D+4*n)}, {v4(slotK[s]+4*n)}, {v4(vQ)}, 0')
        def red():
            for r in range(4):
                for n in range(4):
                    if r == 0: A(f'v_mov_b32_dpp v{S+n}, v{D+4*n} quad_perm:[0,0,0,0] {DPP}')
                    else: A(f'v_add_f32_dpp v{S+n}, v{D+4*n+r}, v{S+n} quad_perm:[{r},{r},{r},{r}] {DPP}')
        def rnd4():
            A(f'v_cvt_pk_bf16_f32 v{U}, v{S}, v{S+1}')
            A(f'v_cvt_pk_bf16_f32 v{U+1}, v{S+2}, v{S+3}')
            A(f'v_lshlrev_b32 v{S}, 16, v{U}')
            A(f'v_and_b32 v{S+1}, 0xffff0000, v{U}')
            A(f'v_lshlrev_b32 v{S+2}, 16, v{U+1}')
            A(f'v_and_b32 v{S+3}, 0xffff0000, v{U+1}')
        def scale():
            rnd4()
            for n in range(4): A(f'v_mul_f32 v{S+n}, s{sScale}, v{S+n}')
            rnd4()
            A(f'v_max3_f32 v{T}, v{S}, v{S+1}, v{S+2}')
            A(f'v_max_f32 v{T}, v{T}, v{S+3}')
            A(f'v_cmp_gt_f32 vcc, v{T}, v{vM}')
            A(f's_cbranch_vccnz L_resc{s}')
            A(f'L_back{s}:')
        def expo():
            for n in range(4): A(f'v_fma_f32 v{S+n}, v{S+n}, s{sLog2e}, v{vML}')
            for n in range(4): A(f'v_exp_f32 v{S+n}, v{S+n}')
            A(f'v_add_f32 v{T}, v{S}, v{S+1}')
            A(f'v_add_f32 v{T2}, v{S+2}, v{S+3}')
            for n in range(4): A(f'v_cvt_pk_bf16_f32 v{S+n}, v{S+n}, v{S+n}')
            A(f'v_add_f32 v{T}, v{T}, v{T2}')
            A(f'v_add_f32 v{vL}, v{vL}, v{T}')
        def masks():
            for n in range(4): mkA(AF + 4*n, S + n)
        def pv():
            for n in range(4):
                A(f'v_mfma_f32_16x16x32_bf16 {v4(acc)}, {v4(AF+4*n)}, {v4(slotV[s]+4*n)}, {v4(acc)}')
        kq = max(0, W - 5); kv = W - 1
        assert kv <= 7
        sched = {k: [] for k in range(8)}
        sched[kq].append(qk)
        for i, c in enumerate([red, scale, expo, masks]):
            sched[min(kq + 1 + min(i, 2), kv)].append(c)
        sched[kv].append(pv)
        for k in range(8):
            A(f's_waitcnt vmcnt({W-1})')
            ld(o, k)
            for c in sched[k]: c()
        A(f's_add_u32 s{sOff}, s{sOff}, {32*4096}')
    A(f's_sub_u32 s{sCnt}, s{sCnt}, 1')
    A(f's_cmp_lg_u32 s{sCnt}, 0')
    A('s_cbranch_scc1 L_loop')
    stamp(2)
    xor16_add('v_add_f32', vL, T)
    xor32_add('v_add_f32', vL, T)
    A(f's_sub_u32 s{sT0}, s{sWave}, 1')
    A('v_lshrrev_b32 v1, 5, v0')
    A('v_lshlrev_b32 v1, 9, v1')
    A('v_and_b32 v2, 15, v0')
    A('v_lshl_add_u32 v1, v2, 5, v1')
    A('v_and_b32 v2, 16, v0')
    A('v_add_u32 v1, v1, v2')
    A(f's_lshl_b32 s{sT1}, s{sT0}, 10')
    A(f'v_add_u32 v1, s{sT1}, v1')
    A(f'ds_write_b128 v1, {v4(acc)} offset:{L_XO}')
    A('v_and_b32 v2, 8, v0')
    A(f's_lshl_b32 s{sT1}, s{sT0}, 4')
    A(f'v_add_u32 v2, s{sT1}, v2')
    A(f'v_mov_b32 v{vML}, v{vL}')
    A(f'ds_write_b64 v2, {v2(vM)} offset:{L_XM}')
    A('s_waitcnt lgkmcnt(0)')
    A('s_barrier')
    A(f'v_mov_b32 v1, 0')
    A(f'ds_read_b32 v3, v1 offset:{L_Q - 4}')
    A(f's_cmp_ge_u32 s{sT0}, 2')
    A('s_cbranch_scc1 L_att_nopub')
    A(f's_lshl_b32 s{sT1}, s{sT0}, 9')
    A(f'v_lshl_add_u32 v1, v0, 3, s{sT1}')
    for a in range(4): A(f'ds_read_b64 {v2(24+2*a)}, v1 offset:{L_XO + a*1024}')
    A(f's_lshl_b32 s{sT1}, s{sT0}, 3')
    A(f'v_mov_b32 v2, s{sT1}')
    for a in range(4): A(f'ds_read_b64 {v2(32+2*a)}, v2 offset:{L_XM + a*16}')
    A('s_waitcnt lgkmcnt(0)')
    A(f'v_readfirstlane_b32 s{sTag}, v3')
    A('v_max3_f32 v40, v32, v34, v36')
    A('v_max_f32 v40, v40, v38')
    for a in range(4):
        A(f'v_sub_f32 v{32+2*a}, v{32+2*a}, v40')
        A(f'v_mul_f32 v{32+2*a}, s{sLog2e}, v{32+2*a}')
        A(f'v_exp_f32 v{32+2*a}, v{32+2*a}')
    A('v_mul_f32 v44, v24, v32')
    A('v_mul_f32 v46, v25, v32')
    A('v_mul_f32 v42, v33, v32')
    for a in range(1, 4):
        A(f'v_fmac_f32 v44, v{24+2*a}, v{32+2*a}')
        A(f'v_fmac_f32 v46, v{25+2*a}, v{32+2*a}')
        A(f'v_fmac_f32 v42, v{33+2*a}, v{32+2*a}')
    set_tags(41, 43, 45, 47)
    A(f's_lshl_b32 s{sT1}, s{sH}, 1')
    A(f's_add_u32 s{sT1}, s{sT1}, s{sT0}')
    A(f's_lshl_b32 s{sT1}, s{sT1}, 1')
    A(f's_add_u32 s{sT1}, s{sT1}, s{sB}')
    A(f's_lshl_b32 s{sT1}, s{sT1}, 3')
    A(f's_add_u32 s{sT1}, s{sT1}, s{sJ}')
    A(f's_lshl_b32 s{sT2}, s{sT1}, 10')
    A(f's_add_u32 s{sT2}, s{sT2}, {WS_AP}')
    A(f'buffer_store_dwordx4 v[44:47], v{vVoff}, {srd(rWS)}, s{sT2} offen sc1')
    A(f's_lshl_b32 s{sT2}, s{sT1}, 4')
    A(f's_add_u32 s{sT2}, s{sT2}, {WS_AML}')
    A('s_mov_b64 exec, 1')
    A(f'buffer_store_dwordx4 v[40:43], off, {srd(rWS)}, s{sT2} sc1')
    A('s_mov_b64 exec, -1')
    A('L_att_nopub:')
    A('s_waitcnt lgkmcnt(0)')
    A(f'v_readfirstlane_b32 s{sTag}, v3')
    stamp(3)
    A(f's_cmp_lg_u32 s{sR}, 0')
    A('s_cbranch_scc1 L_end')
    A(f's_lshr_b32 s{sT1}, s{sT0}, 1')
    A(f's_lshl_b32 s{sT2}, s{sG}, 1')
    A(f's_add_u32 s{sT2}, s{sT2}, s{sT1}')
    A(f's_lshl_b32 s{sOff}, s{sT2}, 13')
    A(f's_and_b32 s{sCnt}, s{sT0}, 1')
    A(f's_lshl_b32 s{sF0}, s{sCnt}, 9')
    A(f's_add_u32 s{sOff}, s{sOff}, s{sF0}')
    A(f's_add_u32 s{sOff}, s{sOff}, {WS_AP}')
    A(f's_lshl_b32 s{sT2}, s{sT2}, 7')
    A(f's_add_u32 s{sT2}, s{sT2}, {WS_AML}')
    A('v_lshrrev_b32 v1, 5, v0')
    A('v_lshlrev_b32 v2, 4, v1')
    A('v_lshlrev_b32 v1, 10, v1')
    A('v_and_b32 v3, 31, v0')
    A('v_lshl_add_u32 v1, v3, 4, v1')
    A(f'v_add_u32 v8, 4096, v1')
    A('L_own_poll:')
    for n in range(4):
        A(f'buffer_load_dwordx4 {v4(24+4*n)}, v{1 if n < 2 else 8}, {srd(rWS)}, s{sOff} offen offset:{(n&1)*2048} sc1')
    for n in range(4):
        A(f'buffer_load_dwordx4 {v4(40+4*n)}, v2, {srd(rWS)}, s{sT2} offen offset:{n*32} sc1')
    A('s_waitcnt vmcnt(0)')
    check_tags([25+2*i for i in range(16)], 56, 57, 'L_own_poll', 'L_own')
    stamp(4)
    A('v_max3_f32 v56, v40, v44, v48')
    A('v_max_f32 v56, v56, v52')
    xor32_add('v_max_f32', 56, 57)
    for n in range(4):
        A(f'v_sub_f32 v{40+4*n}, v{40+4*n}, v56')
        A(f'v_mul_f32 v{40+4*n}, s{sLog2e}, v{40+4*n}')
        A(f'v_exp_f32 v{40+4*n}, v{40+4*n}')
    A('v_mul_f32 v58, v24, v40')
    A('v_mul_f32 v59, v26, v40')
    A('v_mul_f32 v60, v42, v40')
    for n in range(1, 4):
        A(f'v_fmac_f32 v58, v{24+4*n}, v{40+4*n}')
        A(f'v_fmac_f32 v59, v{26+4*n}, v{40+4*n}')
        A(f'v_fmac_f32 v60, v{42+4*n}, v{40+4*n}')
    A('v_permlane32_swap_b32 v58, v59')
    A('v_add_f32 v58, v58, v59')
    xor32_add('v_add_f32', 60, 57)
    A('v_rcp_f32 v60, v60')
    A('v_mul_f32 v58, v58, v60')
    A('v_cvt_pk_bf16_f32 v58, v58, v58')
    A('v_and_b32 v1, 1, v0')
    A('v_lshlrev_b32 v1, 9, v1')
    A('v_lshrrev_b32 v2, 5, v0')
    A('v_lshl_add_u32 v1, v2, 8, v1')
    A('v_bfe_u32 v2, v0, 1, 4')
    A('v_lshl_add_u32 v1, v2, 2, v1')
    A(f's_lshl_b32 s{sT1}, s{sT1}, 7')
    A(f's_lshl_b32 s{sCnt}, s{sCnt}, 6')
    A(f's_add_u32 s{sT1}, s{sT1}, s{sCnt}')
    A(f'v_add_u32 v1, s{sT1}, v1')
    A(f'ds_write_b32 v1, v58 offset:{L_T2}')
    A('s_waitcnt lgkmcnt(0)')
    A('s_barrier')
    def xread(dst, nquads, tbl, rowdw):
        A('v_lshrrev_b32 v1, 3, v0')
        A(f'v_mul_u32_u24 v1, {rowdw*4}, v1')
        for q in range(nquads):
            A(f'ds_read_b128 {v4(dst+4*q)}, v1 offset:{tbl + q*16}')
    xread(24, 8, L_T2, 32)
    A(f's_lshl_b32 s{sT1}, s{sT0}, 15')
    A(f's_add_u32 s{sT1}, s{sT1}, {L_WO}')
    A(f'v_lshl_add_u32 v2, v0, 4, s{sT1}')
    for t in range(16): A(f'ds_read_b128 {v4(64+4*t)}, v2 offset:{t*1024}')
    for r in range(4): A(f'v_mov_b32 v{acc+r}, 0')
    for half in range(2):
        A('s_waitcnt lgkmcnt(0)')
        for t in range(16):
            af = 56 + 4 * (t & 1)
            mkA(af, 24 + half*16 + t)
            A(f'v_mfma_f32_16x16x32_bf16 {v4(acc)}, {v4(af)}, {v4(64+4*t)}, {v4(acc)}')
            if half == 0:
                A(f'ds_read_b128 {v4(64+4*t)}, v2 offset:{(16+t)*1024}')
    def pub_off(np_):
        A('v_lshrrev_b32 v1, 5, v0')
        A('v_mul_u32_u24 v1, 36, v1')
        A('v_bfe_u32 v2, v0, 1, 3')
        A('v_add_u32 v1, v1, v2')
        A(f'v_mul_u32_u24 v1, {np_*128}, v1')
        A('v_and_b32 v2, 1, v0')
        A('v_lshl_add_u32 v1, v2, 6, v1')
        A('v_bfe_u32 v2, v0, 4, 1')
        A('v_lshl_add_u32 v1, v2, 5, v1')
    pub_off(32)
    set_tags(25, 27, 29, 31)
    A(f's_mul_i32 s{sT1}, s{sT0}, {8*32*128}')
    A(f's_lshl_b32 s{sT2}, s{sG}, 7')
    A(f's_add_u32 s{sT1}, s{sT1}, s{sT2}')
    A(f's_add_u32 s{sT1}, s{sT1}, {WS_SP}')
    publish4(acc, 24, 28, 1, sT1)
    stamp(5)
    A('s_endpgm')
    for s in range(2):
        A(f'L_resc{s}:')
        A(f'v_max_f32 v{T}, v{T}, v{vM}')
        xor16_add('v_max_f32', T, T2)
        xor32_add('v_max_f32', T, T2)
        A(f'v_sub_f32 v{T2}, v{vM}, v{T}')
        A(f'v_mul_f32 v{T2}, s{sLog2e}, v{T2}')
        A(f'v_exp_f32 v{T2}, v{T2}')
        A(f'v_mov_b32 v{vM}, v{T}')
        A(f'v_mul_f32 v{vML}, s{sNLog2e}, v{T}')
        A(f'v_mul_f32 v{vL}, v{vL}, v{T2}')
        A(f'v_readlane_b32 s{sF0}, v{T2}, 0')
        A(f'v_readlane_b32 s{sF1}, v{T2}, 8')
        A(f'v_mov_b32 v{T}, s{sF0}')
        A(f'v_mov_b32 v{T2}, s{sF1}')
        A(f'v_cndmask_b32 v{T}, v{T}, v{T2}, s[{sHi}:{sHi+1}]')
        for r in range(4): A(f'v_mul_f32 v{acc+r}, v{acc+r}, v{T}')
        A(f's_branch L_back{s}')

    A('L_side:')
    A('s_setprio 3')
    XR = 8
    XF = 20
    WQ = 64
    A('v_lshrrev_b32 v1, 5, v0')
    A('v_mul_u32_u24 v1, 1152, v1')
    A('v_and_b32 v2, 31, v0')
    A('v_lshl_add_u32 v1, v2, 2, v1')
    for n in range(9): A(f'buffer_load_dword v{XR+n}, v1, {srd(rB)}, 0 offen offset:{n*128}')
    A(f'buffer_load_dword v17, off, {srd(rWS)}, 0 sc1')
    def off8(dst, stride):
        A(f'v_lshrrev_b32 v{dst}, 4, v0')
        A('v_bfe_u32 v2, v0, 3, 1')
        A(f'v_lshl_add_u32 v{dst}, v2, 2, v{dst}')
        A(f'v_mul_u32_u24 v{dst}, {stride}, v{dst}')
        A('v_and_b32 v2, 7, v0')
        A(f'v_lshl_add_u32 v{dst}, v2, 4, v{dst}')
    off8(3, 8192)
    A(f's_mov_b32 s{sOff}, 0')
    for u in range(18):
        A(f'buffer_load_dwordx4 {v4(WQ+4*u)}, v3, {srd(rA)}, s{sOff} offen {wflags}')
        if u < 17: A(f's_add_u32 s{sOff}, s{sOff}, 65536')
    A('s_barrier')
    A('s_waitcnt vmcnt(18)')
    stamp(1)
    A(f'v_readfirstlane_b32 s{sTag}, v17')
    for n in range(9):
        A(f'v_lshlrev_b32 v{XF+2*n}, 16, v{XR+n}')
        A(f'v_and_b32 v{XF+2*n+1}, 0xffff0000, v{XR+n}')
    A(f's_mul_i32 s{sTag}, s{sTag}, 0x9E3779B1')
    A(f's_add_u32 s{sTag}, s{sTag}, 0x7F4A7C15')
    A(f'v_add_f32 v8, v{XF}, v{XF+1}')
    A(f'v_add_f32 v9, v{XF+2}, v{XF+3}')
    for i in range(4, 18, 2):
        A(f'v_add_f32 v8, v8, v{XF+i}')
        A(f'v_add_f32 v9, v9, v{XF+i+1}')
    A('v_add_f32 v8, v8, v9')
    row_sum16(8)
    xor16_add('v_add_f32', 8, 9)
    A(f'v_mul_f32 v8, {f32(1/576)}, v8')
    A(f'v_sub_f32 v12, v{XF}, v8')
    A(f'v_sub_f32 v13, v{XF+1}, v8')
    A('v_mul_f32 v10, v12, v12')
    A('v_mul_f32 v11, v13, v13')
    for i in range(2, 18, 2):
        A(f'v_sub_f32 v12, v{XF+i}, v8')
        A(f'v_sub_f32 v13, v{XF+i+1}, v8')
        A('v_fmac_f32 v10, v12, v12')
        A('v_fmac_f32 v11, v13, v13')
    A('v_add_f32 v10, v10, v11')
    row_sum16(10)
    xor16_add('v_add_f32', 10, 9)
    A(f'v_mul_f32 v10, {f32(1/576)}, v10')
    rnd_bf16(8, 8)
    rnd_bf16(10, 10)
    A(f'v_add_f32 v10, {f32(1e-5)}, v10')
    rnd_bf16(10, 10)
    A('v_sqrt_f32 v10, v10')
    rnd_bf16(10, 10)
    A('v_rcp_f32 v10, v10')
    A('v_and_b32 v1, 1, v0')
    A('v_lshlrev_b32 v1, 2, v1')
    A('v_lshrrev_b32 v2, 5, v0')
    A('v_add_u32 v1, v1, v2')
    A('v_mul_u32_u24 v1, 576, v1')
    A('v_bfe_u32 v2, v0, 1, 4')
    A('v_lshl_add_u32 v1, v2, 2, v1')
    for n in range(9):
        a, b = XF + 2*n, XF + 2*n + 1
        A(f'v_sub_f32 v{a}, v{a}, v8')
        A(f'v_sub_f32 v{b}, v{b}, v8')
        A(f'v_cvt_pk_bf16_f32 v{b}, v{a}, v{b}')
        A(f'v_lshlrev_b32 v{a}, 16, v{b}')
        A(f'v_and_b32 v{b}, 0xffff0000, v{b}')
        A(f'v_mul_f32 v{a}, v{a}, v10')
        A(f'v_mul_f32 v{b}, v{b}, v10')
        A(f'v_cvt_pk_bf16_f32 v{a}, v{a}, v{a}')
        A(f'v_cvt_pk_bf16_f32 v{b}, v{b}, v{b}')
        A(f'ds_write_b32 v1, v{a} offset:{L_T + n*64}')
        A(f'ds_write_b32 v1, v{b} offset:{L_T + 1152 + n*64}')
    A('s_waitcnt lgkmcnt(0)')
    A('v_lshrrev_b32 v18, 3, v0')
    A('v_mul_u32_u24 v18, 576, v18')
    A(f's_mul_i32 s{sT2}, s{sT1}, 144')
    A(f'v_add_u32 v1, s{sT2}, v18')
    for q in range(9): A(f'ds_read_b128 {v4(XF+4*q)}, v1 offset:{L_T + q*16}')
    for r in range(8): A(f'v_mov_b32 v{8+r}, 0')
    A('s_waitcnt lgkmcnt(0)')
    for u in range(18):
        if u % 6 == 0: A(f's_waitcnt vmcnt({12 - u})')
        mkA(56, XF + 2*u)
        mkA(60, XF + 2*u + 1)
        A(f'v_mfma_f32_16x16x32_bf16 v[8:11], v[56:59], {v4(WQ+4*u)}, v[8:11]')
        A(f'v_mfma_f32_16x16x32_bf16 v[12:15], v[60:63], {v4(WQ+4*u)}, v[12:15]')
    A('v_lshrrev_b32 v1, 5, v0')
    A('v_lshlrev_b32 v1, 13, v1')
    A('v_and_b32 v2, 7, v0')
    A('v_lshl_add_u32 v1, v2, 6, v1')
    A('v_bfe_u32 v2, v0, 4, 1')
    A('v_lshl_add_u32 v1, v2, 5, v1')
    A(f's_lshl_b32 s{sT2}, s{sH}, 14')
    A(f's_lshl_b32 s{sT1}, s{sT1}, 11')
    A(f's_add_u32 s{sT2}, s{sT2}, s{sT1}')
    A(f's_lshl_b32 s{sT0}, s{sT0}, 9')
    A(f's_add_u32 s{sT2}, s{sT2}, s{sT0}')
    A(f's_add_u32 s{sT2}, s{sT2}, {WS_QP}')
    set_tags(21, 23, 25, 27)
    for r in range(4):
        A(f'v_add_f32_dpp v{8+r}, v{12+r}, v{8+r} row_ror:8 {DPP}')
    A(f's_mov_b64 exec, s[{sLo8}:{sLo8+1}]')
    publish4(8, 20, 24, 1, sT2)
    A('s_mov_b64 exec, -1')
    stamp(2)
    A(f's_lshl_b32 s{sT2}, s{sH}, 1')
    A(f's_add_u32 s{sT2}, s{sT2}, s{sB}')
    A(f's_lshl_b32 s{sT2}, s{sT2}, 13')
    A(f's_add_u32 s{sT2}, s{sT2}, {WS_QP}')
    A('v_lshlrev_b32 v1, 4, v0')
    A('v_add_u32 v2, 4096, v1')
    A('L_q_poll:')
    for i in range(8):
        A(f'buffer_load_dwordx4 {v4(64+4*i)}, v{1 if i < 4 else 2}, {srd(rWS)}, s{sT2} offen offset:{(i&3)*1024} sc1')
    A('s_waitcnt vmcnt(0)')
    check_tags([65+2*i for i in range(16)], 8, 9, 'L_q_poll', 'L_q')
    for hh in range(2):
        for o in range(2):
            r0 = 64 + 4*hh + 2*o
            A(f'v_add_f32 v{r0}, v{r0}, v{r0+8}')
            A(f'v_add_f32 v{r0+16}, v{r0+16}, v{r0+24}')
            A(f'v_add_f32 v{r0}, v{r0}, v{r0+16}')
        A(f'v_cvt_pk_bf16_f32 v{8+hh}, v{64+4*hh}, v{66+4*hh}')
    A('v_lshlrev_b32 v1, 2, v0')
    A(f'ds_write_b32 v1, v8 offset:{L_Q}')
    A(f'ds_write_b32 v1, v9 offset:{L_Q + 256}')
    A('s_waitcnt lgkmcnt(0)')
    A('s_barrier')
    A('s_setprio 0')
    stamp(3)
    A(f's_cmp_eq_u32 s{sR}, 0')
    A('s_cbranch_scc1 L_wo_dma')
    A(f's_lshl_b32 s{sT0}, s{sG}, 1')
    A(f's_add_u32 s{sT0}, s{sT0}, s{sR}')
    A(f's_sub_u32 s{sT0}, s{sT0}, 1')
    A(f's_cmp_le_u32 s{sR}, 2')
    A('s_cbranch_scc1 L_ffn')
    A(f's_cmp_lg_u32 s{sR}, 3')
    A('s_cbranch_scc1 L_side_wait')
    A(f's_and_b32 s{sT1}, s{sG}, 3')
    A(f's_cmp_lg_u32 s{sT1}, 0')
    A('s_cbranch_scc1 L_side_wait')
    A(f's_lshr_b32 s{sT0}, s{sG}, 2')
    A(f's_add_u32 s{sT0}, s{sT0}, 64')
    A('L_ffn:')
    A(f's_lshl_b32 s{sT1}, s{sT0}, 7')
    mk_srd(rA, sWG, sT1, f's_sub_u32 s{rA+2}, {576*9216}, s{sT1}')
    mk_srd(rB, sWU, sT1, f's_sub_u32 s{rB+2}, {576*9216}, s{sT1}')
    off8(3, 9216)
    GB = [64, 80]
    def ffn_ld(buf):
        A(f'buffer_load_dwordx4 {v4(GB[buf])}, v3, {srd(rA)}, s{sOff} offen {wflags}')
        A(f'buffer_load_dwordx4 {v4(GB[buf]+4)}, v3, {srd(rB)}, s{sOff} offen {wflags}')
        A(f's_add_u32 s{sOff}, s{sOff}, {8*9216}')
        A(f'buffer_load_dwordx4 {v4(GB[buf]+8)}, v3, {srd(rA)}, s{sOff} offen {wflags}')
        A(f'buffer_load_dwordx4 {v4(GB[buf]+12)}, v3, {srd(rB)}, s{sOff} offen {wflags}')
        A(f's_add_u32 s{sOff}, s{sOff}, {8*9216}')
    A(f's_mov_b32 s{sOff}, 0')
    ffn_ld(0)
    for r in range(16): A(f'v_mov_b32 v{20+r}, 0')
    A('v_mov_b32 v1, v18')
    A(f's_mov_b32 s{sCnt}, 18')
    A('L_ffn_loop:')
    for buf in range(2):
        ffn_ld(1 - buf)
        A(f'ds_read_b128 v[8:11], v1 offset:{L_T + buf*16}')
        A('s_waitcnt vmcnt(4) lgkmcnt(0)')
        for uu in range(2):
            mkA(56, 8 + 2*uu)
            mkA(60, 9 + 2*uu)
            g = GB[buf] + 8*uu
            A(f'v_mfma_f32_16x16x32_bf16 v[20:23], v[56:59], {v4(g)}, v[20:23]')
            A(f'v_mfma_f32_16x16x32_bf16 v[24:27], v[60:63], {v4(g)}, v[24:27]')
            A(f'v_mfma_f32_16x16x32_bf16 v[28:31], v[56:59], {v4(g+4)}, v[28:31]')
            A(f'v_mfma_f32_16x16x32_bf16 v[32:35], v[60:63], {v4(g+4)}, v[32:35]')
    A('v_add_u32 v1, 32, v1')
    A(f's_sub_u32 s{sCnt}, s{sCnt}, 1')
    A(f's_cmp_lg_u32 s{sCnt}, 0')
    A('s_cbranch_scc1 L_ffn_loop')
    A(f's_mul_i32 s{sT1}, s{sT0}, {64*1152}')
    mk_srd(rA, sWD, sT1, 64*1152)
    off8(3, 1152)
    A('v_add_u32 v3, 1024, v3')
    A('v_lshrrev_b32 v19, 4, v0')
    A('v_mul_u32_u24 v19, 1152, v19')
    A('v_and_b32 v2, 15, v0')
    A('v_lshl_add_u32 v19, v2, 4, v19')
    DB = [64, 100]
    def dn_ld(buf, it):
        A(f's_mov_b32 s{sOff}, {it*8*1152}')
        for cb in range(4):
            A(f'buffer_load_dwordx4 {v4(DB[buf]+4*cb)}, v19, {srd(rA)}, s{sOff} offen offset:{cb*256} {wflags}')
        A(f'buffer_load_dwordx4 {v4(DB[buf]+32)}, v3, {srd(rA)}, s{sOff} offen {wflags}')
        A(f's_add_u32 s{sOff}, s{sOff}, {4*1152}')
        for cb in range(4):
            A(f'buffer_load_dwordx4 {v4(DB[buf]+16+4*cb)}, v19, {srd(rA)}, s{sOff} offen offset:{cb*256} {wflags}')
    A('s_waitcnt vmcnt(0)')
    dn_ld(0, 0)
    for r in range(4):
        A(f'v_add_f32_dpp v{20+r}, v{24+r}, v{20+r} row_ror:8 {DPP}')
        A(f'v_add_f32_dpp v{28+r}, v{32+r}, v{28+r} row_ror:8 {DPP}')
    A('v_lshrrev_b32 v1, 5, v0')
    A('v_lshlrev_b32 v1, 7, v1')
    A('v_and_b32 v2, 7, v0')
    A('v_lshl_add_u32 v1, v2, 3, v1')
    A('v_bfe_u32 v2, v0, 4, 1')
    A('v_lshl_add_u32 v1, v2, 2, v1')
    for r in range(4):
        rnd_bf16(20+r, 20+r)
        rnd_bf16(28+r, 28+r)
        silu(20+r, 20+r, 24+r)
        rnd_bf16(20+r, 20+r)
        A(f'v_mul_f32 v{20+r}, v{20+r}, v{28+r}')
        A(f'v_cvt_pk_bf16_f32 v{20+r}, v{20+r}, v{20+r}')
    A(f's_mov_b64 exec, s[{sLo8}:{sLo8+1}]')
    for r in range(4): A(f'ds_write_b32 v1, v{20+r} offset:{L_T2 + r*256}')
    A('s_mov_b64 exec, -1')
    A('s_waitcnt lgkmcnt(0)')
    xread(136, 4, L_T2, 32)
    for r in range(24): A(f'v_mov_b32 v{20+r}, 0')
    A('s_waitcnt lgkmcnt(0)')
    for it in range(8):
        buf = it & 1
        if it < 7:
            dn_ld(1 - buf, it + 1)
            A('s_waitcnt vmcnt(9)')
        else:
            A('s_waitcnt vmcnt(0)')
        mkA(56, 136 + 2*it)
        mkA(60, 137 + 2*it)
        for cb in range(4):
            A(f'v_mfma_f32_16x16x32_bf16 {v4(20+4*cb)}, v[56:59], {v4(DB[buf]+4*cb)}, {v4(20+4*cb)}')
        A(f'v_mfma_f32_16x16x32_bf16 v[36:39], v[56:59], {v4(DB[buf]+32)}, v[36:39]')
        for cb in range(4):
            A(f'v_mfma_f32_16x16x32_bf16 {v4(20+4*cb)}, v[60:63], {v4(DB[buf]+16+4*cb)}, {v4(20+4*cb)}')
        A(f'v_mfma_f32_16x16x32_bf16 v[40:43], v[60:63], {v4(DB[buf]+32)}, v[40:43]')
    pub_off(72)
    set_tags(9, 11, 13, 15)
    A(f's_lshl_b32 s{sT1}, s{sT0}, 7')
    A(f's_add_u32 s{sT1}, s{sT1}, {WS_DP}')
    for cb in range(4):
        publish4(20 + 4*cb, 8, 12, 1, sT1)
        A(f's_add_u32 s{sT1}, s{sT1}, {8*72*128}')
    for r in range(4):
        A(f'v_add_f32_dpp v{36+r}, v{40+r}, v{36+r} row_ror:8 {DPP}')
    A(f's_mov_b64 exec, s[{sLo8}:{sLo8+1}]')
    publish4(36, 8, 12, 1, sT1)
    A('s_mov_b64 exec, -1')
    A('s_branch L_side_wait')
    A('L_wo_dma:')
    A(f's_mul_i32 s{sT1}, s{sG}, {128*1152}')
    mk_srd(rA, sWO, sT1, 128*1152)
    off8(3, 1152)
    A('v_add_u32 v3, 1024, v3')
    A('v_lshrrev_b32 v19, 4, v0')
    A('v_mul_u32_u24 v19, 1152, v19')
    A('v_and_b32 v2, 15, v0')
    A('v_lshl_add_u32 v19, v2, 4, v19')
    A(f's_mov_b32 s{sOff}, 0')
    A(f's_mov_b32 s{sT0}, {L_WO}')
    A(f's_mov_b32 s{sT2}, {L_WO + 131072}')
    A(f's_mov_b32 s{sCnt}, 16')
    A('L_wo_loop:')
    A(f's_mov_b32 m0, s{sT2}')
    A(f'buffer_load_dwordx4 v3, {srd(rA)}, s{sOff} offen {wflags} lds')
    A(f's_add_u32 s{sT2}, s{sT2}, 1024')
    for tt in range(2):
        for cb in range(4):
            A(f's_add_u32 m0, s{sT0}, {cb*32768 - cb*256}')
            A(f'buffer_load_dwordx4 v19, {srd(rA)}, s{sOff} offen offset:{cb*256} {wflags} lds')
        A(f's_add_u32 s{sT0}, s{sT0}, 1024')
        A(f's_add_u32 s{sOff}, s{sOff}, {4*1152}')
        A('s_waitcnt vmcnt(4)')
    A(f's_sub_u32 s{sCnt}, s{sCnt}, 1')
    A(f's_cmp_lg_u32 s{sCnt}, 0')
    A('s_cbranch_scc1 L_wo_loop')
    A('L_side_wait:')
    A(f'v_mov_b32 v1, 0')
    A(f'v_mov_b32 v2, s{sTag}')
    A('s_waitcnt vmcnt(0) lgkmcnt(0)')
    A(f'ds_write_b32 v1, v2 offset:{L_Q - 4}')
    A('s_waitcnt lgkmcnt(0)')
    stamp(4)
    A('s_barrier')
    A(f's_cmp_eq_u32 s{sR}, 0')
    A('s_cbranch_scc1 L_side_owner')
    A(f's_cmp_lt_u32 s{sR}, 4')
    A('s_cbranch_scc1 L_end')
    A(f's_lshl_b32 s{sT0}, s{sG}, 1')
    A(f's_add_u32 s{sT0}, s{sT0}, s{sR}')
    A(f's_sub_u32 s{sT0}, s{sT0}, 4')
    A(f's_cmp_le_u32 s{sR}, 5')
    A('s_cbranch_scc1 L_red')
    A(f's_cmp_lg_u32 s{sR}, 6')
    A('s_cbranch_scc1 L_end')
    A(f's_and_b32 s{sT1}, s{sG}, 3')
    A(f's_cmp_lg_u32 s{sT1}, 0')
    A('s_cbranch_scc1 L_end')
    A(f's_lshr_b32 s{sT0}, s{sG}, 2')
    A(f's_add_u32 s{sT0}, s{sT0}, 64')
    A('L_red:')
    mk_srd(rB, sX, None, 2304)
    A('v_and_b32 v18, 7, v0')
    A('v_lshlrev_b32 v18, 2, v18')
    A(f's_lshl_b32 s{sCnt}, s{sT0}, 5')
    A(f'buffer_load_dword v19, v18, {srd(rB)}, s{sCnt} offen')
    A(f's_mul_i32 s{sT1}, s{sT0}, {72*128}')
    A(f's_add_u32 s{sT1}, s{sT1}, {WS_DP}')
    A('v_lshlrev_b32 v1, 4, v0')
    A('v_add_u32 v2, 4096, v1')
    A('v_add_u32 v3, 8192, v1')
    A('L_dp_poll:')
    for i in range(9):
        A(f'buffer_load_dwordx4 {v4(64+4*i)}, v{1 + i//4}, {srd(rWS)}, s{sT1} offen offset:{(i&3)*1024} sc1')
    A('s_waitcnt vmcnt(0)')
    check_tags([65+2*i for i in range(18)], 8, 9, 'L_dp_poll', 'L_dp')
    def sum_red(n):
        for o in range(2):
            r0 = 64 + 2*o
            for i in range(1, n): A(f'v_add_f32 v{r0}, v{r0}, v{r0+4*i}')
        for o in range(2):
            r0 = 64 + 2*o
            A(f'v_add_f32_dpp v{r0}, v{r0}, v{r0} row_ror:8 {DPP}')
        for o in range(2): xor16_add('v_add_f32', 64 + 2*o, 65 + 2*o)
        for o in range(2): xor32_add('v_add_f32', 64 + 2*o, 65 + 2*o)
    sum_red(9)
    for o in range(2):
        rnd_bf16(20+o, 64+2*o)
        silu(20+o, 20+o, 22+o)
        rnd_bf16(20+o, 20+o)
    A('v_lshlrev_b32 v22, 16, v19')
    A('v_and_b32 v23, 0xffff0000, v19')
    A(f's_lshl_b32 s{sT1}, s{sT0}, 12')
    A(f's_add_u32 s{sT1}, s{sT1}, {WS_SP}')
    stamp(5)
    A('L_sp_poll:')
    for i in range(4):
        A(f'buffer_load_dwordx4 {v4(64+4*i)}, v1, {srd(rWS)}, s{sT1} offen offset:{i*1024} sc1')
    A('s_waitcnt vmcnt(0)')
    check_tags([65+2*i for i in range(8)], 8, 9, 'L_sp_poll', 'L_sp')
    stamp(6)
    sum_red(4)
    for o in range(2):
        rnd_bf16(24+o, 64+2*o)
        A(f'v_mul_f32 v{24+o}, v{24+o}, v{20+o}')
        rnd_bf16(24+o, 24+o)
        A(f'v_add_f32 v{24+o}, v{24+o}, v{22+o}')
    A('v_cvt_pk_bf16_f32 v24, v24, v25')
    A('s_mov_b64 exec, 0xff')
    A(f'buffer_store_dword v24, v18, {srd(rO)}, s{sCnt} offen')
    A(f's_cmp_lg_u32 s{sT0}, 0')
    A('s_cbranch_scc1 L_end')
    A('s_mov_b64 exec, 1')
    A(f'v_mov_b32 v1, s{sTag}')
    A(f'buffer_store_dword v1, off, {srd(rWS)}, 0')
    A('s_endpgm')
    A('L_side_owner:')
    A(f's_mov_b32 s{sT1}, {L_WO + 131072}')
    A(f'v_lshl_add_u32 v2, v0, 4, s{sT1}')
    for u in range(16): A(f'ds_read_b128 {v4(64+4*u)}, v2 offset:{u*1024}')
    for r in range(8): A(f'v_mov_b32 v{8+r}, 0')
    A('s_waitcnt lgkmcnt(0)')
    A('s_barrier')
    xread(24, 8, L_T2, 32)
    A('s_waitcnt lgkmcnt(0)')
    for u in range(16):
        mkA(56, 24 + 2*u)
        mkA(60, 25 + 2*u)
        A(f'v_mfma_f32_16x16x32_bf16 v[8:11], v[56:59], {v4(64+4*u)}, v[8:11]')
        A(f'v_mfma_f32_16x16x32_bf16 v[12:15], v[60:63], {v4(64+4*u)}, v[12:15]')
    pub_off(32)
    set_tags(25, 27, 29, 31)
    A(f's_lshl_b32 s{sT1}, s{sG}, 7')
    A(f's_add_u32 s{sT1}, s{sT1}, {WS_SP + 4*8*32*128}')
    for r in range(4):
        A(f'v_add_f32_dpp v{8+r}, v{12+r}, v{8+r} row_ror:8 {DPP}')
    A(f's_mov_b64 exec, s[{sLo8}:{sLo8+1}]')
    publish4(8, 24, 28, 1, sT1)
    A('L_end:')
    A('s_endpgm')

    body = A.finish()
    out = HEADER
    out += f'; @launch grid=(256,1,1) block=(320,1,1) lds={LDS_BYTES}\n'
    out += '.amdgcn_target "amdgcn-amd-amdhsa--gfx950"\n.text\n'
    out += f'.globl {KNAME}\n.p2align 8\n.type {KNAME},@function\n'
    out += body
    out += f'''.section .rodata,"a"
.p2align 6
.amdhsa_kernel {KNAME}
  .amdhsa_next_free_vgpr 160
  .amdhsa_next_free_sgpr 96
  .amdhsa_accum_offset 160
  .amdhsa_group_segment_fixed_size 0
  .amdhsa_kernarg_size 96
  .amdhsa_user_sgpr_count 2
  .amdhsa_user_sgpr_kernarg_segment_ptr 1
  .amdhsa_system_sgpr_workgroup_id_x 1
  .amdhsa_float_denorm_mode_32 3
.end_amdhsa_kernel
'''
    return out

if __name__ == '__main__':
    import argparse
    ap = argparse.ArgumentParser()
    ap.add_argument('-o', default='k.s')
    ap.add_argument('-W', type=int, default=6)
    ap.add_argument('--stamps', action='store_true')
    a = ap.parse_args()
    open(a.o, 'w').write(gen(W=a.W, stamps=a.stamps))
```

```python
import sys, struct
from asmlib import Asm

KNAME = 'recurrent_scan__gqa_block_cached__swiglu_ffn__decode_kernel'
def f32(x): return '0x%08x' % struct.unpack('<I', struct.pack('<f', x))[0]

WS_EPOCH = 0x0
WS_CNT = 0x1000
CNT_STRIDE = 4352
WS_QP = 0x40000
WS_AP = 0x60000
WS_AML = 0xA0000
WS_SP = 0xB0000
WS_DP = 0x100000
WS_ST = 0x200000
WS_SIZE = 0x400000
L_T = 0
L_Q = 4608
L_T2 = 5120
L_XO = 6144
L_XM = 11264
L_TAG = 11360
L_PG = 11376
L_TQ = 11392
L_KV = 12160
LDS_BYTES = L_KV + 131072

HEADER = open('recurrent_scan__gqa_block_cached__swiglu_ffn__decode.s.ref').read().split('; Override launch')[0]

def gen(W=(5,)*8, Wp=6, stamps=False, kvflags='nt', wflags='nt', NC=52, codepf=True, qsleep=30, qsleep2=8,
        abl='', lead=1, pgpos=0, rdpos=6):
    NP = 512 - 8*NC - 28
    assert NC <= 60 and NC + NP + 4 <= 192
    XBASE = 8*NC
    PBASE = 8*NC + 28
    A = Asm()
    sX, sK, sV, sWQ, sWO, sWG, sWU, sWD, sOUT, sDBG, sWSP = 4, 6, 8, 10, 12, 16, 18, 20, 22, 24, 26
    rK, rV, rWS, rA, rB, rO = 28, 32, 36, 40, 44, 48
    sWave, sG, sJ, sB, sH, sR, sOwn, sOff, sCnt, sT0, sT1, sT2 = 3, 52, 53, 54, 55, 56, 57, 58, 59, 60, 61, 62
    sScale, sLog2e, sNLog2e, sSpin = 63, 64, 65, 66
    sA = 67
    sHi = 68
    sLo8 = 70
    sF0, sF1 = 72, 73
    sAoff, sXoff = 74, 75
    sTg = 76
    sP = 80
    sAP, sAML = 82, 83
    sSt = 84
    def srd(r): return f's[{r}:{r+3}]'
    def v4(r): return f'v[{r}:{r+3}]'
    def v2(r): return f'v[{r}:{r+1}]'
    def stamp(idx):
        if not stamps: return
        A(f's_memrealtime s[{sSt}:{sSt+1}]')
        A('s_waitcnt lgkmcnt(0)')
        A(f's_mov_b32 s{sSt+2+idx}, s{sSt}')
    def endpgm():
        A('s_branch L_exit' if stamps else 's_endpgm')
    LEND = 'L_exit' if stamps else 'L_end'

    def mk_srd(r, base, off_sgpr, size):
        if off_sgpr is None:
            A(f's_mov_b32 s{r}, s{base}')
            A(f's_mov_b32 s{r+1}, s{base+1}')
        else:
            A(f's_add_u32 s{r}, s{base}, s{off_sgpr}')
            A(f's_addc_u32 s{r+1}, s{base+1}, 0')
        if isinstance(size, int): A(f's_mov_b32 s{r+2}, {size}')
        else: A(size)
        A(f's_mov_b32 s{r+3}, 0x20000')
    def xor16(op, x, t):
        A(f'v_mov_b32 v{t}, v{x}')
        A(f'v_permlane16_swap_b32 v{x}, v{t}')
        A(f'{op} v{x}, v{x}, v{t}')
    def xor32(op, x, t):
        A(f'v_mov_b32 v{t}, v{x}')
        A(f'v_permlane32_swap_b32 v{x}, v{t}')
        A(f'{op} v{x}, v{x}, v{t}')
    DPP = 'row_mask:0xf bank_mask:0xf'
    def row_sum16(x):
        A(f'v_add_f32_dpp v{x}, v{x}, v{x} quad_perm:[1,0,3,2] {DPP}')
        A(f'v_add_f32_dpp v{x}, v{x}, v{x} quad_perm:[2,3,0,1] {DPP}')
        A(f'v_add_f32_dpp v{x}, v{x}, v{x} row_half_mirror {DPP}')
        A(f'v_add_f32_dpp v{x}, v{x}, v{x} row_mirror {DPP}')
    def rscatter4(x):
        A(f'v_permlane32_swap_b32 v{x}, v{x+2}')
        A(f'v_permlane32_swap_b32 v{x+1}, v{x+3}')
        A(f'v_add_f32 v{x}, v{x}, v{x+2}')
        A(f'v_add_f32 v{x+1}, v{x+1}, v{x+3}')
        A(f'v_permlane16_swap_b32 v{x}, v{x+1}')
        A(f'v_add_f32 v{x}, v{x}, v{x+1}')
    def rnd_bf16(dst, src):
        A(f'v_cvt_pk_bf16_f32 v{dst}, v{src}, v{src}')
        A(f'v_and_b32 v{dst}, 0xffff0000, v{dst}')
    def mkA(dst, x):
        for w in range(4):
            A(f'v_and_b32 v{dst+w}, v{x}, v{4+w}')
    def spin_check(retry_label, name):
        A(f's_cbranch_vccz {name}_ok')
        A(f's_sub_u32 s{sSpin}, s{sSpin}, 1')
        A(f's_cmp_gt_i32 s{sSpin}, 0')
        A(f's_cbranch_scc1 {retry_label}')
        A(f'{name}_ok:')
    def check_tags(words, t0, t1, retry_label, name):
        acc_ = [t0, t1]
        for i, (w, tg) in enumerate(words):
            if i < 2: A(f'v_xor_b32 v{acc_[i]}, s{tg}, v{w}')
            else: A(f'v_bitop3_b32 v{acc_[i&1]}, v{w}, s{tg}, v{acc_[i&1]} bitop3:0xbe')
        A(f'v_or_b32 v{t0}, v{t0}, v{t1}')
        A(f'v_and_b32 v{t0}, 15, v{t0}')
        A(f'v_cmp_ne_u32 vcc, 0, v{t0}')
        spin_check(retry_label, name)
    def quads(base, n): return [(base + i, sTg + (i & 3)) for i in range(4*n)]
    def silu(dst, x, t):
        A(f'v_mul_f32 v{t}, s{sNLog2e}, v{x}')
        A(f'v_exp_f32 v{t}, v{t}')
        A(f'v_add_f32 v{t}, 1.0, v{t}')
        A(f'v_rcp_f32 v{t}, v{t}')
        A(f'v_mul_f32 v{dst}, v{x}, v{t}')
    def tagq(dst, src):
        for r in range(4): A(f'v_bfi_b32 v{dst+r}, 15, s{sTg+r}, v{src+r}')
    def publish(vals, voff, soff, mask=None):
        tagq(vals, vals)
        if mask: A(f's_mov_b64 exec, s[{mask}:{mask+1}]')
        A(f'buffer_store_dwordx4 {v4(vals)}, v{voff}, {srd(rWS)}, s{soff} offen sc1')
        if mask: A('s_mov_b64 exec, -1')
    def mk_tags(src):
        A(f's_add_u32 s{sTg}, s{src}, 1')
        A(f's_add_u32 s{sTg+1}, s{src}, 6')
        A(f's_add_u32 s{sTg+2}, s{src}, 11')
        A(f's_add_u32 s{sTg+3}, s{src}, 16')
    def off8(dst, stride):
        A(f'v_lshrrev_b32 v{dst}, 4, v0')
        A('v_bfe_u32 v2, v0, 3, 1')
        A(f'v_lshl_add_u32 v{dst}, v2, 2, v{dst}')
        A(f'v_mul_u32_u24 v{dst}, {stride}, v{dst}')
        A('v_and_b32 v2, 7, v0')
        A(f'v_lshl_add_u32 v{dst}, v2, 4, v{dst}')
    def off4(dst, stride):
        A(f'v_lshrrev_b32 v{dst}, 4, v0')
        A(f'v_mul_u32_u24 v{dst}, {stride}, v{dst}')
        A('v_and_b32 v2, 15, v0')
        A(f'v_lshl_add_u32 v{dst}, v2, 4, v{dst}')
    def pub_off(dst, np_):
        A(f'v_lshrrev_b32 v{dst}, 5, v0')
        A(f'v_mul_u32_u24 v{dst}, 18, v{dst}')
        A('v_bfe_u32 v2, v0, 2, 2')
        A(f'v_add_u32 v{dst}, v{dst}, v2')
        A(f'v_mul_u32_u24 v{dst}, {np_*128}, v{dst}')
        A('v_and_b32 v2, 3, v0')
        A(f'v_lshl_add_u32 v{dst}, v2, 5, v{dst}')
        A('v_and_b32 v2, 16, v0')
        A(f'v_add_u32 v{dst}, v{dst}, v2')

    vKoff, vVoff, vM, vML, vQ, acc, vL = 8, 9, 10, 11, 12, 16, 20
    vXO, vXM, vTQ, vTK, vPG = 3, 21, 22, 23, 2
    D = 24; S = 40; U = 44; T = 46; T2 = 47; AF = 48
    slotK = [64, 96]; slotV = [80, 112]
    WOR = 128
    def att_parts(s, name):
        def qk():
            for n in range(4):
                A(f'v_mfma_f32_16x16x32_bf16 {v4(D+4*n)}, {v4(slotK[s]+4*n)}, {v4(vQ)}, 0')
        def red():
            for r in range(4):
                for n in range(4):
                    if r == 0: A(f'v_mov_b32_dpp v{S+n}, v{D+4*n} quad_perm:[0,0,0,0] {DPP}')
                    else: A(f'v_add_f32_dpp v{S+n}, v{D+4*n+r}, v{S+n} quad_perm:[{r},{r},{r},{r}] {DPP}')
        def rnd4():
            A(f'v_cvt_pk_bf16_f32 v{U}, v{S}, v{S+1}')
            A(f'v_cvt_pk_bf16_f32 v{U+1}, v{S+2}, v{S+3}')
            A(f'v_lshlrev_b32 v{S}, 16, v{U}')
            A(f'v_and_b32 v{S+1}, 0xffff0000, v{U}')
            A(f'v_lshlrev_b32 v{S+2}, 16, v{U+1}')
            A(f'v_and_b32 v{S+3}, 0xffff0000, v{U+1}')
        def scale():
            rnd4()
            for n in range(4): A(f'v_mul_f32 v{S+n}, s{sScale}, v{S+n}')
            rnd4()
            A(f'v_max3_f32 v{T}, v{S}, v{S+1}, v{S+2}')
            A(f'v_max_f32 v{T}, v{T}, v{S+3}')
            A(f'v_cmp_gt_f32 vcc, v{T}, v{vM}')
            A(f's_cbranch_vccnz L_resc{name}')
            A(f'L_back{name}:')
        def expo():
            for n in range(4): A(f'v_fma_f32 v{S+n}, v{S+n}, s{sLog2e}, v{vML}')
            for n in range(4): A(f'v_exp_f32 v{S+n}, v{S+n}')
            A(f'v_add_f32 v{T}, v{S}, v{S+1}')
            A(f'v_add_f32 v{T2}, v{S+2}, v{S+3}')
            for n in range(4): A(f'v_cvt_pk_bf16_f32 v{S+n}, v{S+n}, v{S+n}')
            A(f'v_add_f32 v{T}, v{T}, v{T2}')
            A(f'v_add_f32 v{vL}, v{vL}, v{T}')
        def masks():
            for n in range(4): mkA(AF + 4*n, S + n)
        def pv():
            for n in range(4):
                A(f'v_mfma_f32_16x16x32_bf16 {v4(acc)}, {v4(AF+4*n)}, {v4(slotV[s]+4*n)}, {v4(acc)}')
        return qk, red, scale, expo, masks, pv
    def resc(name):
        A(f'L_resc{name}:')
        A(f'v_max_f32 v{T}, v{T}, v{vM}')
        xor16('v_max_f32', T, T2)
        xor32('v_max_f32', T, T2)
        A(f'v_sub_f32 v{T2}, v{vM}, v{T}')
        A(f'v_mul_f32 v{T2}, s{sLog2e}, v{T2}')
        A(f'v_exp_f32 v{T2}, v{T2}')
        A(f'v_mov_b32 v{vM}, v{T}')
        A(f'v_mul_f32 v{vML}, s{sNLog2e}, v{T}')
        A(f'v_mul_f32 v{vL}, v{vL}, v{T2}')
        A(f'v_readlane_b32 s{sF0}, v{T2}, 0')
        A(f'v_readlane_b32 s{sF1}, v{T2}, 8')
        A(f'v_mov_b32 v{T}, s{sF0}')
        A(f'v_mov_b32 v{T2}, s{sF1}')
        A(f'v_cndmask_b32 v{T}, v{T}, v{T2}, s[{sHi}:{sHi+1}]')
        for r in range(4): A(f'v_mul_f32 v{acc+r}, v{acc+r}, v{T}')
        A(f's_branch L_back{name}')
    def att_init():
        A(f'v_mov_b32 v{vM}, 0xff800000')
        A(f'v_mov_b32 v{vML}, 0')
        A(f'v_mov_b32 v{vL}, 0')
        for r in range(4): A(f'v_mov_b32 v{acc+r}, 0')
        A(f'v_lshrrev_b32 v{vXO}, 5, v0')
        A(f'v_lshlrev_b32 v{vXO}, 9, v{vXO}')
        A('v_and_b32 v2, 15, v0')
        A(f'v_lshl_add_u32 v{vXO}, v2, 5, v{vXO}')
        A('v_and_b32 v2, 16, v0')
        A(f'v_add_u32 v{vXO}, v{vXO}, v2')
        A(f's_lshl_b32 s{sT1}, s{sA}, 10')
        A(f'v_add_u32 v{vXO}, s{sT1}, v{vXO}')
        A(f'v_and_b32 v{vXM}, 8, v0')
        A(f's_lshl_b32 s{sT1}, s{sA}, 4')
        A(f'v_add_u32 v{vXM}, s{sT1}, v{vXM}')
        A('v_bfe_u32 v1, v0, 3, 1')
        A('v_lshlrev_b32 v1, 8, v1')
        A('v_and_b32 v2, 3, v0')
        A('v_lshl_add_u32 v1, v2, 6, v1')
        A('v_lshrrev_b32 v2, 4, v0')
        A('v_lshl_add_u32 v1, v2, 4, v1')
    def att_flush():
        xor16('v_add_f32', vL, T)
        xor32('v_add_f32', vL, T)
        A(f'ds_write_b128 v{vXO}, {v4(acc)} offset:{L_XO}')
        A(f'v_mov_b32 v{vML}, v{vL}')
        A(f'ds_write_b64 v{vXM}, {v2(vM)} offset:{L_XM}')
    def wo_srd():
        A(f's_lshl_b32 s{sT1}, s{sG}, 1')
        A(f's_and_b32 s{sT2}, s{sR}, 1')
        A(f's_add_u32 s{sT1}, s{sT1}, s{sT2}')
        A(f's_mul_i32 s{sT1}, s{sT1}, {64*1152}')
        mk_srd(rA, sWO, sT1, 64*1152)

    A(f'{KNAME}:')
    A('s_cmp_ge_u32 s2, 256')
    A('s_cbranch_scc1 L_end')
    A('s_load_dwordx16 s[4:19], s[0:1], 0')
    A('s_load_dwordx8 s[20:27], s[0:1], 64')
    if codepf:
        A(f's_getpc_b64 s[{sP}:{sP+1}]')
        A('v_lshlrev_b32 v1, 4, v0')
        A('v_add_u32 v2, 5120, v1')
        A('v_add_u32 v3, 10240, v1')
        A(f'global_load_dwordx4 v[192:195], v1, s[{sP}:{sP+1}]')
        A(f'global_load_dwordx4 v[196:199], v2, s[{sP}:{sP+1}]')
        A(f'global_load_dwordx4 v[200:203], v3, s[{sP}:{sP+1}]')
    A('v_lshrrev_b32 v1, 6, v0')
    A('v_and_b32 v0, 63, v0')
    A(f'v_readfirstlane_b32 s{sWave}, v1')
    A(f's_lshr_b32 s{sG}, s2, 3')
    A(f's_and_b32 s{sJ}, s2, 7')
    A(f's_lshr_b32 s{sB}, s2, 7')
    A(f's_and_b32 s{sH}, s{sG}, 15')
    A(f's_sub_u32 s{sR}, s{sJ}, s{sG}')
    A(f's_and_b32 s{sR}, s{sR}, 7')
    A(f's_add_u32 s{sOwn}, s{sR}, 1')
    A(f's_and_b32 s{sOwn}, s{sOwn}, 6')
    A(f's_mov_b32 s{sScale}, {f32(128 ** -0.5)}')
    A(f's_mov_b32 s{sLog2e}, {f32(1.4426950408889634)}')
    A(f's_mov_b32 s{sNLog2e}, {f32(-1.4426950408889634)}')
    A(f's_mov_b32 s{sSpin}, 0x40000')
    A(f's_mov_b32 s{sHi}, 0')
    A(f's_mov_b32 s{sHi+1}, -1')
    A(f's_mov_b32 s{sLo8}, 0x00ff00ff')
    A(f's_mov_b32 s{sLo8+1}, 0x00ff00ff')
    if stamps:
        for i in range(10): A(f's_mov_b32 s{sSt+2+i}, 0')
    A('v_and_b32 v1, 1, v0')
    A('v_lshlrev_b32 v1, 4, v1')
    A('v_mov_b32 v2, 0xffff')
    A('v_lshlrev_b32 v1, v1, v2')
    A('v_bfe_u32 v2, v0, 1, 2')
    for w in range(4):
        A(f'v_cmp_eq_u32 vcc, {w}, v2')
        A(f'v_cndmask_b32 v{4+w}, 0, v1, vcc')
    A(f's_cmp_eq_u32 s{sWave}, 0')
    A('s_cbranch_scc1 L_side')

    A(f's_sub_u32 s{sA}, s{sWave}, 1')
    A(f's_lshl_b32 s{sXoff}, s{sR}, 2')
    A(f's_cmp_eq_u32 s{sR}, 7')
    A(f's_cselect_b32 s{sXoff}, 2, s{sXoff}')
    A(f's_add_u32 s{sXoff}, s{sXoff}, {XBASE}')
    A(f's_lshl_b32 s{sXoff}, s{sXoff}, 2')
    A(f's_add_u32 s{sXoff}, s{sXoff}, s{sA}')
    A(f's_lshl_b32 s{sXoff}, s{sXoff}, 12')
    A(f'v_and_b32 v{vKoff}, 15, v0')
    A(f'v_lshlrev_b32 v{vKoff}, 6, v{vKoff}')
    A('v_lshrrev_b32 v1, 4, v0')
    A(f'v_lshl_add_u32 v{vKoff}, v1, 4, v{vKoff}')
    A(f'v_lshlrev_b32 v{vVoff}, 4, v0')
    A(f's_lshl_b32 s{sT0}, s{sA}, 13')
    A(f's_add_u32 s{sT0}, s{sT0}, {L_KV}')
    A(f's_cmp_eq_u32 s{sOwn}, 0')
    A(f's_cselect_b32 s{sCnt}, 2, 4')
    A(f's_lshl_b32 s{sT1}, s{sG}, 23')
    A('s_waitcnt lgkmcnt(0)')
    mk_srd(rK, sK, sT1, 1 << 23)
    mk_srd(rV, sV, sT1, 1 << 23)
    mk_srd(rWS, sWSP, None, WS_SIZE)
    stamp(0)
    def ld(slot, n):
        if n < 4:
            A(f'buffer_load_dwordx4 {v4(slotK[slot]+4*n)}, v{vKoff}, {srd(rK)}, s{sOff} offen offset:{n*1024} {kvflags}')
        else:
            A(f'buffer_load_dwordx4 {v4(slotV[slot]+4*(n-4))}, v{vVoff}, {srd(rV)}, s{sOff} offen offset:{(n-4)*1024} {kvflags}')
    A('s_barrier')
    A('L_pro_loop:')
    A(f's_mov_b32 m0, s{sT0}')
    for n in range(4):
        A(f's_waitcnt vmcnt({Wp-1})')
        A(f'buffer_load_dwordx4 v{vKoff}, {srd(rK)}, s{sXoff} offen offset:{n*1024} {kvflags} lds')
    A(f's_add_u32 m0, s{sT0}, 4096')
    for n in range(4):
        A(f's_waitcnt vmcnt({Wp-1})')
        A(f'buffer_load_dwordx4 v{vVoff}, {srd(rV)}, s{sXoff} offen offset:{n*1024} {kvflags} lds')
    A(f's_add_u32 s{sT0}, s{sT0}, 32768')
    A(f's_add_u32 s{sXoff}, s{sXoff}, 16384')
    A(f's_sub_u32 s{sCnt}, s{sCnt}, 1')
    A(f's_cmp_lg_u32 s{sCnt}, 0')
    A('s_cbranch_scc1 L_pro_loop')
    A(f's_cmp_eq_u32 s{sOwn}, 0')
    A('s_cbranch_scc1 L_pro_owner')
    A('L_pro_join:')
    A(f's_lshl_b32 s{sOff}, s{sJ}, 2')
    A(f's_add_u32 s{sOff}, s{sOff}, s{sA}')
    A(f's_lshl_b32 s{sOff}, s{sOff}, 12')
    for n in range(8):
        A(f's_waitcnt vmcnt({Wp-1})')
        ld(0, n)
    A(f's_add_u32 s{sOff}, s{sOff}, {32*4096}')
    A(f's_lshl_b32 s{sAoff}, s{sA}, 12')
    A(f's_sub_u32 s{sAoff}, s{sAoff}, 1')
    att_init()
    A(f's_lshl_b32 s{sT1}, s{sH}, 2')
    A(f's_add_u32 s{sT1}, s{sT1}, s{sB}')
    A(f's_lshl_b32 s{sT1}, s{sT1}, 3')
    A(f's_add_u32 s{sT1}, s{sT1}, s{sJ}')
    A(f's_lshl_b32 s{sAP}, s{sT1}, 9')
    A(f's_add_u32 s{sAP}, s{sAP}, {WS_AP}')
    A(f's_lshl_b32 s{sAML}, s2, 7')
    A(f's_add_u32 s{sAML}, s{sAML}, {WS_AML}')
    A(f'v_mov_b32 v{vTQ}, 8')
    A(f'v_mov_b32 v{vTK}, 0')
    A(f's_lshl_b32 s{sT1}, s{sA}, 2')
    A(f'v_mov_b32 v{vPG}, s{sT1}')
    stamp(6)
    A('s_barrier')
    A(f'ds_read_b128 {v4(vQ)}, v1 offset:{L_Q}')
    A(f'ds_read_b32 v{vTK}, v{vTK} offset:{L_TAG}')
    A('v_lshrrev_b32 v1, 5, v0')
    A('v_lshlrev_b32 v1, 3, v1')
    A('s_waitcnt lgkmcnt(0)')
    A(f'v_readfirstlane_b32 s{sT1}, v{vTK}')
    mk_tags(sT1)
    stamp(1)
    A('L_loop:')
    done = []
    for k in range(8):
        done.append(max(8 + k - W[k], done[-1] if done else -99))
    kq = min(k for k in range(8) if done[k] >= 3)
    kv = min(k for k in range(8) if done[k] >= 7)
    for s in range(2):
        o = 1 - s
        qk, red, scale, expo, masks, pv = att_parts(s, str(s))
        sched = {k: [] for k in range(8)}
        sched[kq].append(qk)
        for i, c in enumerate([red, scale, expo, masks]):
            sched[min(kq + 1 + min(i, 2), kv)].append(c)
        sched[kv].append(pv)
        for k in range(8):
            A(f's_waitcnt vmcnt({W[k]-1})')
            ld(o, k)
            if k == pgpos: A(f'ds_write_b32 v{vPG}, v{vTQ} offset:{L_PG}')
            if k == rdpos: A(f'ds_read_b32 v{vTK}, v{vTQ} offset:{L_TQ}')
            for c in sched[k]: c()
            if k == kv:
                A(f's_cmp_ge_u32 s{sOff}, s{rK+2}')
                A('s_cbranch_scc1 L_loop_done')
        A(f'L_tk{s}:')
        A('s_waitcnt lgkmcnt(0)')
        A(f'v_readfirstlane_b32 s{sOff}, v{vTK}')
        A(f's_cmp_eq_u32 s{sOff}, 0')
        A(f's_cbranch_scc1 L_tkw{s}')
        A(f'v_add_u32 v{vTQ}, 4, v{vTQ}')
        A(f's_add_u32 s{sOff}, s{sOff}, s{sAoff}')
    A('s_branch L_loop')
    for s in range(2):
        A(f'L_tkw{s}:')
        A(f's_sub_u32 s{sSpin}, s{sSpin}, 1')
        A(f's_cmp_le_i32 s{sSpin}, 0')
        A('s_cbranch_scc1 L_loop_done')
        A(f'ds_read_b32 v{vTK}, v{vTQ} offset:{L_TQ}')
        A(f's_branch L_tk{s}')
    resc('0'); resc('1')
    A('L_loop_done:')
    stamp(2)
    att_flush()
    A('s_waitcnt lgkmcnt(0)')
    A('s_barrier')
    A(f's_cmp_lg_u32 s{sA}, 0')
    A('s_cbranch_scc1 L_att_nopub')
    for a in range(5): A(f'ds_read_b64 {v2(44+2*a)}, v1 offset:{L_XM + a*16}')
    for a in range(5): A(f'ds_read_b128 {v4(24+4*a)}, v{vVoff} offset:{L_XO + a*1024}')
    A('v_lshlrev_b32 v60, 10, v1')
    A(f'v_and_b32 v61, 0x1f0, v{vVoff}')
    A('v_add_u32 v60, v60, v61')
    A('s_waitcnt lgkmcnt(5)')
    A('v_max3_f32 v56, v44, v46, v48')
    A('v_max3_f32 v56, v56, v50, v52')
    for a in range(5): A(f'v_sub_f32 v{44+2*a}, v{44+2*a}, v56')
    for a in range(5): A(f'v_mul_f32 v{44+2*a}, s{sLog2e}, v{44+2*a}')
    for a in range(5): A(f'v_exp_f32 v{44+2*a}, v{44+2*a}')
    A('s_waitcnt lgkmcnt(0)')
    for r in range(4): A(f'v_mul_f32 v{24+r}, v{24+r}, v44')
    A('v_mul_f32 v57, v45, v44')
    for a in range(1, 5):
        for r in range(4): A(f'v_fmac_f32 v{24+r}, v{24+4*a+r}, v{44+2*a}')
        A(f'v_fmac_f32 v57, v{45+2*a}, v{44+2*a}')
    publish(24, 60, sAP)
    A('v_mov_b32 v58, v56')
    A('v_mov_b32 v59, v57')
    A('v_permlane32_swap_b32 v56, v58')
    A('v_permlane32_swap_b32 v57, v59')
    tagq(56, 56)
    A('s_mov_b64 exec, 0xff')
    A(f'buffer_store_dwordx4 v[56:59], v{vVoff}, {srd(rWS)}, s{sAML} offen sc1')
    A('s_mov_b64 exec, -1')
    A('L_att_nopub:')
    stamp(3)
    A(f's_cmp_lg_u32 s{sOwn}, 0')
    A(f's_cbranch_scc1 {LEND}')
    A(f's_lshr_b32 s{sT1}, s{sA}, 1')
    A(f's_lshl_b32 s{sT2}, s{sG}, 1')
    A(f's_add_u32 s{sT2}, s{sT2}, s{sT1}')
    A(f's_lshl_b32 s{sOff}, s{sT2}, 12')
    A(f's_and_b32 s{sCnt}, s{sA}, 1')
    A(f's_and_b32 s{sT0}, s{sR}, 1')
    A(f's_lshl_b32 s{sF0}, s{sT0}, 1')
    A(f's_add_u32 s{sF0}, s{sF0}, s{sCnt}')
    A(f's_lshl_b32 s{sF0}, s{sF0}, 7')
    A(f's_add_u32 s{sOff}, s{sOff}, s{sF0}')
    A(f's_add_u32 s{sOff}, s{sOff}, {WS_AP}')
    A(f's_lshl_b32 s{sT2}, s{sT1}, 4')
    A(f's_lshr_b32 s{sF0}, s{sG}, 1')
    A(f's_add_u32 s{sT2}, s{sT2}, s{sF0}')
    A(f's_lshl_b32 s{sT2}, s{sT2}, 10')
    A(f's_and_b32 s{sF0}, s{sG}, 1')
    A(f's_cselect_b32 s{sAP}, s{sTg+2}, s{sTg}')
    A(f's_cselect_b32 s{sAML}, s{sTg+3}, s{sTg+1}')
    A(f's_lshl_b32 s{sF0}, s{sF0}, 3')
    A(f's_add_u32 s{sT2}, s{sT2}, s{sF0}')
    A(f's_add_u32 s{sT2}, s{sT2}, {WS_AML}')
    A('v_lshrrev_b32 v8, 3, v0')
    A('v_lshlrev_b32 v10, 7, v8')
    A('v_lshlrev_b32 v8, 9, v8')
    A('v_and_b32 v3, 7, v0')
    A('v_lshl_add_u32 v8, v3, 4, v8')
    A('v_lshrrev_b32 v11, 4, v0')
    A('v_lshlrev_b32 v11, 8, v11')
    A('v_lshl_add_u32 v11, v3, 2, v11')
    A(f's_lshl_b32 s{sT1}, s{sT1}, 7')
    A(f's_lshl_b32 s{sCnt}, s{sCnt}, 5')
    A(f's_add_u32 s{sT1}, s{sT1}, s{sCnt}')
    A(f'v_add_u32 v11, s{sT1}, v11')
    pub_off(13, 64)
    A(f's_mul_i32 s{sT1}, s{sA}, {4*64*128}')
    A(f's_lshl_b32 s{sF0}, s{sG}, 1')
    A(f's_add_u32 s{sF0}, s{sF0}, s{sT0}')
    A(f's_lshl_b32 s{sF0}, s{sF0}, 7')
    A(f's_add_u32 s{sT1}, s{sT1}, s{sF0}')
    A(f's_add_u32 s{sT1}, s{sT1}, {WS_SP}')
    for r in range(4): A(f'v_mov_b32 v{acc+r}, 0')
    A('L_own_poll:')
    A(f'buffer_load_dwordx2 v[28:29], v10, {srd(rWS)}, s{sT2} offen sc1')
    A(f'buffer_load_dwordx4 v[24:27], v8, {srd(rWS)}, s{sOff} offen sc1')
    A('s_waitcnt vmcnt(0)')
    check_tags(quads(24, 1) + [(28, sAP), (29, sAML)], 30, 31, 'L_own_poll', 'L_own')
    stamp(4)
    A(f'v_max_f32_dpp v30, v28, v28 row_ror:8 {DPP}')
    xor16('v_max_f32', 30, 31)
    xor32('v_max_f32', 30, 31)
    A('v_sub_f32 v28, v28, v30')
    A(f'v_mul_f32 v28, s{sLog2e}, v28')
    A('v_exp_f32 v28, v28')
    A('v_mul_f32 v29, v29, v28')
    for r in range(4): A(f'v_mul_f32 v{24+r}, v{24+r}, v28')
    A(f'v_add_f32_dpp v29, v29, v29 row_ror:8 {DPP}')
    A('v_permlane32_swap_b32 v24, v26')
    A('v_permlane32_swap_b32 v25, v27')
    A('v_mov_b32 v31, v29')
    A('v_add_f32 v24, v24, v26')
    A('v_add_f32 v25, v25, v27')
    A('v_permlane16_swap_b32 v29, v31')
    A('v_add_f32 v29, v29, v31')
    A('v_permlane16_swap_b32 v24, v25')
    A('v_mov_b32 v31, v29')
    A('v_add_f32 v24, v24, v25')
    A('v_permlane32_swap_b32 v29, v31')
    A('v_add_f32 v29, v29, v31')
    A(f'v_add_f32_dpp v24, v24, v24 row_ror:8 {DPP}')
    A('v_rcp_f32 v29, v29')
    A('v_mul_f32 v24, v24, v29')
    A('v_cvt_pk_bf16_f32 v24, v24, v24')
    A(f'ds_write_b32 v11, v24 offset:{L_T2}')
    A('s_waitcnt lgkmcnt(0)')
    A('s_barrier')
    for q in range(4): A(f'ds_read_b128 {v4(24+4*q)}, v10 offset:{L_T2 + q*16}')
    for t in range(16):
        if t % 4 == 0: A(f's_waitcnt lgkmcnt({3 - t//4})')
        mkA(40 + 4*(t & 3), 24 + t)
        if t >= 1:
            A(f'v_mfma_f32_16x16x32_bf16 {v4(acc)}, {v4(40 + 4*((t-1)&3))}, {v4(WOR+4*(t-1))}, {v4(acc)}')
    A(f'v_mfma_f32_16x16x32_bf16 {v4(acc)}, {v4(40 + 4*3)}, {v4(WOR+4*15)}, {v4(acc)}')
    publish(acc, 13, sT1)
    stamp(5)
    endpgm()
    A('L_pro_owner:')
    wo_srd()
    off4(1, 1152)
    A(f's_lshl_b32 s{sOff}, s{sA}, 8')
    for t in range(16):
        A(f's_waitcnt vmcnt({Wp-1})')
        A(f'buffer_load_dwordx4 {v4(WOR+4*t)}, v1, {srd(rA)}, s{sOff} offen {wflags}')
        if t < 15: A(f's_add_u32 s{sOff}, s{sOff}, {4*1152}')
    A('s_branch L_pro_join')

    A('L_side:')
    A('s_setprio 3')
    XR = 24
    XF = 136
    WQ = 64
    A(f's_mov_b32 s{sA}, 4')
    A('v_lshrrev_b32 v1, 5, v0')
    A('v_mul_u32_u24 v1, 1152, v1')
    A('v_and_b32 v2, 31, v0')
    A('v_lshl_add_u32 v1, v2, 2, v1')
    off8(3, 8192)
    A(f's_lshl_b32 s{sT0}, s{sB}, 3')
    A(f's_add_u32 s{sT0}, s{sT0}, s{sJ}')
    A(f's_lshr_b32 s{sT1}, s{sT0}, 2')
    A(f's_and_b32 s{sT0}, s{sT0}, 3')
    A(f's_mul_i32 s{sT2}, s{sT1}, {144*8192}')
    A(f's_lshl_b32 s{sOff}, s{sH}, 9')
    A(f's_add_u32 s{sT2}, s{sT2}, s{sOff}')
    A(f's_lshl_b32 s{sOff}, s{sT0}, 7')
    A(f's_add_u32 s{sT2}, s{sT2}, s{sOff}')
    A(f's_mul_i32 s{sXoff}, s{sG}, {CNT_STRIDE}')
    A(f's_add_u32 s{sXoff}, s{sXoff}, {WS_CNT}')
    A(f's_cmp_eq_u32 s{sJ}, 0')
    A(f's_cselect_b32 s{sCnt}, s{sXoff}, {WS_SIZE}')
    A('v_mov_b32 v35, 0')
    A('s_waitcnt lgkmcnt(0)')
    mk_srd(rWS, sWSP, None, WS_SIZE)
    A(f'buffer_store_dword v35, off, {srd(rWS)}, s{sCnt} sc1')
    mk_srd(rB, sX, None, 2304)
    for n in range(9): A(f'buffer_load_dword v{XR+n}, v1, {srd(rB)}, 0 offen offset:{n*128}')
    A(f'buffer_load_dword v33, off, {srd(rWS)}, 0 sc1')
    mk_srd(rA, sWQ, sT2, f's_sub_u32 s{rA+2}, {576*8192}, s{sT2}')
    A(f's_mov_b32 s{sOff}, 0')
    for u in range(18):
        A(f'buffer_load_dwordx4 {v4(WQ+4*u)}, v3, {srd(rA)}, s{sOff} offen {wflags}')
        if u < 17: A(f's_add_u32 s{sOff}, s{sOff}, 65536')
    A('s_barrier')
    stamp(0)
    mk_srd(rO, sOUT, None, 2304)
    A('v_lshlrev_b32 v1, 2, v0')
    A(f's_lshl_b32 s{sCnt}, s{sJ}, 14')
    A(f's_add_u32 s{sCnt}, s{sCnt}, 1')
    A(f'v_lshl_add_u32 v2, v0, 17, s{sCnt}')
    A(f'v_cmp_gt_u32 vcc, {NC}, v0')
    A('v_cndmask_b32 v2, 0, v2, vcc')
    A(f'ds_write_b32 v1, v35 offset:{L_PG}')
    A(f'ds_write_b32 v1, v2 offset:{L_TQ}')
    A(f'ds_write_b32 v1, v35 offset:{L_TQ + 256}')
    A(f'ds_write_b32 v1, v35 offset:{L_TQ + 512}')
    A('v_and_b32 v1, 1, v0')
    A('v_lshlrev_b32 v1, 2, v1')
    A('v_lshrrev_b32 v2, 5, v0')
    A('v_add_u32 v1, v1, v2')
    A('v_mul_u32_u24 v1, 576, v1')
    A('v_bfe_u32 v2, v0, 1, 4')
    A('v_lshl_add_u32 v1, v2, 2, v1')
    A('v_lshrrev_b32 v3, 3, v0')
    A('v_mul_u32_u24 v3, 576, v3')
    A(f's_mul_i32 s{sT2}, s{sT1}, 144')
    A(f'v_add_u32 v3, s{sT2}, v3')
    A('v_lshrrev_b32 v34, 5, v0')
    A('v_lshlrev_b32 v34, 12, v34')
    A('v_and_b32 v2, 7, v0')
    A('v_lshl_add_u32 v34, v2, 5, v34')
    A('v_and_b32 v2, 16, v0')
    A('v_add_u32 v34, v34, v2')
    A(f's_lshl_b32 s{sT2}, s{sH}, 13')
    A(f's_lshl_b32 s{sT1}, s{sT1}, 10')
    A(f's_add_u32 s{sT2}, s{sT2}, s{sT1}')
    A(f's_lshl_b32 s{sT0}, s{sT0}, 8')
    A(f's_add_u32 s{sT2}, s{sT2}, s{sT0}')
    A(f's_add_u32 s{sT2}, s{sT2}, {WS_QP}')
    A('s_waitcnt vmcnt(18)')
    stamp(1)
    A(f'v_readfirstlane_b32 s{sT0}, v33')
    A(f'ds_write_b32 v35, v33 offset:{L_TAG}')
    for n in range(9):
        A(f'v_lshlrev_b32 v{XF+2*n}, 16, v{XR+n}')
        A(f'v_and_b32 v{XF+2*n+1}, 0xffff0000, v{XR+n}')
    mk_tags(sT0)
    A(f'v_add_f32 v8, v{XF}, v{XF+1}')
    A(f'v_add_f32 v9, v{XF+2}, v{XF+3}')
    for i in range(4, 18, 2):
        A(f'v_add_f32 v8, v8, v{XF+i}')
        A(f'v_add_f32 v9, v9, v{XF+i+1}')
    A('v_add_f32 v8, v8, v9')
    row_sum16(8)
    xor16('v_add_f32', 8, 9)
    A(f'v_mul_f32 v8, {f32(1/576)}, v8')
    A(f'v_sub_f32 v12, v{XF}, v8')
    A(f'v_sub_f32 v13, v{XF+1}, v8')
    A('v_mul_f32 v10, v12, v12')
    A('v_mul_f32 v11, v13, v13')
    for i in range(2, 18, 2):
        A(f'v_sub_f32 v12, v{XF+i}, v8')
        A(f'v_sub_f32 v13, v{XF+i+1}, v8')
        A('v_fmac_f32 v10, v12, v12')
        A('v_fmac_f32 v11, v13, v13')
    A('v_add_f32 v10, v10, v11')
    row_sum16(10)
    xor16('v_add_f32', 10, 9)
    A(f'v_mul_f32 v10, {f32(1/576)}, v10')
    rnd_bf16(8, 8)
    rnd_bf16(10, 10)
    A(f'v_add_f32 v10, {f32(1e-5)}, v10')
    rnd_bf16(10, 10)
    A('v_sqrt_f32 v10, v10')
    rnd_bf16(10, 10)
    A('v_rcp_f32 v10, v10')
    for n in range(9):
        a, b = XF + 2*n, XF + 2*n + 1
        A(f'v_sub_f32 v{a}, v{a}, v8')
        A(f'v_sub_f32 v{b}, v{b}, v8')
        A(f'v_cvt_pk_bf16_f32 v{b}, v{a}, v{b}')
        A(f'v_lshlrev_b32 v{a}, 16, v{b}')
        A(f'v_and_b32 v{b}, 0xffff0000, v{b}')
        A(f'v_mul_f32 v{a}, v{a}, v10')
        A(f'v_mul_f32 v{b}, v{b}, v10')
        A(f'v_cvt_pk_bf16_f32 v{a}, v{a}, v{a}')
        A(f'v_cvt_pk_bf16_f32 v{b}, v{b}, v{b}')
        A(f'ds_write_b32 v1, v{a} offset:{L_T + n*64}')
        A(f'ds_write_b32 v1, v{b} offset:{L_T + 1152 + n*64}')
    A('s_waitcnt lgkmcnt(0)')
    for q in range(9): A(f'ds_read_b128 {v4(XF+4*q)}, v3 offset:{L_T + q*16}')
    for r in range(8): A(f'v_mov_b32 v{8+r}, 0')
    def qmf(u):
        b0 = 40 + 8*(u & 1)
        A(f'v_mfma_f32_16x16x32_bf16 v[8:11], {v4(b0)}, {v4(WQ+4*u)}, v[8:11]')
        A(f'v_mfma_f32_16x16x32_bf16 v[12:15], {v4(b0+4)}, {v4(WQ+4*u)}, v[12:15]')
    for u in range(18):
        if u % 2 == 0: A(f's_waitcnt lgkmcnt({8 - u//2})')
        b0 = 40 + 8*(u & 1)
        mkA(b0, XF + 2*u)
        mkA(b0 + 4, XF + 2*u + 1)
        if u >= 1:
            if (u - 1) % 6 == 0: A(f's_waitcnt vmcnt({12 - (u-1)})')
            qmf(u - 1)
    qmf(17)
    for r in range(4):
        A(f'v_add_f32_dpp v{8+r}, v{12+r}, v{8+r} row_ror:8 {DPP}')
    publish(8, 34, sT2, sLo8)
    stamp(2)
    A(f's_lshl_b32 s{sT2}, s{sH}, 1')
    A(f's_add_u32 s{sT2}, s{sT2}, s{sB}')
    A(f's_lshl_b32 s{sT2}, s{sT2}, 12')
    A(f's_add_u32 s{sT2}, s{sT2}, {WS_QP}')
    A('v_lshlrev_b32 v1, 4, v0')
    A('v_lshlrev_b32 v3, 3, v0')
    if qsleep:
        A('s_waitcnt vmcnt(0)')
        A(f's_sleep {qsleep}')
    A('L_q_poll:')
    if qsleep2: A(f's_sleep {qsleep2}')
    for i in range(4):
        A(f'buffer_load_dwordx4 {v4(64+4*i)}, v1, {srd(rWS)}, s{sT2} offen offset:{i*1024} sc1')
    A('s_waitcnt vmcnt(0)')
    check_tags(quads(64, 4), 8, 9, 'L_q_poll', 'L_q')
    for i in range(16): A(f'v_and_b32 v{64+i}, -16, v{64+i}')
    for r in range(4):
        A(f'v_add_f32 v{64+r}, v{64+r}, v{68+r}')
        A(f'v_add_f32 v{72+r}, v{72+r}, v{76+r}')
    for r in range(4): A(f'v_add_f32 v{64+r}, v{64+r}, v{72+r}')
    A('v_cvt_pk_bf16_f32 v8, v64, v65')
    A('v_cvt_pk_bf16_f32 v9, v66, v67')
    A(f'ds_write_b64 v3, v[8:9] offset:{L_Q}')
    A('s_waitcnt lgkmcnt(0)')
    stamp(3)
    A('s_barrier')
    A('s_setprio 0')
    att_init()
    A(f'ds_read_b128 {v4(vQ)}, v1 offset:{L_Q}')
    A(f'v_lshlrev_b32 v1, 4, v0')
    A(f'v_add_u32 v1, {L_KV}, v1')
    A(f's_cmp_eq_u32 s{sOwn}, 0')
    A(f's_cselect_b32 s{sCnt}, 8, 16')
    A('L_cu_loop:')
    for n in range(8): A(f'ds_read_b128 {v4(slotK[0]+4*n)}, v1 offset:{n*1024}')
    A('v_add_u32 v1, 8192, v1')
    A('s_waitcnt lgkmcnt(0)')
    for c in att_parts(0, 'C'): c()
    A(f's_sub_u32 s{sCnt}, s{sCnt}, 1')
    A(f's_cmp_lg_u32 s{sCnt}, 0')
    A('s_cbranch_scc1 L_cu_loop')
    att_flush()
    A('s_waitcnt lgkmcnt(0)')
    stamp(7)
    sRole = sAP
    A(f's_mov_b32 s{sRole}, 3')
    A(f's_cmp_eq_u32 s{sOwn}, 0')
    A('s_cbranch_scc1 L_side_owner')
    A(f's_cmp_le_u32 s{sR}, 3')
    A(f's_cselect_b32 s{sRole}, 1, 2')
    A(f's_cselect_b32 s{sT1}, 1, 4')
    A(f's_sub_u32 s{sT1}, s{sR}, s{sT1}')
    A(f's_lshl_b32 s{sT0}, s{sG}, 1')
    A(f's_add_u32 s{sT0}, s{sT0}, s{sT1}')
    A(f's_cmp_lg_u32 s{sT1}, 2')
    A('s_cbranch_scc1 L_role_set')
    A(f's_lshr_b32 s{sT0}, s{sG}, 2')
    A(f's_add_u32 s{sT0}, s{sT0}, 64')
    A(f's_and_b32 s{sT1}, s{sG}, 3')
    A(f's_cselect_b32 s{sRole}, 0, s{sRole}')
    A('L_role_set:')
    A(f's_cmp_lg_u32 s{sRole}, 1')
    A('s_cbranch_scc1 L_agent')
    A(f's_lshl_b32 s{sT1}, s{sT0}, 7')
    mk_srd(rA, sWG, sT1, f's_sub_u32 s{rA+2}, {576*9216}, s{sT1}')
    mk_srd(rB, sWU, sT1, f's_sub_u32 s{rB+2}, {576*9216}, s{sT1}')
    off8(3, 9216)
    GB = [64, 80]
    def ffn_ld(buf):
        A(f'buffer_load_dwordx4 {v4(GB[buf])}, v3, {srd(rA)}, s{sOff} offen {wflags}')
        A(f'buffer_load_dwordx4 {v4(GB[buf]+4)}, v3, {srd(rB)}, s{sOff} offen {wflags}')
        A(f's_add_u32 s{sOff}, s{sOff}, {8*9216}')
        A(f'buffer_load_dwordx4 {v4(GB[buf]+8)}, v3, {srd(rA)}, s{sOff} offen {wflags}')
        A(f'buffer_load_dwordx4 {v4(GB[buf]+12)}, v3, {srd(rB)}, s{sOff} offen {wflags}')
        A(f's_add_u32 s{sOff}, s{sOff}, {8*9216}')
    A(f's_mov_b32 s{sOff}, 0')
    ffn_ld(0)
    FA = 24
    for r in range(16): A(f'v_mov_b32 v{FA+r}, 0')
    A('v_lshrrev_b32 v1, 3, v0')
    A('v_mul_u32_u24 v1, 576, v1')
    A(f's_mov_b32 s{sCnt}, 18')
    A('L_ffn_loop:')
    for buf in range(2):
        ffn_ld(1 - buf)
        A(f'ds_read_b128 v[8:11], v1 offset:{L_T + buf*16}')
        A('s_waitcnt vmcnt(4) lgkmcnt(0)')
        for uu in range(2):
            mkA(56, 8 + 2*uu)
            mkA(60, 9 + 2*uu)
            g = GB[buf] + 8*uu
            A(f'v_mfma_f32_16x16x32_bf16 {v4(FA)}, v[56:59], {v4(g)}, {v4(FA)}')
            A(f'v_mfma_f32_16x16x32_bf16 {v4(FA+4)}, v[60:63], {v4(g)}, {v4(FA+4)}')
            A(f'v_mfma_f32_16x16x32_bf16 {v4(FA+8)}, v[56:59], {v4(g+4)}, {v4(FA+8)}')
            A(f'v_mfma_f32_16x16x32_bf16 {v4(FA+12)}, v[60:63], {v4(g+4)}, {v4(FA+12)}')
    A('v_add_u32 v1, 32, v1')
    A(f's_sub_u32 s{sCnt}, s{sCnt}, 1')
    A(f's_cmp_lg_u32 s{sCnt}, 0')
    A('s_cbranch_scc1 L_ffn_loop')
    A(f's_mul_i32 s{sT1}, s{sT0}, {64*1152}')
    mk_srd(rA, sWD, sT1, 64*1152)
    off8(3, 1152)
    A('v_add_u32 v3, 1024, v3')
    off4(19, 1152)
    DB = [64, 100]
    def dn_ld(buf):
        for cb in range(4):
            A(f'buffer_load_dwordx4 {v4(DB[buf]+4*cb)}, v19, {srd(rA)}, s{sOff} offen offset:{cb*256} {wflags}')
        A(f'buffer_load_dwordx4 {v4(DB[buf]+32)}, v3, {srd(rA)}, s{sOff} offen {wflags}')
        A(f's_add_u32 s{sOff}, s{sOff}, {4*1152}')
        for cb in range(4):
            A(f'buffer_load_dwordx4 {v4(DB[buf]+16+4*cb)}, v19, {srd(rA)}, s{sOff} offen offset:{cb*256} {wflags}')
        A(f's_add_u32 s{sOff}, s{sOff}, {4*1152}')
    A('s_waitcnt vmcnt(0)')
    A(f's_mov_b32 s{sOff}, 0')
    dn_ld(0)
    for r in range(4):
        A(f'v_add_f32_dpp v{FA+r}, v{FA+4+r}, v{FA+r} row_ror:8 {DPP}')
        A(f'v_add_f32_dpp v{FA+8+r}, v{FA+12+r}, v{FA+8+r} row_ror:8 {DPP}')
    A('v_lshrrev_b32 v1, 5, v0')
    A('v_lshlrev_b32 v1, 7, v1')
    A('v_and_b32 v2, 7, v0')
    A('v_lshl_add_u32 v1, v2, 3, v1')
    A('v_bfe_u32 v2, v0, 4, 1')
    A('v_lshl_add_u32 v1, v2, 2, v1')
    for r in range(4):
        rnd_bf16(FA+r, FA+r)
        rnd_bf16(FA+8+r, FA+8+r)
        silu(FA+r, FA+r, FA+4+r)
        rnd_bf16(FA+r, FA+r)
        A(f'v_mul_f32 v{FA+r}, v{FA+r}, v{FA+8+r}')
        A(f'v_cvt_pk_bf16_f32 v{FA+r}, v{FA+r}, v{FA+r}')
    A(f's_mov_b64 exec, s[{sLo8}:{sLo8+1}]')
    for r in range(4): A(f'ds_write_b32 v1, v{FA+r} offset:{L_T2 + r*256}')
    A('s_mov_b64 exec, -1')
    A('s_waitcnt lgkmcnt(0)')
    A('v_lshrrev_b32 v1, 3, v0')
    A('v_lshlrev_b32 v1, 7, v1')
    for r in range(24): A(f'v_mov_b32 v{FA+r}, 0')
    A(f's_mov_b32 s{sCnt}, 4')
    A('L_dn_loop:')
    A(f'ds_read_b128 v[8:11], v1 offset:{L_T2}')
    for buf in range(2):
        dn_ld(1 - buf)
        A('s_waitcnt vmcnt(9) lgkmcnt(0)')
        mkA(56, 8 + 2*buf)
        mkA(60, 9 + 2*buf)
        for cb in range(4):
            A(f'v_mfma_f32_16x16x32_bf16 {v4(FA+4*cb)}, v[56:59], {v4(DB[buf]+4*cb)}, {v4(FA+4*cb)}')
        A(f'v_mfma_f32_16x16x32_bf16 {v4(FA+16)}, v[56:59], {v4(DB[buf]+32)}, {v4(FA+16)}')
        for cb in range(4):
            A(f'v_mfma_f32_16x16x32_bf16 {v4(FA+4*cb)}, v[60:63], {v4(DB[buf]+16+4*cb)}, {v4(FA+4*cb)}')
        A(f'v_mfma_f32_16x16x32_bf16 {v4(FA+20)}, v[60:63], {v4(DB[buf]+32)}, {v4(FA+20)}')
    A('v_add_u32 v1, 16, v1')
    A(f's_sub_u32 s{sCnt}, s{sCnt}, 1')
    A(f's_cmp_lg_u32 s{sCnt}, 0')
    A('s_cbranch_scc1 L_dn_loop')
    pub_off(18, 72)
    for r in range(4):
        A(f'v_add_f32_dpp v{FA+16+r}, v{FA+20+r}, v{FA+16+r} row_ror:8 {DPP}')
    for cb in range(5): tagq(FA + 4*cb, FA + 4*cb)
    A('s_branch L_agent')
    A('L_side_owner:')
    wo_srd()
    off8(3, 1152)
    A(f's_mov_b32 s{sOff}, 1024')
    for u in range(8):
        A(f'buffer_load_dwordx4 {v4(WOR+4*u)}, v3, {srd(rA)}, s{sOff} offen {wflags}')
        if u < 7: A(f's_add_u32 s{sOff}, s{sOff}, {8*1152}')
    A('L_agent:')
    stamp(4)
    A('v_mov_b32 v1, 0')
    A(f's_mov_b32 s{sCnt}, {NC*4}')
    A('L_ag_wait:')
    A('s_sleep 2')
    A(f'ds_read_b128 v[8:11], v1 offset:{L_PG}')
    A(f's_sub_u32 s{sT1}, s{sCnt}, {4*lead}')
    A('s_waitcnt lgkmcnt(0)')
    A('v_max3_u32 v8, v8, v9, v10')
    A('v_max_u32 v8, v8, v11')
    A(f'v_cmp_gt_u32 vcc, s{sT1}, v8')
    spin_check('L_ag_wait', 'L_ag')
    A('v_mov_b32 v8, 1')
    A('s_mov_b64 exec, 1')
    A(f'buffer_atomic_add v8, off, {srd(rWS)}, s{sXoff} sc0')
    A('s_mov_b64 exec, -1')
    A(f'v_mov_b32 v9, s{sCnt}')
    A('s_waitcnt vmcnt(0)')
    A(f'v_readfirstlane_b32 s{sT1}, v8')
    A(f's_add_u32 s{sCnt}, s{sCnt}, 4')
    A(f's_min_u32 s{sT1}, s{sT1}, {NP}')
    A(f's_add_u32 s{sT2}, s{sT1}, {PBASE}')
    A(f's_lshl_b32 s{sT2}, s{sT2}, 14')
    A(f's_add_u32 s{sT2}, s{sT2}, 1')
    A(f'v_mov_b32 v8, s{sT2}')
    A(f'ds_write_b32 v9, v8 offset:{L_TQ}')
    A(f's_cmp_lt_u32 s{sT1}, {NP}')
    A('s_cbranch_scc1 L_ag_wait')
    A('s_waitcnt lgkmcnt(0)')
    stamp(8)
    A(f's_cmp_eq_u32 s{sRole}, 2')
    A('s_cbranch_scc1 L_red')
    A(f's_cmp_eq_u32 s{sRole}, 3')
    A('s_cbranch_scc1 L_side_owner2')
    A(f's_cmp_eq_u32 s{sRole}, 0')
    A(f's_cbranch_scc1 {LEND}')
    A(f's_lshl_b32 s{sT1}, s{sT0}, 7')
    A(f's_add_u32 s{sT1}, s{sT1}, {WS_DP}')
    if 'dpbar' in abl: A('s_barrier')
    for cb in range(5):
        if cb == 4: A(f's_mov_b64 exec, s[{sLo8}:{sLo8+1}]')
        A(f'buffer_store_dwordx4 {v4(FA+4*cb)}, v18, {srd(rWS)}, s{sT1} offen sc1')
        if cb < 4: A(f's_add_u32 s{sT1}, s{sT1}, {4*72*128}')
    A('s_mov_b64 exec, -1')
    endpgm()
    A('L_red:')
    mk_srd(rB, sX, None, 2304)
    A('v_and_b32 v18, 3, v0')
    A('v_lshlrev_b32 v18, 2, v18')
    A('v_lshrrev_b32 v2, 4, v0')
    A('v_add_lshl_u32 v18, v18, v2, 1')
    A(f's_lshl_b32 s{sCnt}, s{sT0}, 5')
    A(f'buffer_load_ushort v19, v18, {srd(rB)}, s{sCnt} offen')
    A(f's_lshr_b32 s{sT1}, s{sT0}, 1')
    A(f's_and_b32 s{sT2}, s{sT0}, 1')
    A(f's_lshl_b32 s{sT2}, s{sT2}, 6')
    A(f's_mul_i32 s{sOff}, s{sT1}, {72*128}')
    A(f's_add_u32 s{sOff}, s{sOff}, s{sT2}')
    A(f's_add_u32 s{sOff}, s{sOff}, {WS_DP}')
    A(f's_lshl_b32 s{sT1}, s{sT1}, 13')
    A(f's_add_u32 s{sT1}, s{sT1}, s{sT2}')
    A(f's_add_u32 s{sT1}, s{sT1}, {WS_SP}')
    A('v_lshrrev_b32 v1, 2, v0')
    A('v_lshlrev_b32 v1, 7, v1')
    A('v_and_b32 v2, 3, v0')
    A('v_lshl_add_u32 v1, v2, 4, v1')
    A('v_add_u32 v2, 4096, v1')
    A('v_and_b32 v3, 0x3ff, v1')
    A('v_add_u32 v3, 8192, v3')
    A('s_barrier')
    A('L_dp_poll:')
    for i in range(5):
        A(f'buffer_load_dwordx4 {v4(64+4*i)}, v{1 + i//2}, {srd(rWS)}, s{sOff} offen offset:{(i&1)*2048} sc1')
    A('s_waitcnt vmcnt(0)')
    check_tags(quads(64, 5), 8, 9, 'L_dp_poll', 'L_dp')
    for r in range(4): A(f'v_cndmask_b32 v{80+r}, v{80+r}, 0, s[{sHi}:{sHi+1}]')
    def sum_red(n):
        for r in range(4):
            A(f'v_add_f32 v{64+r}, v{64+r}, v{68+r}')
            A(f'v_add_f32 v{72+r}, v{72+r}, v{76+r}')
        if n == 5:
            for r in range(4): A(f'v_add_f32 v{64+r}, v{64+r}, v{80+r}')
        for r in range(4): A(f'v_add_f32 v{64+r}, v{64+r}, v{72+r}')
        rscatter4(64)
        A(f'v_add_f32_dpp v64, v64, v64 row_ror:4 {DPP}')
        A(f'v_add_f32_dpp v64, v64, v64 row_ror:8 {DPP}')
    sum_red(5)
    rnd_bf16(24, 64)
    silu(24, 24, 26)
    rnd_bf16(24, 24)
    A('v_lshlrev_b32 v26, 16, v19')
    stamp(5)
    A('L_sp_poll:')
    for i in range(4):
        A(f'buffer_load_dwordx4 {v4(64+4*i)}, v{1 + i//2}, {srd(rWS)}, s{sT1} offen offset:{(i&1)*2048} sc1')
    A('s_waitcnt vmcnt(0)')
    check_tags(quads(64, 4), 8, 9, 'L_sp_poll', 'L_sp')
    stamp(6)
    sum_red(4)
    rnd_bf16(28, 64)
    A('v_mul_f32 v28, v28, v24')
    rnd_bf16(28, 28)
    A('v_add_f32 v28, v28, v26')
    A('v_cvt_pk_bf16_f32 v28, v28, v28')
    A(f's_mov_b32 s{sP}, 0x000f000f')
    A(f's_mov_b32 s{sP+1}, 0x000f000f')
    A(f's_mov_b64 exec, s[{sP}:{sP+1}]')
    A(f'buffer_store_short v28, v18, {srd(rO)}, s{sCnt} offen')
    A(f's_cmp_lg_u32 s{sT0}, 0')
    A(f's_cbranch_scc1 {LEND}')
    A('s_mov_b64 exec, 1')
    A(f'v_mov_b32 v1, s{sTg}')
    A(f'buffer_store_dword v1, off, {srd(rWS)}, 0')
    endpgm()
    resc('C')
    A('L_side_owner2:')
    for r in range(8): A(f'v_mov_b32 v{8+r}, 0')
    A('v_lshrrev_b32 v16, 3, v0')
    A('v_lshlrev_b32 v16, 7, v16')
    pub_off(17, 64)
    A(f's_lshl_b32 s{sT1}, s{sG}, 1')
    A(f's_and_b32 s{sT2}, s{sR}, 1')
    A(f's_add_u32 s{sT1}, s{sT1}, s{sT2}')
    A(f's_lshl_b32 s{sT1}, s{sT1}, 7')
    A(f's_add_u32 s{sT1}, s{sT1}, {WS_SP + 4*4*64*128}')
    A('s_barrier')
    A('s_barrier')
    for q in range(4): A(f'ds_read_b128 {v4(24+4*q)}, v16 offset:{L_T2 + q*16}')
    def omf(t):
        A(f'v_mfma_f32_16x16x32_bf16 {v4(8 + 4*(t&1))}, {v4(40 + 4*(t&3))}, {v4(WOR+4*(t>>1))}, {v4(8 + 4*(t&1))}')
    for t in range(16):
        if t % 4 == 0: A(f's_waitcnt lgkmcnt({3 - t//4})')
        mkA(40 + 4*(t & 3), 24 + t)
        if t >= 1: omf(t - 1)
    omf(15)
    for r in range(4):
        A(f'v_add_f32_dpp v{8+r}, v{12+r}, v{8+r} row_ror:8 {DPP}')
    publish(8, 17, sT1, sLo8)
    if stamps:
        A('L_exit:')
        A('s_mov_b64 exec, 1')
        A(f's_mul_i32 s{sSt}, s2, 5')
        A(f's_add_u32 s{sSt}, s{sSt}, s{sWave}')
        A(f's_lshl_b32 s{sSt}, s{sSt}, 6')
        A(f's_add_u32 s{sSt}, s{sSt}, {WS_ST}')
        for q in range(3):
            for r in range(4):
                i = 4*q + r
                A(f'v_mov_b32 v{204+i}, ' + (f's{sSt+2+i}' if i < 10 else (f'v{vTQ}' if i == 10 else '0')))
            A(f'buffer_store_dwordx4 {v4(204+4*q)}, off, {srd(rWS)}, s{sSt} offset:{16*q}')
    A('L_end:')
    A('s_endpgm')
    A('.fill 1024, 4, 0xbf810000')

    body = A.finish()
    out = HEADER
    out += f'; @launch grid=(256,1,1) block=(320,1,1) lds={LDS_BYTES}\n'
    out += '.amdgcn_target "amdgcn-amd-amdhsa--gfx950"\n.text\n'
    out += f'.globl {KNAME}\n.p2align 8\n.type {KNAME},@function\n'
    out += body
    out += f'''.section .rodata,"a"
.p2align 6
.amdhsa_kernel {KNAME}
  .amdhsa_next_free_vgpr 216
  .amdhsa_next_free_sgpr 96
  .amdhsa_accum_offset 216
  .amdhsa_group_segment_fixed_size 0
  .amdhsa_kernarg_size 96
  .amdhsa_user_sgpr_count 2
  .amdhsa_user_sgpr_kernarg_segment_ptr 1
  .amdhsa_system_sgpr_workgroup_id_x 1
  .amdhsa_float_denorm_mode_32 3
.end_amdhsa_kernel
'''
    return out

if __name__ == '__main__':
    import argparse
    ap = argparse.ArgumentParser()
    ap.add_argument('-o', default='k.s')
    ap.add_argument('-W', default='55555555')
    ap.add_argument('--Wp', type=int, default=6)
    ap.add_argument('--NC', type=int, default=52)
    ap.add_argument('--lead', type=int, default=1)
    ap.add_argument('--pgpos', type=int, default=0)
    ap.add_argument('--rdpos', type=int, default=6)
    ap.add_argument('--stamps', action='store_true')
    ap.add_argument('--nocodepf', action='store_true')
    ap.add_argument('--qsleep', type=int, default=30)
    ap.add_argument('--qsleep2', type=int, default=8)
    ap.add_argument('--abl', default='')
    a = ap.parse_args()
    open(a.o, 'w').write(gen(W=tuple(int(c) for c in a.W), Wp=a.Wp, stamps=a.stamps, codepf=not a.nocodepf,
                             qsleep=a.qsleep, qsleep2=a.qsleep2, abl=a.abl, NC=a.NC, lead=a.lead, pgpos=a.pgpos, rdpos=a.rdpos))
```

```python
import sys, struct
from asmlib import Asm

KNAME = 'recurrent_scan__gqa_block_cached__swiglu_ffn__decode_kernel'
def f32(x): return '0x%08x' % struct.unpack('<I', struct.pack('<f', x))[0]

WS_EPOCH = 0x0
WS_CNT = 0x1000
CNT_STRIDE = 4352
WS_QP = 0x40000
WS_AP = 0x60000
WS_AML = 0xA0000
WS_SP = 0xB0000
WS_DP = 0x100000
WS_ST = 0x200000
WS_SIZE = 0x400000
L_T = 0
L_Q = 4608
L_T2 = 5120
L_XO = 6144
L_XM = 10240
L_TAG = 10304
L_PG = 10320
L_TQ = 10368
L_SC = 11392
L_KV = 27776
LDS_BYTES = L_KV + 131072

HEADER = open('recurrent_scan__gqa_block_cached__swiglu_ffn__decode.s.ref').read().split('; Override launch')[0]

def gen(W=5, Wp=6, stamps=False, kvflags='nt', wflags='nt', NC=49, codepf=True, qsleep=30, qsleep2=8,
        abl='', lead=3, rdpos=2, softpos=0, bar1=True):
    NP = 512 - 8*NC - 56
    assert NC + 8 <= 63 and 2*NC + 8 + 2*NP + 4 <= 256 and 5 <= W <= 8
    XBASE = 8*NC
    PBASE = 8*NC + 56
    A = Asm()
    sX, sK, sV, sWQ, sWO, sWG, sWU, sWD, sOUT, sDBG, sWSP = 4, 6, 8, 10, 12, 16, 18, 20, 22, 24, 26
    rK, rV, rWS, rA, rB, rO = 28, 32, 36, 40, 44, 48
    sWave, sG, sJ, sB, sH, sR, sOwn, sOff, sCnt, sT0, sT1, sT2 = 3, 52, 53, 54, 55, 56, 57, 58, 59, 60, 61, 62
    sScale, sLog2e, sNLog2e, sSpin = 63, 64, 65, 66
    sA = 67
    sHi = 68
    sLo8 = 70
    sF0, sF1 = 72, 73
    sAoff, sXoff = 74, 75
    sTg = 76
    sP = 80
    sAP, sAML = 82, 83
    sSt = 84
    sE = [96, 97, 98]
    sKb, sVb = 4, 6
    rI = rK
    def srd(r): return f's[{r}:{r+3}]'
    def v4(r): return f'v[{r}:{r+3}]'
    def v2(r): return f'v[{r}:{r+1}]'
    def stamp(idx):
        if not stamps: return
        A(f's_memrealtime s[{sSt}:{sSt+1}]')
        A('s_waitcnt lgkmcnt(0)')
        A(f's_mov_b32 s{sSt+2+idx}, s{sSt}')
    def endpgm():
        A('s_branch L_exit' if stamps else 's_endpgm')
    LEND = 'L_exit' if stamps else 'L_end'

    def mk_srd(r, base, off_sgpr, size):
        if off_sgpr is None:
            A(f's_mov_b32 s{r}, s{base}')
            A(f's_mov_b32 s{r+1}, s{base+1}')
        else:
            A(f's_add_u32 s{r}, s{base}, s{off_sgpr}')
            A(f's_addc_u32 s{r+1}, s{base+1}, 0')
        if isinstance(size, int): A(f's_mov_b32 s{r+2}, {size}')
        else: A(size)
        A(f's_mov_b32 s{r+3}, 0x20000')
    def xor16(op, x, t):
        A(f'v_mov_b32 v{t}, v{x}')
        A(f'v_permlane16_swap_b32 v{x}, v{t}')
        A(f'{op} v{x}, v{x}, v{t}')
    def xor32(op, x, t):
        A(f'v_mov_b32 v{t}, v{x}')
        A(f'v_permlane32_swap_b32 v{x}, v{t}')
        A(f'{op} v{x}, v{x}, v{t}')
    DPP = 'row_mask:0xf bank_mask:0xf'
    def row_sum16(x):
        A(f'v_add_f32_dpp v{x}, v{x}, v{x} quad_perm:[1,0,3,2] {DPP}')
        A(f'v_add_f32_dpp v{x}, v{x}, v{x} quad_perm:[2,3,0,1] {DPP}')
        A(f'v_add_f32_dpp v{x}, v{x}, v{x} row_half_mirror {DPP}')
        A(f'v_add_f32_dpp v{x}, v{x}, v{x} row_mirror {DPP}')
    def rscatter4(x):
        A(f'v_permlane32_swap_b32 v{x}, v{x+2}')
        A(f'v_permlane32_swap_b32 v{x+1}, v{x+3}')
        A(f'v_add_f32 v{x}, v{x}, v{x+2}')
        A(f'v_add_f32 v{x+1}, v{x+1}, v{x+3}')
        A(f'v_permlane16_swap_b32 v{x}, v{x+1}')
        A(f'v_add_f32 v{x}, v{x}, v{x+1}')
    def rnd_bf16(dst, src):
        A(f'v_cvt_pk_bf16_f32 v{dst}, v{src}, v{src}')
        A(f'v_and_b32 v{dst}, 0xffff0000, v{dst}')
    def mkA(dst, x):
        for w in range(4):
            A(f'v_and_b32 v{dst+w}, v{x}, v{4+w}')
    def spin_check(retry_label, name):
        A(f's_cbranch_vccz {name}_ok')
        A(f's_sub_u32 s{sSpin}, s{sSpin}, 1')
        A(f's_cmp_gt_i32 s{sSpin}, 0')
        A(f's_cbranch_scc1 {retry_label}')
        A(f'{name}_ok:')
    def check_tags(words, t0, t1, retry_label, name):
        acc_ = [t0, t1]
        for i, (w, tg) in enumerate(words):
            if i < 2: A(f'v_xor_b32 v{acc_[i]}, s{tg}, v{w}')
            else: A(f'v_bitop3_b32 v{acc_[i&1]}, v{w}, s{tg}, v{acc_[i&1]} bitop3:0xbe')
        A(f'v_or_b32 v{t0}, v{t0}, v{t1}')
        A(f'v_and_b32 v{t0}, 15, v{t0}')
        A(f'v_cmp_ne_u32 vcc, 0, v{t0}')
        spin_check(retry_label, name)
    def quads(base, n): return [(base + i, sTg + (i & 3)) for i in range(4*n)]
    def silu(dst, x, t):
        A(f'v_mul_f32 v{t}, s{sNLog2e}, v{x}')
        A(f'v_exp_f32 v{t}, v{t}')
        A(f'v_add_f32 v{t}, 1.0, v{t}')
        A(f'v_rcp_f32 v{t}, v{t}')
        A(f'v_mul_f32 v{dst}, v{x}, v{t}')
    def tagq(dst, src):
        for r in range(4): A(f'v_bfi_b32 v{dst+r}, 15, s{sTg+r}, v{src+r}')
    def publish(vals, voff, soff, mask=None):
        tagq(vals, vals)
        if mask: A(f's_mov_b64 exec, s[{mask}:{mask+1}]')
        A(f'buffer_store_dwordx4 {v4(vals)}, v{voff}, {srd(rWS)}, s{soff} offen sc1')
        if mask: A('s_mov_b64 exec, -1')
    def mk_tags(src):
        A(f's_add_u32 s{sTg}, s{src}, 1')
        A(f's_add_u32 s{sTg+1}, s{src}, 6')
        A(f's_add_u32 s{sTg+2}, s{src}, 11')
        A(f's_add_u32 s{sTg+3}, s{src}, 16')
    def off8(dst, stride):
        A(f'v_lshrrev_b32 v{dst}, 4, v0')
        A('v_bfe_u32 v2, v0, 3, 1')
        A(f'v_lshl_add_u32 v{dst}, v2, 2, v{dst}')
        A(f'v_mul_u32_u24 v{dst}, {stride}, v{dst}')
        A('v_and_b32 v2, 7, v0')
        A(f'v_lshl_add_u32 v{dst}, v2, 4, v{dst}')
    def off4(dst, stride):
        A(f'v_lshrrev_b32 v{dst}, 4, v0')
        A(f'v_mul_u32_u24 v{dst}, {stride}, v{dst}')
        A('v_and_b32 v2, 15, v0')
        A(f'v_lshl_add_u32 v{dst}, v2, 4, v{dst}')
    def pub_off(dst, np_):
        A(f'v_lshrrev_b32 v{dst}, 5, v0')
        A(f'v_mul_u32_u24 v{dst}, 18, v{dst}')
        A('v_bfe_u32 v2, v0, 2, 2')
        A(f'v_add_u32 v{dst}, v{dst}, v2')
        A(f'v_mul_u32_u24 v{dst}, {np_*128}, v{dst}')
        A('v_and_b32 v2, 3, v0')
        A(f'v_lshl_add_u32 v{dst}, v2, 5, v{dst}')
        A('v_and_b32 v2, 16, v0')
        A(f'v_add_u32 v{dst}, v{dst}, v2')

    vKoff, vVoff, vM, vML, vQ, acc, vL = 8, 9, 10, 11, 12, 16, 20
    vXO, vXM, vTQ, vTK, vPG = 3, 21, 22, 23, 2
    D = 24; S = 40; U = 44; T = 46; T2 = 47; AF = 48
    BUF = [64, 80, 96]
    vIoff, vSb, vSa = 112, 113, 114
    SCR = 116
    WOR = 128
    def unpack4(src):
        A(f'v_lshlrev_b32 v{S}, 16, v{src}')
        A(f'v_and_b32 v{S+1}, 0xffff0000, v{src}')
        A(f'v_lshlrev_b32 v{S+2}, 16, v{src+1}')
        A(f'v_and_b32 v{S+3}, 0xffff0000, v{src+1}')
    def k_parts(buf):
        def qk():
            for n in range(4):
                A(f'v_mfma_f32_16x16x32_bf16 {v4(D+4*n)}, {v4(buf+4*n)}, {v4(vQ)}, 0')
        def red():
            for r in range(4):
                for n in range(4):
                    if r == 0: A(f'v_mov_b32_dpp v{S+n}, v{D+4*n} quad_perm:[0,0,0,0] {DPP}')
                    else: A(f'v_add_f32_dpp v{S+n}, v{D+4*n+r}, v{S+n} quad_perm:[{r},{r},{r},{r}] {DPP}')
        def scale():
            A(f'v_cvt_pk_bf16_f32 v{U}, v{S}, v{S+1}')
            A(f'v_cvt_pk_bf16_f32 v{U+1}, v{S+2}, v{S+3}')
            unpack4(U)
            for n in range(4): A(f'v_mul_f32 v{S+n}, s{sScale}, v{S+n}')
            A(f'v_cvt_pk_bf16_f32 v{U}, v{S}, v{S+1}')
            A(f'v_cvt_pk_bf16_f32 v{U+1}, v{S+2}, v{S+3}')
            A(f'ds_write_b64 v{vSa}, {v2(U)} offset:{L_SC}')
        return qk, red, scale
    def v_parts(buf, name):
        def soft():
            unpack4(SCR)
            A(f'v_max3_f32 v{T}, v{S}, v{S+1}, v{S+2}')
            A(f'v_max_f32 v{T}, v{T}, v{S+3}')
            A(f'v_cmp_gt_f32 vcc, v{T}, v{vM}')
            A(f's_cbranch_vccnz L_resc{name}')
            A(f'L_back{name}:')
            for n in range(4): A(f'v_fma_f32 v{S+n}, v{S+n}, s{sLog2e}, v{vML}')
            for n in range(4): A(f'v_exp_f32 v{S+n}, v{S+n}')
            A(f'v_add_f32 v{T}, v{S}, v{S+1}')
            A(f'v_add_f32 v{T2}, v{S+2}, v{S+3}')
            for n in range(4): A(f'v_cvt_pk_bf16_f32 v{S+n}, v{S+n}, v{S+n}')
            A(f'v_add_f32 v{T}, v{T}, v{T2}')
            A(f'v_add_f32 v{vL}, v{vL}, v{T}')
            for n in range(4): mkA(AF + 4*n, S + n)
        def pv():
            for n in range(4):
                A(f'v_mfma_f32_16x16x32_bf16 {v4(acc)}, {v4(AF+4*n)}, {v4(buf+4*n)}, {v4(acc)}')
        return soft, pv
    def resc(name):
        A(f'L_resc{name}:')
        A(f'v_max_f32 v{T}, v{T}, v{vM}')
        xor16('v_max_f32', T, T2)
        xor32('v_max_f32', T, T2)
        A(f'v_sub_f32 v{T2}, v{vM}, v{T}')
        A(f'v_mul_f32 v{T2}, s{sLog2e}, v{T2}')
        A(f'v_exp_f32 v{T2}, v{T2}')
        A(f'v_mov_b32 v{vM}, v{T}')
        A(f'v_mul_f32 v{vML}, s{sNLog2e}, v{T}')
        A(f'v_mul_f32 v{vL}, v{vL}, v{T2}')
        A(f'v_readlane_b32 s{sF0}, v{T2}, 0')
        A(f'v_readlane_b32 s{sF1}, v{T2}, 8')
        A(f'v_mov_b32 v{T}, s{sF0}')
        A(f'v_mov_b32 v{T2}, s{sF1}')
        A(f'v_cndmask_b32 v{T}, v{T}, v{T2}, s[{sHi}:{sHi+1}]')
        for r in range(4): A(f'v_mul_f32 v{acc+r}, v{acc+r}, v{T}')
        A(f's_branch L_back{name}')
    def att_init():
        A(f'v_mov_b32 v{vM}, 0xff800000')
        A(f'v_mov_b32 v{vML}, 0')
        A(f'v_mov_b32 v{vL}, 0')
        for r in range(4): A(f'v_mov_b32 v{acc+r}, 0')
        A(f'v_lshrrev_b32 v{vXO}, 5, v0')
        A(f'v_lshlrev_b32 v{vXO}, 9, v{vXO}')
        A('v_and_b32 v2, 15, v0')
        A(f'v_lshl_add_u32 v{vXO}, v2, 5, v{vXO}')
        A('v_and_b32 v2, 16, v0')
        A(f'v_add_u32 v{vXO}, v{vXO}, v2')
        A(f's_lshl_b32 s{sT1}, s{sA}, 10')
        A(f'v_add_u32 v{vXO}, s{sT1}, v{vXO}')
        A(f'v_and_b32 v{vXM}, 8, v0')
        A(f's_lshl_b32 s{sT1}, s{sA}, 4')
        A(f'v_add_u32 v{vXM}, s{sT1}, v{vXM}')
    def q_addr():
        A('v_bfe_u32 v1, v0, 3, 1')
        A('v_lshlrev_b32 v1, 8, v1')
        A('v_and_b32 v2, 3, v0')
        A('v_lshl_add_u32 v1, v2, 6, v1')
        A('v_lshrrev_b32 v2, 4, v0')
        A('v_lshl_add_u32 v1, v2, 4, v1')
    def att_flush():
        xor16('v_add_f32', vL, T)
        xor32('v_add_f32', vL, T)
        A(f'ds_write_b128 v{vXO}, {v4(acc)} offset:{L_XO}')
        A(f'v_mov_b32 v{vML}, v{vL}')
        A(f'ds_write_b64 v{vXM}, {v2(vM)} offset:{L_XM}')
    def wo_srd():
        A(f's_lshl_b32 s{sT1}, s{sG}, 1')
        A(f's_and_b32 s{sT2}, s{sR}, 1')
        A(f's_add_u32 s{sT1}, s{sT1}, s{sT2}')
        A(f's_mul_i32 s{sT1}, s{sT1}, {64*1152}')
        mk_srd(rA, sWO, sT1, 64*1152)

    A(f'{KNAME}:')
    A('s_cmp_ge_u32 s2, 256')
    A('s_cbranch_scc1 L_end')
    A('s_load_dwordx16 s[4:19], s[0:1], 0')
    A('s_load_dwordx8 s[20:27], s[0:1], 64')
    if codepf:
        A(f's_getpc_b64 s[{sP}:{sP+1}]')
        A('v_lshlrev_b32 v1, 4, v0')
        A('v_add_u32 v2, 5120, v1')
        A('v_add_u32 v3, 10240, v1')
        A(f'global_load_dwordx4 v[192:195], v1, s[{sP}:{sP+1}]')
        A(f'global_load_dwordx4 v[196:199], v2, s[{sP}:{sP+1}]')
        A(f'global_load_dwordx4 v[200:203], v3, s[{sP}:{sP+1}]')
    A('v_lshrrev_b32 v1, 6, v0')
    A('v_and_b32 v0, 63, v0')
    A(f'v_readfirstlane_b32 s{sWave}, v1')
    A(f's_lshr_b32 s{sG}, s2, 3')
    A(f's_and_b32 s{sJ}, s2, 7')
    A(f's_lshr_b32 s{sB}, s2, 7')
    A(f's_and_b32 s{sH}, s{sG}, 15')
    A(f's_sub_u32 s{sR}, s{sJ}, s{sG}')
    A(f's_and_b32 s{sR}, s{sR}, 7')
    A(f's_add_u32 s{sOwn}, s{sR}, 1')
    A(f's_and_b32 s{sOwn}, s{sOwn}, 6')
    A(f's_mov_b32 s{sScale}, {f32(128 ** -0.5)}')
    A(f's_mov_b32 s{sLog2e}, {f32(1.4426950408889634)}')
    A(f's_mov_b32 s{sNLog2e}, {f32(-1.4426950408889634)}')
    A(f's_mov_b32 s{sSpin}, 0x40000')
    A(f's_mov_b32 s{sHi}, 0')
    A(f's_mov_b32 s{sHi+1}, -1')
    A(f's_mov_b32 s{sLo8}, 0x00ff00ff')
    A(f's_mov_b32 s{sLo8+1}, 0x00ff00ff')
    if stamps:
        for i in range(10): A(f's_mov_b32 s{sSt+2+i}, 0')
    A('v_and_b32 v1, 1, v0')
    A('v_lshlrev_b32 v1, 4, v1')
    A('v_mov_b32 v2, 0xffff')
    A('v_lshlrev_b32 v1, v1, v2')
    A('v_bfe_u32 v2, v0, 1, 2')
    for w in range(4):
        A(f'v_cmp_eq_u32 vcc, {w}, v2')
        A(f'v_cndmask_b32 v{4+w}, 0, v1, vcc')
    A(f's_cmp_eq_u32 s{sWave}, 0')
    A('s_cbranch_scc1 L_side')

    A(f's_sub_u32 s{sA}, s{sWave}, 1')
    A(f's_lshl_b32 s{sXoff}, s{sR}, 3')
    A(f's_cmp_eq_u32 s{sR}, 7')
    A(f's_cselect_b32 s{sXoff}, 4, s{sXoff}')
    A(f's_add_u32 s{sXoff}, s{sXoff}, {XBASE}')
    A(f's_lshl_b32 s{sXoff}, s{sXoff}, 2')
    A(f's_add_u32 s{sXoff}, s{sXoff}, s{sA}')
    A(f's_lshl_b32 s{sXoff}, s{sXoff}, 12')
    A(f'v_and_b32 v{vKoff}, 15, v0')
    A(f'v_lshlrev_b32 v{vKoff}, 6, v{vKoff}')
    A('v_lshrrev_b32 v1, 4, v0')
    A(f'v_lshl_add_u32 v{vKoff}, v1, 4, v{vKoff}')
    A(f'v_lshlrev_b32 v{vVoff}, 4, v0')
    A(f's_lshl_b32 s{sAoff}, s{sA}, 12')
    A(f's_add_u32 s{sT0}, s{sAoff}, {L_KV}')
    A(f's_cmp_eq_u32 s{sOwn}, 0')
    A(f's_cselect_b32 s{sCnt}, 4, 8')
    A(f's_lshl_b32 s{sT1}, s{sG}, 23')
    A('s_waitcnt lgkmcnt(0)')
    mk_srd(rI, sK, sT1, 1 << 23)
    A(f's_mov_b64 s[{sKb}:{sKb+1}], s[{rI}:{rI+1}]')
    A(f's_add_u32 s{sVb}, s{sV}, s{sT1}')
    A(f's_addc_u32 s{sVb+1}, s{sV+1}, 0')
    mk_srd(rWS, sWSP, None, WS_SIZE)
    stamp(0)
    if bar1: A('s_barrier')
    A('L_pro_loop:')
    A(f's_mov_b32 m0, s{sT0}')
    for n in range(4):
        A(f's_waitcnt vmcnt({Wp-1})')
        A(f'buffer_load_dwordx4 v{vKoff}, {srd(rI)}, s{sXoff} offen offset:{n*1024} {kvflags} lds')
    A(f's_add_u32 s{sT0}, s{sT0}, 16384')
    A(f's_add_u32 s{sXoff}, s{sXoff}, 16384')
    A(f's_sub_u32 s{sCnt}, s{sCnt}, 1')
    A(f's_cmp_lg_u32 s{sCnt}, 0')
    A('s_cbranch_scc1 L_pro_loop')
    A(f's_cmp_eq_u32 s{sOwn}, 0')
    A('s_cbranch_scc1 L_pro_owner')
    A('L_pro_join:')
    A(f's_lshl_b32 s{sE[0]}, s{sJ}, 14')
    A(f's_add_u32 s{sOff}, s{sE[0]}, s{sAoff}')
    for u in range(2):
        for n in range(4):
            A(f's_waitcnt vmcnt({Wp-1})')
            A(f'buffer_load_dwordx4 {v4(BUF[u]+4*n)}, v{vKoff}, {srd(rI)}, s{sOff} offen offset:{n*1024} {kvflags}')
        if u == 0: A(f's_add_u32 s{sOff}, s{sOff}, {1 << 17}')
    A(f's_add_u32 s{sE[1]}, s{sE[0]}, {(1 << 17) + 64}')
    A(f's_add_u32 s{sE[2]}, s{sE[0]}, {(2 << 17) + 128}')
    att_init()
    q_addr()
    A(f's_lshl_b32 s{sT1}, s{sH}, 2')
    A(f's_add_u32 s{sT1}, s{sT1}, s{sB}')
    A(f's_lshl_b32 s{sT1}, s{sT1}, 3')
    A(f's_add_u32 s{sT1}, s{sT1}, s{sJ}')
    A(f's_lshl_b32 s{sAP}, s{sT1}, 9')
    A(f's_add_u32 s{sAP}, s{sAP}, {WS_AP}')
    A(f's_lshl_b32 s{sAML}, s2, 7')
    A(f's_add_u32 s{sAML}, s{sAML}, {WS_AML}')
    A(f'v_mov_b32 v{vTQ}, 12')
    A(f'v_mov_b32 v{vTK}, 0')
    A(f's_lshl_b32 s{sT1}, s{sA}, 2')
    A(f'v_mov_b32 v{vPG}, s{sT1}')
    A(f'v_and_b32 v{vSb}, 0x38, v0')
    A(f'v_add_u32 v{vSb}, s{sAoff}, v{vSb}')
    A(f'v_mov_b32 v{vSa}, v{vSb}')
    stamp(6)
    A('s_barrier')
    A(f'ds_read_b128 {v4(vQ)}, v1 offset:{L_Q}')
    A(f'ds_read_b32 v{vTK}, v{vTK} offset:{L_TAG}')
    A('v_lshrrev_b32 v1, 5, v0')
    A('v_lshlrev_b32 v1, 3, v1')
    A('s_waitcnt lgkmcnt(0)')
    A(f'v_readfirstlane_b32 s{sT1}, v{vTK}')
    mk_tags(sT1)
    stamp(1)
    kq = W - 5
    A('L_loop:')
    for p in range(3):
        q = (p + 2) % 3
        nx = (p + 1) % 3
        def issue(k):
            A(f's_waitcnt vmcnt({W-1})')
            A(f'buffer_load_dwordx4 {v4(BUF[q]+4*k)}, v{vIoff}, {srd(rI)}, s{sOff} offen offset:{k*1024} {kvflags}')
            if k == 0: A(f'ds_write_b32 v{vPG}, v{vTQ} offset:{L_PG}')
            if k == rdpos: A(f'ds_read_b32 v{vTK}, v{vTQ} offset:{L_TQ}')
        A(f's_and_b32 s{sOff}, s{sE[q]}, 0xffffc000')
        A(f's_add_u32 s{sOff}, s{sOff}, s{sAoff}')
        A(f's_bitcmp1_b32 s{sE[q]}, 1')
        A(f's_cselect_b64 s[{rI}:{rI+1}], s[{sVb}:{sVb+1}], s[{sKb}:{sKb+1}]')
        A(f's_cselect_b64 s[{sP}:{sP+1}], -1, 0')
        A(f'v_cndmask_b32 v{vIoff}, v{vKoff}, v{vVoff}, s[{sP}:{sP+1}]')
        A(f's_and_b32 s{sT0}, s{sE[nx]}, 0xfc0')
        A(f's_bitcmp1_b32 s{sE[p]}, 1')
        A(f's_cbranch_scc1 L_V{p}')
        def scpre():
            A(f'v_add_u32 v{vSa}, s{sT0}, v{vSb}')
            A(f'ds_read_b64 {v2(SCR)}, v{vSa} offset:{L_SC}')
        qk, red, scale = k_parts(BUF[p])
        sched = {k: [] for k in range(4)}
        for i, c in enumerate([qk, red, scale]): sched[min(kq + i, 3)].append(c)
        sched[min(kq + 2, 3)].append(scpre)
        for k in range(4):
            issue(k)
            for c in sched[k]: c()
        A(f's_branch L_tk{p}')
        A(f'L_V{p}:')
        soft, pv = v_parts(BUF[p], str(p))
        if softpos < 0: soft()
        kpv = max(kq, softpos + 1)
        for k in range(4):
            issue(k)
            if k == softpos: soft()
            if k == kpv:
                pv()
                A(f's_cmp_ge_u32 s{sE[nx]}, s{rI+2}')
                A('s_cbranch_scc1 L_loop_done')
            if k == 2: scpre()
        A(f'L_tk{p}:')
        A('s_waitcnt lgkmcnt(0)')
        A(f'v_readfirstlane_b32 s{sE[p]}, v{vTK}')
        A(f's_cmp_eq_u32 s{sE[p]}, 0')
        A(f's_cbranch_scc1 L_tkw{p}')
        A(f'v_add_u32 v{vTQ}, 4, v{vTQ}')
    A('s_branch L_loop')
    for p in range(3):
        A(f'L_tkw{p}:')
        A(f's_sub_u32 s{sSpin}, s{sSpin}, 1')
        A(f's_cmp_le_i32 s{sSpin}, 0')
        A('s_cbranch_scc1 L_loop_done')
        A(f'ds_read_b32 v{vTK}, v{vTQ} offset:{L_TQ}')
        A(f's_branch L_tk{p}')
    for p in range(3): resc(str(p))
    A('L_loop_done:')
    stamp(2)
    att_flush()
    A('s_waitcnt lgkmcnt(0)')
    A('s_barrier')
    A(f's_cmp_lg_u32 s{sA}, 0')
    A('s_cbranch_scc1 L_att_nopub')
    for a in range(4): A(f'ds_read_b64 {v2(44+2*a)}, v1 offset:{L_XM + a*16}')
    for a in range(4): A(f'ds_read_b128 {v4(24+4*a)}, v{vVoff} offset:{L_XO + a*1024}')
    A('v_lshlrev_b32 v60, 10, v1')
    A(f'v_and_b32 v61, 0x1f0, v{vVoff}')
    A('v_add_u32 v60, v60, v61')
    A('s_waitcnt lgkmcnt(4)')
    A('v_max3_f32 v56, v44, v46, v48')
    A('v_max_f32 v56, v56, v50')
    for a in range(4): A(f'v_sub_f32 v{44+2*a}, v{44+2*a}, v56')
    for a in range(4): A(f'v_mul_f32 v{44+2*a}, s{sLog2e}, v{44+2*a}')
    for a in range(4): A(f'v_exp_f32 v{44+2*a}, v{44+2*a}')
    A('s_waitcnt lgkmcnt(0)')
    for r in range(4): A(f'v_mul_f32 v{24+r}, v{24+r}, v44')
    A('v_mul_f32 v57, v45, v44')
    for a in range(1, 4):
        for r in range(4): A(f'v_fmac_f32 v{24+r}, v{24+4*a+r}, v{44+2*a}')
        A(f'v_fmac_f32 v57, v{45+2*a}, v{44+2*a}')
    publish(24, 60, sAP)
    A('v_mov_b32 v58, v56')
    A('v_mov_b32 v59, v57')
    A('v_permlane32_swap_b32 v56, v58')
    A('v_permlane32_swap_b32 v57, v59')
    tagq(56, 56)
    A('s_mov_b64 exec, 0xff')
    A(f'buffer_store_dwordx4 v[56:59], v{vVoff}, {srd(rWS)}, s{sAML} offen sc1')
    A('s_mov_b64 exec, -1')
    A('L_att_nopub:')
    stamp(3)
    A(f's_cmp_lg_u32 s{sOwn}, 0')
    A(f's_cbranch_scc1 {LEND}')
    A(f's_lshr_b32 s{sT1}, s{sA}, 1')
    A(f's_lshl_b32 s{sT2}, s{sG}, 1')
    A(f's_add_u32 s{sT2}, s{sT2}, s{sT1}')
    A(f's_lshl_b32 s{sOff}, s{sT2}, 12')
    A(f's_and_b32 s{sCnt}, s{sA}, 1')
    A(f's_and_b32 s{sT0}, s{sR}, 1')
    A(f's_lshl_b32 s{sF0}, s{sT0}, 1')
    A(f's_add_u32 s{sF0}, s{sF0}, s{sCnt}')
    A(f's_lshl_b32 s{sF0}, s{sF0}, 7')
    A(f's_add_u32 s{sOff}, s{sOff}, s{sF0}')
    A(f's_add_u32 s{sOff}, s{sOff}, {WS_AP}')
    A(f's_lshl_b32 s{sT2}, s{sT1}, 4')
    A(f's_lshr_b32 s{sF0}, s{sG}, 1')
    A(f's_add_u32 s{sT2}, s{sT2}, s{sF0}')
    A(f's_lshl_b32 s{sT2}, s{sT2}, 10')
    A(f's_and_b32 s{sF0}, s{sG}, 1')
    A(f's_cselect_b32 s{sAP}, s{sTg+2}, s{sTg}')
    A(f's_cselect_b32 s{sAML}, s{sTg+3}, s{sTg+1}')
    A(f's_lshl_b32 s{sF0}, s{sF0}, 3')
    A(f's_add_u32 s{sT2}, s{sT2}, s{sF0}')
    A(f's_add_u32 s{sT2}, s{sT2}, {WS_AML}')
    A('v_lshrrev_b32 v8, 3, v0')
    A('v_lshlrev_b32 v10, 7, v8')
    A('v_lshlrev_b32 v8, 9, v8')
    A('v_and_b32 v3, 7, v0')
    A('v_lshl_add_u32 v8, v3, 4, v8')
    A('v_lshrrev_b32 v11, 4, v0')
    A('v_lshlrev_b32 v11, 8, v11')
    A('v_lshl_add_u32 v11, v3, 2, v11')
    A(f's_lshl_b32 s{sT1}, s{sT1}, 7')
    A(f's_lshl_b32 s{sCnt}, s{sCnt}, 5')
    A(f's_add_u32 s{sT1}, s{sT1}, s{sCnt}')
    A(f'v_add_u32 v11, s{sT1}, v11')
    pub_off(13, 64)
    A(f's_mul_i32 s{sT1}, s{sA}, {4*64*128}')
    A(f's_lshl_b32 s{sF0}, s{sG}, 1')
    A(f's_add_u32 s{sF0}, s{sF0}, s{sT0}')
    A(f's_lshl_b32 s{sF0}, s{sF0}, 7')
    A(f's_add_u32 s{sT1}, s{sT1}, s{sF0}')
    A(f's_add_u32 s{sT1}, s{sT1}, {WS_SP}')
    for r in range(4): A(f'v_mov_b32 v{acc+r}, 0')
    A('L_own_poll:')
    A(f'buffer_load_dwordx2 v[28:29], v10, {srd(rWS)}, s{sT2} offen sc1')
    A(f'buffer_load_dwordx4 v[24:27], v8, {srd(rWS)}, s{sOff} offen sc1')
    A('s_waitcnt vmcnt(0)')
    check_tags(quads(24, 1) + [(28, sAP), (29, sAML)], 30, 31, 'L_own_poll', 'L_own')
    stamp(4)
    A(f'v_max_f32_dpp v30, v28, v28 row_ror:8 {DPP}')
    xor16('v_max_f32', 30, 31)
    xor32('v_max_f32', 30, 31)
    A('v_sub_f32 v28, v28, v30')
    A(f'v_mul_f32 v28, s{sLog2e}, v28')
    A('v_exp_f32 v28, v28')
    A('v_mul_f32 v29, v29, v28')
    for r in range(4): A(f'v_mul_f32 v{24+r}, v{24+r}, v28')
    A(f'v_add_f32_dpp v29, v29, v29 row_ror:8 {DPP}')
    A('v_permlane32_swap_b32 v24, v26')
    A('v_permlane32_swap_b32 v25, v27')
    A('v_mov_b32 v31, v29')
    A('v_add_f32 v24, v24, v26')
    A('v_add_f32 v25, v25, v27')
    A('v_permlane16_swap_b32 v29, v31')
    A('v_add_f32 v29, v29, v31')
    A('v_permlane16_swap_b32 v24, v25')
    A('v_mov_b32 v31, v29')
    A('v_add_f32 v24, v24, v25')
    A('v_permlane32_swap_b32 v29, v31')
    A('v_add_f32 v29, v29, v31')
    A(f'v_add_f32_dpp v24, v24, v24 row_ror:8 {DPP}')
    A('v_rcp_f32 v29, v29')
    A('v_mul_f32 v24, v24, v29')
    A('v_cvt_pk_bf16_f32 v24, v24, v24')
    A(f'ds_write_b32 v11, v24 offset:{L_T2}')
    A('s_waitcnt lgkmcnt(0)')
    A('s_barrier')
    for q in range(4): A(f'ds_read_b128 {v4(24+4*q)}, v10 offset:{L_T2 + q*16}')
    for t in range(16):
        if t % 4 == 0: A(f's_waitcnt lgkmcnt({3 - t//4})')
        mkA(40 + 4*(t & 3), 24 + t)
        if t >= 1:
            A(f'v_mfma_f32_16x16x32_bf16 {v4(acc)}, {v4(40 + 4*((t-1)&3))}, {v4(WOR+4*(t-1))}, {v4(acc)}')
    A(f'v_mfma_f32_16x16x32_bf16 {v4(acc)}, {v4(40 + 4*3)}, {v4(WOR+4*15)}, {v4(acc)}')
    publish(acc, 13, sT1)
    stamp(5)
    endpgm()
    A('L_pro_owner:')
    wo_srd()
    off4(1, 1152)
    A(f's_lshl_b32 s{sOff}, s{sA}, 8')
    for t in range(16):
        A(f's_waitcnt vmcnt({Wp-1})')
        A(f'buffer_load_dwordx4 {v4(WOR+4*t)}, v1, {srd(rA)}, s{sOff} offen {wflags}')
        if t < 15: A(f's_add_u32 s{sOff}, s{sOff}, {4*1152}')
    A('s_branch L_pro_join')

    A('L_side:')
    A('s_setprio 3')
    XR = 24
    XF = 136
    WQ = 64
    A(f's_mov_b32 s{sA}, 4')
    A('v_lshrrev_b32 v1, 5, v0')
    A('v_mul_u32_u24 v1, 1152, v1')
    A('v_and_b32 v2, 31, v0')
    A('v_lshl_add_u32 v1, v2, 2, v1')
    off8(3, 8192)
    A(f's_lshl_b32 s{sT0}, s{sB}, 3')
    A(f's_add_u32 s{sT0}, s{sT0}, s{sJ}')
    A(f's_lshr_b32 s{sT1}, s{sT0}, 2')
    A(f's_and_b32 s{sT0}, s{sT0}, 3')
    A(f's_mul_i32 s{sT2}, s{sT1}, {144*8192}')
    A(f's_lshl_b32 s{sOff}, s{sH}, 9')
    A(f's_add_u32 s{sT2}, s{sT2}, s{sOff}')
    A(f's_lshl_b32 s{sOff}, s{sT0}, 7')
    A(f's_add_u32 s{sT2}, s{sT2}, s{sOff}')
    A(f's_mul_i32 s{sXoff}, s{sG}, {CNT_STRIDE}')
    A(f's_add_u32 s{sXoff}, s{sXoff}, {WS_CNT}')
    A(f's_cmp_eq_u32 s{sJ}, 0')
    A(f's_cselect_b32 s{sCnt}, s{sXoff}, {WS_SIZE}')
    A('v_mov_b32 v35, 0')
    A('s_waitcnt lgkmcnt(0)')
    mk_srd(rWS, sWSP, None, WS_SIZE)
    A(f'buffer_store_dword v35, off, {srd(rWS)}, s{sCnt} sc1')
    mk_srd(rB, sX, None, 2304)
    for n in range(9): A(f'buffer_load_dword v{XR+n}, v1, {srd(rB)}, 0 offen offset:{n*128}')
    A(f'buffer_load_dword v33, off, {srd(rWS)}, 0 sc1')
    mk_srd(rA, sWQ, sT2, f's_sub_u32 s{rA+2}, {576*8192}, s{sT2}')
    A(f's_mov_b32 s{sOff}, 0')
    for u in range(18):
        A(f'buffer_load_dwordx4 {v4(WQ+4*u)}, v3, {srd(rA)}, s{sOff} offen {wflags}')
        if u < 17: A(f's_add_u32 s{sOff}, s{sOff}, 65536')
    if bar1: A('s_barrier')
    stamp(0)
    mk_srd(rO, sOUT, None, 2304)
    A('v_lshlrev_b32 v1, 2, v0')
    A(f'ds_write_b32 v1, v35 offset:{L_PG}')
    for i in range(4): A(f'ds_write_b32 v1, v35 offset:{L_TQ + 256*i}')
    A(f's_lshl_b32 s{sCnt}, s{sJ}, 14')
    A(f's_add_u32 s{sCnt}, s{sCnt}, 1')
    A(f'v_lshl_add_u32 v2, v0, 17, s{sCnt}')
    A('v_lshl_add_u32 v2, v0, 6, v2')
    A('v_or_b32 v3, 2, v2')
    A(f's_mov_b64 exec, 0x{(1 << NC) - 1:x}' if NC <= 31 else f's_mov_b32 exec_hi, 0x{(1 << (NC - 32)) - 1:x}')
    A(f'ds_write_b32 v1, v2 offset:{L_TQ}')
    A(f'ds_write_b32 v1, v3 offset:{L_TQ + 4*NC}')
    A('s_mov_b64 exec, -1')
    A('v_and_b32 v1, 1, v0')
    A('v_lshlrev_b32 v1, 2, v1')
    A('v_lshrrev_b32 v2, 5, v0')
    A('v_add_u32 v1, v1, v2')
    A('v_mul_u32_u24 v1, 576, v1')
    A('v_bfe_u32 v2, v0, 1, 4')
    A('v_lshl_add_u32 v1, v2, 2, v1')
    A('v_lshrrev_b32 v3, 3, v0')
    A('v_mul_u32_u24 v3, 576, v3')
    A(f's_mul_i32 s{sT2}, s{sT1}, 144')
    A(f'v_add_u32 v3, s{sT2}, v3')
    A('v_lshrrev_b32 v34, 5, v0')
    A('v_lshlrev_b32 v34, 12, v34')
    A('v_and_b32 v2, 7, v0')
    A('v_lshl_add_u32 v34, v2, 5, v34')
    A('v_and_b32 v2, 16, v0')
    A('v_add_u32 v34, v34, v2')
    A(f's_lshl_b32 s{sT2}, s{sH}, 13')
    A(f's_lshl_b32 s{sT1}, s{sT1}, 10')
    A(f's_add_u32 s{sT2}, s{sT2}, s{sT1}')
    A(f's_lshl_b32 s{sT0}, s{sT0}, 8')
    A(f's_add_u32 s{sT2}, s{sT2}, s{sT0}')
    A(f's_add_u32 s{sT2}, s{sT2}, {WS_QP}')
    A('s_waitcnt vmcnt(18)')
    stamp(1)
    A(f'v_readfirstlane_b32 s{sT0}, v33')
    A(f'ds_write_b32 v35, v33 offset:{L_TAG}')
    for n in range(9):
        A(f'v_lshlrev_b32 v{XF+2*n}, 16, v{XR+n}')
        A(f'v_and_b32 v{XF+2*n+1}, 0xffff0000, v{XR+n}')
    mk_tags(sT0)
    A(f'v_add_f32 v8, v{XF}, v{XF+1}')
    A(f'v_add_f32 v9, v{XF+2}, v{XF+3}')
    for i in range(4, 18, 2):
        A(f'v_add_f32 v8, v8, v{XF+i}')
        A(f'v_add_f32 v9, v9, v{XF+i+1}')
    A('v_add_f32 v8, v8, v9')
    row_sum16(8)
    xor16('v_add_f32', 8, 9)
    A(f'v_mul_f32 v8, {f32(1/576)}, v8')
    A(f'v_sub_f32 v12, v{XF}, v8')
    A(f'v_sub_f32 v13, v{XF+1}, v8')
    A('v_mul_f32 v10, v12, v12')
    A('v_mul_f32 v11, v13, v13')
    for i in range(2, 18, 2):
        A(f'v_sub_f32 v12, v{XF+i}, v8')
        A(f'v_sub_f32 v13, v{XF+i+1}, v8')
        A('v_fmac_f32 v10, v12, v12')
        A('v_fmac_f32 v11, v13, v13')
    A('v_add_f32 v10, v10, v11')
    row_sum16(10)
    xor16('v_add_f32', 10, 9)
    A(f'v_mul_f32 v10, {f32(1/576)}, v10')
    rnd_bf16(8, 8)
    rnd_bf16(10, 10)
    A(f'v_add_f32 v10, {f32(1e-5)}, v10')
    rnd_bf16(10, 10)
    A('v_sqrt_f32 v10, v10')
    rnd_bf16(10, 10)
    A('v_rcp_f32 v10, v10')
    for n in range(9):
        a, b = XF + 2*n, XF + 2*n + 1
        A(f'v_sub_f32 v{a}, v{a}, v8')
        A(f'v_sub_f32 v{b}, v{b}, v8')
        A(f'v_cvt_pk_bf16_f32 v{b}, v{a}, v{b}')
        A(f'v_lshlrev_b32 v{a}, 16, v{b}')
        A(f'v_and_b32 v{b}, 0xffff0000, v{b}')
        A(f'v_mul_f32 v{a}, v{a}, v10')
        A(f'v_mul_f32 v{b}, v{b}, v10')
        A(f'v_cvt_pk_bf16_f32 v{a}, v{a}, v{a}')
        A(f'v_cvt_pk_bf16_f32 v{b}, v{b}, v{b}')
        A(f'ds_write_b32 v1, v{a} offset:{L_T + n*64}')
        A(f'ds_write_b32 v1, v{b} offset:{L_T + 1152 + n*64}')
    A('s_waitcnt lgkmcnt(0)')
    for q in range(9): A(f'ds_read_b128 {v4(XF+4*q)}, v3 offset:{L_T + q*16}')
    for r in range(8): A(f'v_mov_b32 v{8+r}, 0')
    def qmf(u):
        b0 = 40 + 8*(u & 1)
        A(f'v_mfma_f32_16x16x32_bf16 v[8:11], {v4(b0)}, {v4(WQ+4*u)}, v[8:11]')
        A(f'v_mfma_f32_16x16x32_bf16 v[12:15], {v4(b0+4)}, {v4(WQ+4*u)}, v[12:15]')
    for u in range(18):
        if u % 2 == 0: A(f's_waitcnt lgkmcnt({8 - u//2})')
        b0 = 40 + 8*(u & 1)
        mkA(b0, XF + 2*u)
        mkA(b0 + 4, XF + 2*u + 1)
        if u >= 1:
            if (u - 1) % 6 == 0: A(f's_waitcnt vmcnt({12 - (u-1)})')
            qmf(u - 1)
    qmf(17)
    for r in range(4):
        A(f'v_add_f32_dpp v{8+r}, v{12+r}, v{8+r} row_ror:8 {DPP}')
    publish(8, 34, sT2, sLo8)
    stamp(2)
    A(f's_lshl_b32 s{sT2}, s{sH}, 1')
    A(f's_add_u32 s{sT2}, s{sT2}, s{sB}')
    A(f's_lshl_b32 s{sT2}, s{sT2}, 12')
    A(f's_add_u32 s{sT2}, s{sT2}, {WS_QP}')
    A('v_lshlrev_b32 v1, 4, v0')
    A('v_lshlrev_b32 v3, 3, v0')
    if qsleep:
        A('s_waitcnt vmcnt(0)')
        A(f's_sleep {qsleep}')
    A('L_q_poll:')
    if qsleep2: A(f's_sleep {qsleep2}')
    for i in range(4):
        A(f'buffer_load_dwordx4 {v4(64+4*i)}, v1, {srd(rWS)}, s{sT2} offen offset:{i*1024} sc1')
    A('s_waitcnt vmcnt(0)')
    check_tags(quads(64, 4), 8, 9, 'L_q_poll', 'L_q')
    for i in range(16): A(f'v_and_b32 v{64+i}, -16, v{64+i}')
    for r in range(4):
        A(f'v_add_f32 v{64+r}, v{64+r}, v{68+r}')
        A(f'v_add_f32 v{72+r}, v{72+r}, v{76+r}')
    for r in range(4): A(f'v_add_f32 v{64+r}, v{64+r}, v{72+r}')
    A('v_cvt_pk_bf16_f32 v8, v64, v65')
    A('v_cvt_pk_bf16_f32 v9, v66, v67')
    A(f'ds_write_b64 v3, v[8:9] offset:{L_Q}')
    A('s_waitcnt lgkmcnt(0)')
    stamp(3)
    A('s_barrier')
    A('s_setprio 0')
    q_addr()
    A(f'ds_read_b128 {v4(vQ)}, v1 offset:{L_Q}')
    A(f'v_lshlrev_b32 v1, 4, v0')
    A(f'v_add_u32 v1, {L_KV}, v1')
    A(f'v_and_b32 v{vSb}, 0x38, v0')
    A(f's_cmp_eq_u32 s{sOwn}, 0')
    A(f's_cselect_b32 s{sAoff}, 16, 32')
    A(f's_mov_b32 s{sCnt}, 0')
    A('L_cu_loop:')
    for n in range(4): A(f'ds_read_b128 {v4(BUF[0]+4*n)}, v1 offset:{n*1024}')
    A('v_add_u32 v1, 4096, v1')
    A(f's_and_b32 s{sT1}, s{sCnt}, 3')
    A(f's_lshl_b32 s{sT1}, s{sT1}, 12')
    A(f's_lshr_b32 s{sT2}, s{sCnt}, 2')
    A(f's_add_u32 s{sT2}, s{sT2}, {NC}')
    A(f's_lshl_b32 s{sT2}, s{sT2}, 6')
    A(f's_add_u32 s{sT1}, s{sT1}, s{sT2}')
    A(f'v_add_u32 v{vSa}, s{sT1}, v{vSb}')
    A('s_waitcnt lgkmcnt(0)')
    for c in k_parts(BUF[0]): c()
    A(f's_add_u32 s{sCnt}, s{sCnt}, 1')
    A(f's_cmp_lg_u32 s{sCnt}, s{sAoff}')
    A('s_cbranch_scc1 L_cu_loop')
    A(f's_lshl_b32 s{sT1}, s{sR}, 3')
    A(f's_cmp_eq_u32 s{sR}, 7')
    A(f's_cselect_b32 s{sT1}, 4, s{sT1}')
    A(f's_add_u32 s{sT1}, s{sT1}, {XBASE}')
    A(f's_lshl_b32 s{sT1}, s{sT1}, 14')
    A(f's_add_u32 s{sT1}, s{sT1}, {NC*64 + 3}')
    A(f'v_lshl_add_u32 v2, v0, 14, s{sT1}')
    A('v_lshl_add_u32 v2, v0, 6, v2')
    A('v_lshlrev_b32 v1, 2, v0')
    A(f'v_cmp_gt_u32 vcc, s{sAoff}, v1')
    A('s_waitcnt lgkmcnt(0)')
    A('s_mov_b64 exec, vcc')
    A(f'ds_write_b32 v1, v2 offset:{L_TQ + 8*NC}')
    A('s_mov_b64 exec, -1')
    stamp(7)
    sRole = sAP
    A(f's_mov_b32 s{sRole}, 3')
    A(f's_cmp_eq_u32 s{sOwn}, 0')
    A('s_cbranch_scc1 L_side_owner')
    A(f's_cmp_le_u32 s{sR}, 3')
    A(f's_cselect_b32 s{sRole}, 1, 2')
    A(f's_cselect_b32 s{sT1}, 1, 4')
    A(f's_sub_u32 s{sT1}, s{sR}, s{sT1}')
    A(f's_lshl_b32 s{sT0}, s{sG}, 1')
    A(f's_add_u32 s{sT0}, s{sT0}, s{sT1}')
    A(f's_cmp_lg_u32 s{sT1}, 2')
    A('s_cbranch_scc1 L_role_set')
    A(f's_lshr_b32 s{sT0}, s{sG}, 2')
    A(f's_add_u32 s{sT0}, s{sT0}, 64')
    A(f's_and_b32 s{sT1}, s{sG}, 3')
    A(f's_cselect_b32 s{sRole}, 0, s{sRole}')
    A('L_role_set:')
    A(f's_cmp_lg_u32 s{sRole}, 1')
    A('s_cbranch_scc1 L_agent')
    A(f's_lshl_b32 s{sT1}, s{sT0}, 7')
    mk_srd(rA, sWG, sT1, f's_sub_u32 s{rA+2}, {576*9216}, s{sT1}')
    mk_srd(rB, sWU, sT1, f's_sub_u32 s{rB+2}, {576*9216}, s{sT1}')
    off8(3, 9216)
    GB = [64, 80]
    def ffn_ld(buf):
        A(f'buffer_load_dwordx4 {v4(GB[buf])}, v3, {srd(rA)}, s{sOff} offen {wflags}')
        A(f'buffer_load_dwordx4 {v4(GB[buf]+4)}, v3, {srd(rB)}, s{sOff} offen {wflags}')
        A(f's_add_u32 s{sOff}, s{sOff}, {8*9216}')
        A(f'buffer_load_dwordx4 {v4(GB[buf]+8)}, v3, {srd(rA)}, s{sOff} offen {wflags}')
        A(f'buffer_load_dwordx4 {v4(GB[buf]+12)}, v3, {srd(rB)}, s{sOff} offen {wflags}')
        A(f's_add_u32 s{sOff}, s{sOff}, {8*9216}')
    A(f's_mov_b32 s{sOff}, 0')
    ffn_ld(0)
    FA = 24
    for r in range(16): A(f'v_mov_b32 v{FA+r}, 0')
    A('v_lshrrev_b32 v1, 3, v0')
    A('v_mul_u32_u24 v1, 576, v1')
    A(f's_mov_b32 s{sCnt}, 18')
    A('L_ffn_loop:')
    for buf in range(2):
        ffn_ld(1 - buf)
        A(f'ds_read_b128 v[8:11], v1 offset:{L_T + buf*16}')
        A('s_waitcnt vmcnt(4) lgkmcnt(0)')
        for uu in range(2):
            mkA(56, 8 + 2*uu)
            mkA(60, 9 + 2*uu)
            g = GB[buf] + 8*uu
            A(f'v_mfma_f32_16x16x32_bf16 {v4(FA)}, v[56:59], {v4(g)}, {v4(FA)}')
            A(f'v_mfma_f32_16x16x32_bf16 {v4(FA+4)}, v[60:63], {v4(g)}, {v4(FA+4)}')
            A(f'v_mfma_f32_16x16x32_bf16 {v4(FA+8)}, v[56:59], {v4(g+4)}, {v4(FA+8)}')
            A(f'v_mfma_f32_16x16x32_bf16 {v4(FA+12)}, v[60:63], {v4(g+4)}, {v4(FA+12)}')
    A('v_add_u32 v1, 32, v1')
    A(f's_sub_u32 s{sCnt}, s{sCnt}, 1')
    A(f's_cmp_lg_u32 s{sCnt}, 0')
    A('s_cbranch_scc1 L_ffn_loop')
    A(f's_mul_i32 s{sT1}, s{sT0}, {64*1152}')
    mk_srd(rA, sWD, sT1, 64*1152)
    off8(3, 1152)
    A('v_add_u32 v3, 1024, v3')
    off4(19, 1152)
    DB = [64, 100]
    def dn_ld(buf):
        for cb in range(4):
            A(f'buffer_load_dwordx4 {v4(DB[buf]+4*cb)}, v19, {srd(rA)}, s{sOff} offen offset:{cb*256} {wflags}')
        A(f'buffer_load_dwordx4 {v4(DB[buf]+32)}, v3, {srd(rA)}, s{sOff} offen {wflags}')
        A(f's_add_u32 s{sOff}, s{sOff}, {4*1152}')
        for cb in range(4):
            A(f'buffer_load_dwordx4 {v4(DB[buf]+16+4*cb)}, v19, {srd(rA)}, s{sOff} offen offset:{cb*256} {wflags}')
        A(f's_add_u32 s{sOff}, s{sOff}, {4*1152}')
    A('s_waitcnt vmcnt(0)')
    A(f's_mov_b32 s{sOff}, 0')
    dn_ld(0)
    for r in range(4):
        A(f'v_add_f32_dpp v{FA+r}, v{FA+4+r}, v{FA+r} row_ror:8 {DPP}')
        A(f'v_add_f32_dpp v{FA+8+r}, v{FA+12+r}, v{FA+8+r} row_ror:8 {DPP}')
    A('v_lshrrev_b32 v1, 5, v0')
    A('v_lshlrev_b32 v1, 7, v1')
    A('v_and_b32 v2, 7, v0')
    A('v_lshl_add_u32 v1, v2, 3, v1')
    A('v_bfe_u32 v2, v0, 4, 1')
    A('v_lshl_add_u32 v1, v2, 2, v1')
    for r in range(4):
        rnd_bf16(FA+r, FA+r)
        rnd_bf16(FA+8+r, FA+8+r)
        silu(FA+r, FA+r, FA+4+r)
        rnd_bf16(FA+r, FA+r)
        A(f'v_mul_f32 v{FA+r}, v{FA+r}, v{FA+8+r}')
        A(f'v_cvt_pk_bf16_f32 v{FA+r}, v{FA+r}, v{FA+r}')
    A(f's_mov_b64 exec, s[{sLo8}:{sLo8+1}]')
    for r in range(4): A(f'ds_write_b32 v1, v{FA+r} offset:{L_T2 + r*256}')
    A('s_mov_b64 exec, -1')
    A('s_waitcnt lgkmcnt(0)')
    A('v_lshrrev_b32 v1, 3, v0')
    A('v_lshlrev_b32 v1, 7, v1')
    for r in range(24): A(f'v_mov_b32 v{FA+r}, 0')
    A(f's_mov_b32 s{sCnt}, 4')
    A('L_dn_loop:')
    A(f'ds_read_b128 v[8:11], v1 offset:{L_T2}')
    for buf in range(2):
        dn_ld(1 - buf)
        A('s_waitcnt vmcnt(9) lgkmcnt(0)')
        mkA(56, 8 + 2*buf)
        mkA(60, 9 + 2*buf)
        for cb in range(4):
            A(f'v_mfma_f32_16x16x32_bf16 {v4(FA+4*cb)}, v[56:59], {v4(DB[buf]+4*cb)}, {v4(FA+4*cb)}')
        A(f'v_mfma_f32_16x16x32_bf16 {v4(FA+16)}, v[56:59], {v4(DB[buf]+32)}, {v4(FA+16)}')
        for cb in range(4):
            A(f'v_mfma_f32_16x16x32_bf16 {v4(FA+4*cb)}, v[60:63], {v4(DB[buf]+16+4*cb)}, {v4(FA+4*cb)}')
        A(f'v_mfma_f32_16x16x32_bf16 {v4(FA+20)}, v[60:63], {v4(DB[buf]+32)}, {v4(FA+20)}')
    A('v_add_u32 v1, 16, v1')
    A(f's_sub_u32 s{sCnt}, s{sCnt}, 1')
    A(f's_cmp_lg_u32 s{sCnt}, 0')
    A('s_cbranch_scc1 L_dn_loop')
    for r in range(4):
        A(f'v_add_f32_dpp v{FA+16+r}, v{FA+20+r}, v{FA+16+r} row_ror:8 {DPP}')
    for cb in range(5): tagq(FA + 4*cb, FA + 4*cb)
    A('s_branch L_agent')
    A('L_side_owner:')
    wo_srd()
    off8(3, 1152)
    A(f's_mov_b32 s{sOff}, 1024')
    for u in range(8):
        A(f'buffer_load_dwordx4 {v4(WOR+4*u)}, v3, {srd(rA)}, s{sOff} offen {wflags}')
        if u < 7: A(f's_add_u32 s{sOff}, s{sOff}, {8*1152}')
    A('L_agent:')
    stamp(4)
    A('v_mov_b32 v1, 0')
    A(f's_add_u32 s{sCnt}, s{sAoff}, {NC*8}')
    A('L_ag_wait:')
    A('s_sleep 2')
    A(f'ds_read_b128 v[8:11], v1 offset:{L_PG}')
    A(f's_sub_u32 s{sT1}, s{sCnt}, {4*lead}')
    A('s_waitcnt lgkmcnt(0)')
    A('v_max3_u32 v8, v8, v9, v10')
    A('v_max_u32 v8, v8, v11')
    A(f'v_cmp_gt_u32 vcc, s{sT1}, v8')
    spin_check('L_ag_wait', 'L_ag')
    A('v_mov_b32 v8, 1')
    A('s_mov_b64 exec, 1')
    A(f'buffer_atomic_add v8, off, {srd(rWS)}, s{sXoff} sc0')
    A('s_mov_b64 exec, -1')
    A(f'v_mov_b32 v9, s{sCnt}')
    A('s_waitcnt vmcnt(0)')
    A(f'v_readfirstlane_b32 s{sT1}, v8')
    A(f's_add_u32 s{sCnt}, s{sCnt}, 8')
    A(f's_min_u32 s{sT1}, s{sT1}, {NP}')
    A(f's_add_u32 s{sT2}, s{sT1}, {PBASE}')
    A(f's_lshl_b32 s{sT2}, s{sT2}, 14')
    A(f's_add_u32 s{sT2}, s{sT2}, {63*64 + 1}')
    A(f'v_mov_b32 v10, s{sT2}')
    A('v_or_b32 v11, 2, v10')
    A(f'ds_write_b64 v9, v[10:11] offset:{L_TQ}')
    A(f's_cmp_lt_u32 s{sT1}, {NP}')
    A('s_cbranch_scc1 L_ag_wait')
    A('s_waitcnt lgkmcnt(0)')
    stamp(8)
    A(f's_cmp_eq_u32 s{sRole}, 2')
    A('s_cbranch_scc1 L_red')
    A(f's_cmp_eq_u32 s{sRole}, 3')
    A('s_cbranch_scc1 L_side_owner2')
    A(f's_cmp_eq_u32 s{sRole}, 0')
    A(f's_cbranch_scc1 {LEND}')
    pub_off(18, 72)
    A(f's_lshl_b32 s{sT1}, s{sT0}, 7')
    A(f's_add_u32 s{sT1}, s{sT1}, {WS_DP}')
    if 'dpbar' in abl: A('s_barrier')
    for cb in range(5):
        if cb == 4: A(f's_mov_b64 exec, s[{sLo8}:{sLo8+1}]')
        A(f'buffer_store_dwordx4 {v4(FA+4*cb)}, v18, {srd(rWS)}, s{sT1} offen sc1')
        if cb < 4: A(f's_add_u32 s{sT1}, s{sT1}, {4*72*128}')
    A('s_mov_b64 exec, -1')
    endpgm()
    A('L_red:')
    mk_srd(rB, sX, None, 2304)
    A('v_and_b32 v18, 3, v0')
    A('v_lshlrev_b32 v18, 2, v18')
    A('v_lshrrev_b32 v2, 4, v0')
    A('v_add_lshl_u32 v18, v18, v2, 1')
    A(f's_lshl_b32 s{sCnt}, s{sT0}, 5')
    A(f'buffer_load_ushort v19, v18, {srd(rB)}, s{sCnt} offen')
    A(f's_lshr_b32 s{sT1}, s{sT0}, 1')
    A(f's_and_b32 s{sT2}, s{sT0}, 1')
    A(f's_lshl_b32 s{sT2}, s{sT2}, 6')
    A(f's_mul_i32 s{sOff}, s{sT1}, {72*128}')
    A(f's_add_u32 s{sOff}, s{sOff}, s{sT2}')
    A(f's_add_u32 s{sOff}, s{sOff}, {WS_DP}')
    A(f's_lshl_b32 s{sT1}, s{sT1}, 13')
    A(f's_add_u32 s{sT1}, s{sT1}, s{sT2}')
    A(f's_add_u32 s{sT1}, s{sT1}, {WS_SP}')
    A('v_lshrrev_b32 v1, 2, v0')
    A('v_lshlrev_b32 v1, 7, v1')
    A('v_and_b32 v2, 3, v0')
    A('v_lshl_add_u32 v1, v2, 4, v1')
    A('v_add_u32 v2, 4096, v1')
    A('v_and_b32 v3, 0x3ff, v1')
    A('v_add_u32 v3, 8192, v3')
    A('s_barrier')
    A('L_dp_poll:')
    for i in range(5):
        A(f'buffer_load_dwordx4 {v4(64+4*i)}, v{1 + i//2}, {srd(rWS)}, s{sOff} offen offset:{(i&1)*2048} sc1')
    A('s_waitcnt vmcnt(0)')
    check_tags(quads(64, 5), 8, 9, 'L_dp_poll', 'L_dp')
    for r in range(4): A(f'v_cndmask_b32 v{80+r}, v{80+r}, 0, s[{sHi}:{sHi+1}]')
    def sum_red(n):
        for r in range(4):
            A(f'v_add_f32 v{64+r}, v{64+r}, v{68+r}')
            A(f'v_add_f32 v{72+r}, v{72+r}, v{76+r}')
        if n == 5:
            for r in range(4): A(f'v_add_f32 v{64+r}, v{64+r}, v{80+r}')
        for r in range(4): A(f'v_add_f32 v{64+r}, v{64+r}, v{72+r}')
        rscatter4(64)
        A(f'v_add_f32_dpp v64, v64, v64 row_ror:4 {DPP}')
        A(f'v_add_f32_dpp v64, v64, v64 row_ror:8 {DPP}')
    sum_red(5)
    rnd_bf16(24, 64)
    silu(24, 24, 26)
    rnd_bf16(24, 24)
    A('v_lshlrev_b32 v26, 16, v19')
    stamp(5)
    A('L_sp_poll:')
    for i in range(4):
        A(f'buffer_load_dwordx4 {v4(64+4*i)}, v{1 + i//2}, {srd(rWS)}, s{sT1} offen offset:{(i&1)*2048} sc1')
    A('s_waitcnt vmcnt(0)')
    check_tags(quads(64, 4), 8, 9, 'L_sp_poll', 'L_sp')
    stamp(6)
    sum_red(4)
    rnd_bf16(28, 64)
    A('v_mul_f32 v28, v28, v24')
    rnd_bf16(28, 28)
    A('v_add_f32 v28, v28, v26')
    A('v_cvt_pk_bf16_f32 v28, v28, v28')
    A(f's_mov_b32 s{sP}, 0x000f000f')
    A(f's_mov_b32 s{sP+1}, 0x000f000f')
    A(f's_mov_b64 exec, s[{sP}:{sP+1}]')
    A(f'buffer_store_short v28, v18, {srd(rO)}, s{sCnt} offen')
    A(f's_cmp_lg_u32 s{sT0}, 0')
    A(f's_cbranch_scc1 {LEND}')
    A('s_mov_b64 exec, 1')
    A(f'v_mov_b32 v1, s{sTg}')
    A(f'buffer_store_dword v1, off, {srd(rWS)}, 0')
    endpgm()
    A('L_side_owner2:')
    for r in range(8): A(f'v_mov_b32 v{8+r}, 0')
    A('v_lshrrev_b32 v16, 3, v0')
    A('v_lshlrev_b32 v16, 7, v16')
    pub_off(17, 64)
    A(f's_lshl_b32 s{sT1}, s{sG}, 1')
    A(f's_and_b32 s{sT2}, s{sR}, 1')
    A(f's_add_u32 s{sT1}, s{sT1}, s{sT2}')
    A(f's_lshl_b32 s{sT1}, s{sT1}, 7')
    A(f's_add_u32 s{sT1}, s{sT1}, {WS_SP + 4*4*64*128}')
    A('s_barrier')
    A('s_barrier')
    for q in range(4): A(f'ds_read_b128 {v4(24+4*q)}, v16 offset:{L_T2 + q*16}')
    def omf(t):
        A(f'v_mfma_f32_16x16x32_bf16 {v4(8 + 4*(t&1))}, {v4(40 + 4*(t&3))}, {v4(WOR+4*(t>>1))}, {v4(8 + 4*(t&1))}')
    for t in range(16):
        if t % 4 == 0: A(f's_waitcnt lgkmcnt({3 - t//4})')
        mkA(40 + 4*(t & 3), 24 + t)
        if t >= 1: omf(t - 1)
    omf(15)
    for r in range(4):
        A(f'v_add_f32_dpp v{8+r}, v{12+r}, v{8+r} row_ror:8 {DPP}')
    publish(8, 17, sT1, sLo8)
    if stamps:
        A('L_exit:')
        A('s_mov_b64 exec, 1')
        A(f's_mul_i32 s{sSt}, s2, 5')
        A(f's_add_u32 s{sSt}, s{sSt}, s{sWave}')
        A(f's_lshl_b32 s{sSt}, s{sSt}, 6')
        A(f's_add_u32 s{sSt}, s{sSt}, {WS_ST}')
        for q in range(3):
            for r in range(4):
                i = 4*q + r
                A(f'v_mov_b32 v{204+i}, ' + (f's{sSt+2+i}' if i < 10 else (f'v{vTQ}' if i == 10 else '0')))
            A(f'buffer_store_dwordx4 {v4(204+4*q)}, off, {srd(rWS)}, s{sSt} offset:{16*q}')
    A('L_end:')
    A('s_endpgm')
    A('.fill 1024, 4, 0xbf810000')

    body = A.finish()
    out = HEADER
    out += f'; @launch grid=(256,1,1) block=(320,1,1) lds={LDS_BYTES}\n'
    out += '.amdgcn_target "amdgcn-amd-amdhsa--gfx950"\n.text\n'
    out += f'.globl {KNAME}\n.p2align 8\n.type {KNAME},@function\n'
    out += body
    out += f'''.section .rodata,"a"
.p2align 6
.amdhsa_kernel {KNAME}
  .amdhsa_next_free_vgpr 216
  .amdhsa_next_free_sgpr 100
  .amdhsa_accum_offset 216
  .amdhsa_group_segment_fixed_size 0
  .amdhsa_kernarg_size 96
  .amdhsa_user_sgpr_count 2
  .amdhsa_user_sgpr_kernarg_segment_ptr 1
  .amdhsa_system_sgpr_workgroup_id_x 1
  .amdhsa_float_denorm_mode_32 3
.end_amdhsa_kernel
'''
    return out

if __name__ == '__main__':
    import argparse
    ap = argparse.ArgumentParser()
    ap.add_argument('-o', default='k.s')
    ap.add_argument('-W', type=int, default=5)
    ap.add_argument('--Wp', type=int, default=6)
    ap.add_argument('--NC', type=int, default=49)
    ap.add_argument('--lead', type=int, default=3)
    ap.add_argument('--rdpos', type=int, default=2)
    ap.add_argument('--softpos', type=int, default=0)
    ap.add_argument('--nobar1', action='store_true')
    ap.add_argument('--stamps', action='store_true')
    ap.add_argument('--nocodepf', action='store_true')
    ap.add_argument('--qsleep', type=int, default=30)
    ap.add_argument('--qsleep2', type=int, default=8)
    ap.add_argument('--abl', default='')
    a = ap.parse_args()
    open(a.o, 'w').write(gen(W=a.W, Wp=a.Wp, stamps=a.stamps, codepf=not a.nocodepf,
                             qsleep=a.qsleep, qsleep2=a.qsleep2, abl=a.abl, NC=a.NC, lead=a.lead, rdpos=a.rdpos, softpos=a.softpos, bar1=not a.nobar1))
```

```python
import sys, struct
from asmlib import Asm

KNAME = 'recurrent_scan__gqa_block_cached__swiglu_ffn__decode_kernel'
def f32(x): return '0x%08x' % struct.unpack('<I', struct.pack('<f', x))[0]

WS_EPOCH = 0x0
WS_CNT = 0x1000
CNT_STRIDE = 4352
WS_QP = 0x40000
WS_AP = 0x60000
WS_AML = 0xA0000
WS_SP = 0xB0000
WS_DP = 0x100000
WS_ST = 0x200000
WS_SIZE = 0x400000
L_T = 0
L_Q = 4608
L_T2 = 5120
L_XO = 6144
L_XM = 10240
L_TAG = 10304
L_PG = 10320
L_TQ = 10368
L_SC = 11392
L_KV = 27776
LDS_BYTES = L_KV + 131072
SLAB = 64 * 1152

HEADER = open('recurrent_scan__gqa_block_cached__swiglu_ffn__decode.s.ref').read().split('; Override launch')[0]

def gen(W=(5,5,5,5), Wp=6, stamps=False, kvflags='nt', wflags='nt', NC=48, codepf=0, qsleep=30, qsleep2=8,
        abl='', lead=3, rdpos=2, vsched=(0,0,1), ffnw=2, THO=8, THF=8, trig='min', prio=1, slabpos=1, stf='sc1', ldf='sc1'):
    NP = 512 - 8*NC - 64
    assert NC + 8 <= 63 and 2*NC + 8 + 2*NP + 4 <= 256 and all(4 <= x <= 8 for x in W)
    IOFF = [0, 256, 0, 256]
    A = Asm()
    sX, sK, sV, sWQ, sWO, sWG, sWU, sWD, sOUT, sDBG, sWSP = 4, 6, 8, 10, 12, 16, 18, 20, 22, 24, 26
    rI, rS, rWS, rA, rB, rO = 28, 32, 36, 40, 44, 48
    sWave, sG, sJ, sB, sH, sRole, sUnit, sOff, sCnt, sT0, sT1, sT2 = 3, 52, 53, 54, 55, 56, 57, 58, 59, 60, 61, 62
    sScale, sLog2e, sNLog2e, sSpin = 63, 64, 65, 66
    sA = 67
    sHi = 68
    sLo8 = 70
    sF0, sF1 = 72, 73
    sAoff, sXoff = 74, 75
    sTg = 76
    sP = 80
    sAP, sAML = 82, 83
    sSt = 84
    sE = [96, 97, 98]
    sOff2 = 99
    sPub2 = 15
    sPub = 14
    sKb, sVb = 4, 6
    def srd(r): return f's[{r}:{r+3}]'
    def v4(r): return f'v[{r}:{r+3}]'
    def v2(r): return f'v[{r}:{r+1}]'
    def stamp(idx):
        if not stamps: return
        A(f's_memrealtime s[{sSt}:{sSt+1}]')
        A('s_waitcnt lgkmcnt(0)')
        A(f's_mov_b32 s{sSt+2+idx}, s{sSt}')
    def endpgm():
        A('s_branch L_exit' if stamps else 's_endpgm')
    LEND = 'L_exit' if stamps else 'L_end'

    def mk_srd(r, base, off_sgpr, size):
        if off_sgpr is None:
            A(f's_mov_b32 s{r}, s{base}')
            A(f's_mov_b32 s{r+1}, s{base+1}')
        else:
            A(f's_add_u32 s{r}, s{base}, s{off_sgpr}')
            A(f's_addc_u32 s{r+1}, s{base+1}, 0')
        if isinstance(size, int): A(f's_mov_b32 s{r+2}, {size}')
        else: A(size)
        A(f's_mov_b32 s{r+3}, 0x20000')
    def xor16(op, x, t):
        A(f'v_mov_b32 v{t}, v{x}')
        A(f'v_permlane16_swap_b32 v{x}, v{t}')
        A(f'{op} v{x}, v{x}, v{t}')
    def xor32(op, x, t):
        A(f'v_mov_b32 v{t}, v{x}')
        A(f'v_permlane32_swap_b32 v{x}, v{t}')
        A(f'{op} v{x}, v{x}, v{t}')
    DPP = 'row_mask:0xf bank_mask:0xf'
    def row_sum16(x):
        A(f'v_add_f32_dpp v{x}, v{x}, v{x} quad_perm:[1,0,3,2] {DPP}')
        A(f'v_add_f32_dpp v{x}, v{x}, v{x} quad_perm:[2,3,0,1] {DPP}')
        A(f'v_add_f32_dpp v{x}, v{x}, v{x} row_half_mirror {DPP}')
        A(f'v_add_f32_dpp v{x}, v{x}, v{x} row_mirror {DPP}')
    def rscatter4(x):
        A(f'v_permlane32_swap_b32 v{x}, v{x+2}')
        A(f'v_permlane32_swap_b32 v{x+1}, v{x+3}')
        A(f'v_add_f32 v{x}, v{x}, v{x+2}')
        A(f'v_add_f32 v{x+1}, v{x+1}, v{x+3}')
        A(f'v_permlane16_swap_b32 v{x}, v{x+1}')
        A(f'v_add_f32 v{x}, v{x}, v{x+1}')
    def rnd_bf16(dst, src):
        A(f'v_cvt_pk_bf16_f32 v{dst}, v{src}, v{src}')
        A(f'v_and_b32 v{dst}, 0xffff0000, v{dst}')
    def mkA(dst, x):
        for w in range(4):
            A(f'v_and_b32 v{dst+w}, v{x}, v{4+w}')
    def spin_check(retry_label, name):
        A(f's_cbranch_vccz {name}_ok')
        A(f's_sub_u32 s{sSpin}, s{sSpin}, 1')
        A(f's_cmp_gt_i32 s{sSpin}, 0')
        A(f's_cbranch_scc1 {retry_label}')
        A(f'{name}_ok:')
    def tag_vcc(words, t0, t1):
        acc_ = [t0, t1]
        for i, (w, tg) in enumerate(words):
            if i < 2: A(f'v_xor_b32 v{acc_[i]}, s{tg}, v{w}')
            else: A(f'v_bitop3_b32 v{acc_[i&1]}, v{w}, s{tg}, v{acc_[i&1]} bitop3:0xbe')
        A(f'v_bitop3_b32 v{t0}, v{t0}, v{t1}, 15 bitop3:0xa8')
        A(f'v_cmp_ne_u32 vcc, 0, v{t0}')
    def check_tags(words, t0, t1, retry_label, name):
        tag_vcc(words, t0, t1)
        spin_check(retry_label, name)
    def quads(base, n): return [(base + i, sTg + (i & 3)) for i in range(4*n)]
    def silu(dst, x, t):
        A(f'v_mul_f32 v{t}, s{sNLog2e}, v{x}')
        A(f'v_exp_f32 v{t}, v{t}')
        A(f'v_add_f32 v{t}, 1.0, v{t}')
        A(f'v_rcp_f32 v{t}, v{t}')
        A(f'v_mul_f32 v{dst}, v{x}, v{t}')
    def tagq(dst, src):
        for r in range(4): A(f'v_bfi_b32 v{dst+r}, 15, s{sTg+r}, v{src+r}')
    def publish(vals, voff, soff, mask=None):
        tagq(vals, vals)
        if mask: A(f's_mov_b64 exec, s[{mask}:{mask+1}]')
        A(f'buffer_store_dwordx4 {v4(vals)}, v{voff}, {srd(rWS)}, s{soff} offen {stf}')
        if mask: A('s_mov_b64 exec, -1')
    def mk_tags(src):
        A(f's_add_u32 s{sTg}, s{src}, 1')
        A(f's_add_u32 s{sTg+1}, s{src}, 6')
        A(f's_add_u32 s{sTg+2}, s{src}, 11')
        A(f's_add_u32 s{sTg+3}, s{src}, 14')
    def off8(dst, stride, t=2):
        A(f'v_lshrrev_b32 v{dst}, 4, v0')
        A(f'v_bfe_u32 v{t}, v0, 3, 1')
        A(f'v_lshl_add_u32 v{dst}, v{t}, 2, v{dst}')
        A(f'v_mul_u32_u24 v{dst}, {stride}, v{dst}')
        A(f'v_and_b32 v{t}, 7, v0')
        A(f'v_lshl_add_u32 v{dst}, v{t}, 4, v{dst}')
    def off4(dst, stride, t=2):
        A(f'v_lshrrev_b32 v{dst}, 4, v0')
        A(f'v_mul_u32_u24 v{dst}, {stride}, v{dst}')
        A(f'v_and_b32 v{t}, 15, v0')
        A(f'v_lshl_add_u32 v{dst}, v{t}, 4, v{dst}')
    def consts():
        A(f's_mov_b32 s{sScale}, {f32(128 ** -0.5)}')
        A(f's_mov_b32 s{sLog2e}, {f32(1.4426950408889634)}')
        A(f's_mov_b32 s{sNLog2e}, {f32(-1.4426950408889634)}')
        A(f's_mov_b32 s{sSpin}, 0x40000')
        A(f's_mov_b32 s{sHi}, 0')
        A(f's_mov_b32 s{sHi+1}, -1')
        A(f's_mov_b32 s{sLo8}, 0x00ff00ff')
        A(f's_mov_b32 s{sLo8+1}, 0x00ff00ff')
        A('v_and_b32 v1, 1, v0')
        A('v_lshlrev_b32 v1, 4, v1')
        A('v_mov_b32 v2, 0xffff')
        A('v_lshlrev_b32 v1, v1, v2')
        A('v_bfe_u32 v2, v0, 1, 2')
        for w in range(4):
            A(f'v_cmp_eq_u32 vcc, {w}, v2')
            A(f'v_cndmask_b32 v{4+w}, 0, v1, vcc')
    def roles(vpub=None):
        A(f's_sub_u32 s{sF0}, s{sJ}, s{sG}')
        A(f's_and_b32 s{sF0}, s{sF0}, 7')
        A(f's_cmp_le_u32 s{sF0}, 3')
        A(f's_cselect_b32 s{sRole}, 1, 2')
        A(f's_cselect_b32 s{sT1}, 1, 4')
        A(f's_sub_u32 s{sT1}, s{sF0}, s{sT1}')
        A(f's_lshl_b32 s{sF1}, s{sG}, 1')
        A(f's_add_u32 s{sUnit}, s{sF1}, s{sT1}')
        A(f's_and_b32 s{sT2}, s{sG}, 3')
        A(f's_cselect_b32 s{sT2}, 0, s{sRole}')
        A(f's_lshr_b32 s{sP}, s{sG}, 2')
        A(f's_add_u32 s{sP}, s{sP}, 64')
        A(f's_cmp_eq_u32 s{sT1}, 2')
        A(f's_cselect_b32 s{sRole}, s{sT2}, s{sRole}')
        A(f's_cselect_b32 s{sUnit}, s{sP}, s{sUnit}')
        A(f's_and_b32 s{sT1}, s{sF0}, 1')
        A(f's_add_u32 s{sF1}, s{sF1}, s{sT1}')
        A(f's_add_u32 s{sF0}, s{sF0}, 1')
        A(f's_and_b32 s{sF0}, s{sF0}, 6')
        A(f's_cselect_b32 s{sRole}, s{sRole}, 3')
        A(f's_cselect_b32 s{sUnit}, s{sUnit}, s{sF1}')
        if vpub is None: return
        A(f's_cselect_b64 s[{sP}:{sP+1}], s[{sWD}:{sWD+1}], s[{sWO}:{sWO+1}]')
        A(f's_mov_b32 s{sT2}, {64*128}')
        A(f's_cselect_b32 s{sT2}, {72*128}, s{sT2}')
        A(f's_mov_b32 s{sPub}, {WS_SP}')
        A(f's_cselect_b32 s{sPub}, {WS_DP}, s{sPub}')
        A(f's_mul_i32 s{sT1}, s{sUnit}, {SLAB}')
        mk_srd(rS, sP, sT1, SLAB)
        A(f's_lshl_b32 s{sT1}, s{sUnit}, 7')
        A(f's_add_u32 s{sPub}, s{sPub}, s{sT1}')
        A(f's_lshl_b32 s{sT1}, s{sA}, 2')
        A(f's_mul_i32 s{sT1}, s{sT1}, s{sT2}')
        A(f's_add_u32 s{sPub}, s{sPub}, s{sT1}')
        A(f's_lshl_b32 s{sT1}, s{sT2}, 2')
        A(f's_add_u32 s{sPub2}, s{sPub}, s{sT1}')
        A(f'v_lshrrev_b32 v{vpub}, 5, v0')
        A(f'v_mul_u32_u24 v{vpub}, 18, v{vpub}')
        A('v_bfe_u32 v2, v0, 2, 2')
        A(f'v_add_u32 v{vpub}, v{vpub}, v2')
        A(f'v_mul_u32_u24 v{vpub}, s{sT2}, v{vpub}')
        A('v_and_b32 v2, 3, v0')
        A(f'v_lshl_add_u32 v{vpub}, v2, 5, v{vpub}')
        A('v_and_b32 v2, 16, v0')
        A(f'v_add_u32 v{vpub}, v{vpub}, v2')

    vKoff, vVoff, vM, vML, vQ, acc, vL = 8, 9, 10, 11, 12, 16, 20
    vXO, vXM, vTQ, vTK, vPG = 3, 21, 22, 23, 2
    D = 24; S = 40; U = 44; T = 46; T2 = 47; AF = 48
    BUF = [64, 80, 96]
    vIoff, vSb, vSa, vL16 = 112, 113, 114, 115
    SCR = 116
    vPub, vSlab, vXr, vOg, vTw, vAPo = 118, 119, 120, 121, 122, 123
    WOR = 128
    def unpack4(src):
        A(f'v_lshlrev_b32 v{S}, 16, v{src}')
        A(f'v_and_b32 v{S+1}, 0xffff0000, v{src}')
        A(f'v_lshlrev_b32 v{S+2}, 16, v{src+1}')
        A(f'v_and_b32 v{S+3}, 0xffff0000, v{src+1}')
    def k_parts(buf):
        def qk():
            for n in range(4):
                A(f'v_mfma_f32_16x16x32_bf16 {v4(D+4*n)}, {v4(buf+4*n)}, {v4(vQ)}, 0')
        def red():
            for r in range(4):
                for n in range(4):
                    if r == 0: A(f'v_mov_b32_dpp v{S+n}, v{D+4*n} quad_perm:[0,0,0,0] {DPP}')
                    else: A(f'v_add_f32_dpp v{S+n}, v{D+4*n+r}, v{S+n} quad_perm:[{r},{r},{r},{r}] {DPP}')
        def scale():
            A(f'v_cvt_pk_bf16_f32 v{U}, v{S}, v{S+1}')
            A(f'v_cvt_pk_bf16_f32 v{U+1}, v{S+2}, v{S+3}')
            unpack4(U)
            for n in range(4): A(f'v_mul_f32 v{S+n}, s{sScale}, v{S+n}')
            A(f'v_cvt_pk_bf16_f32 v{U}, v{S}, v{S+1}')
            A(f'v_cvt_pk_bf16_f32 v{U+1}, v{S+2}, v{S+3}')
            A(f'ds_write_b64 v{vSa}, {v2(U)} offset:{L_SC}')
        return qk, red, scale
    def v_parts(buf, name):
        def soft():
            unpack4(SCR)
            A(f'v_max3_f32 v{T}, v{S}, v{S+1}, v{S+2}')
            A(f'v_max_f32 v{T}, v{T}, v{S+3}')
            A(f'v_cmp_gt_f32 vcc, v{T}, v{vM}')
            A(f's_cbranch_vccnz L_resc{name}')
            A(f'L_back{name}:')
            for n in range(4): A(f'v_fma_f32 v{S+n}, v{S+n}, s{sLog2e}, v{vML}')
            for n in range(4): A(f'v_exp_f32 v{S+n}, v{S+n}')
            A(f'v_add_f32 v{T}, v{S}, v{S+1}')
            A(f'v_add_f32 v{T2}, v{S+2}, v{S+3}')
            for n in range(4): A(f'v_cvt_pk_bf16_f32 v{S+n}, v{S+n}, v{S+n}')
            A(f'v_add_f32 v{T}, v{T}, v{T2}')
            A(f'v_add_f32 v{vL}, v{vL}, v{T}')
        def masks():
            for n in range(4): mkA(AF + 4*n, S + n)
        def pv():
            for n in range(4):
                A(f'v_mfma_f32_16x16x32_bf16 {v4(acc)}, {v4(AF+4*n)}, {v4(buf+4*n)}, {v4(acc)}')
        return soft, masks, pv
    def resc(name):
        A(f'L_resc{name}:')
        A(f'v_max_f32 v{T}, v{T}, v{vM}')
        xor16('v_max_f32', T, T2)
        xor32('v_max_f32', T, T2)
        A(f'v_sub_f32 v{T2}, v{vM}, v{T}')
        A(f'v_mul_f32 v{T2}, s{sLog2e}, v{T2}')
        A(f'v_exp_f32 v{T2}, v{T2}')
        A(f'v_mov_b32 v{vM}, v{T}')
        A(f'v_mul_f32 v{vML}, s{sNLog2e}, v{T}')
        A(f'v_mul_f32 v{vL}, v{vL}, v{T2}')
        A(f'v_readlane_b32 s{sF0}, v{T2}, 0')
        A(f'v_readlane_b32 s{sF1}, v{T2}, 8')
        A(f'v_mov_b32 v{T}, s{sF0}')
        A(f'v_mov_b32 v{T2}, s{sF1}')
        A(f'v_cndmask_b32 v{T}, v{T}, v{T2}, s[{sHi}:{sHi+1}]')
        for r in range(4): A(f'v_mul_f32 v{acc+r}, v{acc+r}, v{T}')
        A(f's_branch L_back{name}')
    def q_addr():
        A('v_bfe_u32 v1, v0, 3, 1')
        A('v_lshlrev_b32 v1, 8, v1')
        A('v_and_b32 v2, 3, v0')
        A('v_lshl_add_u32 v1, v2, 6, v1')
        A('v_lshrrev_b32 v2, 4, v0')
        A('v_lshl_add_u32 v1, v2, 4, v1')

    A(f'{KNAME}:')
    A('s_cmp_ge_u32 s2, 256')
    A('s_cbranch_scc1 L_end')
    A('s_load_dwordx16 s[4:19], s[0:1], 0')
    A('s_load_dwordx8 s[20:27], s[0:1], 64')
    if codepf & 1:
        A(f's_getpc_b64 s[{sP}:{sP+1}]')
        A('v_lshlrev_b32 v1, 4, v0')
        A('v_add_u32 v2, 5120, v1')
        A('v_add_u32 v3, 10240, v1')
        A(f'global_load_dwordx4 v[224:227], v1, s[{sP}:{sP+1}]')
        A(f'global_load_dwordx4 v[228:231], v2, s[{sP}:{sP+1}]')
        A(f'global_load_dwordx4 v[232:235], v3, s[{sP}:{sP+1}]')
    A('v_lshrrev_b32 v1, 6, v0')
    A('v_and_b32 v0, 63, v0')
    A(f'v_readfirstlane_b32 s{sWave}, v1')
    A(f's_lshr_b32 s{sG}, s2, 3')
    A(f's_and_b32 s{sJ}, s2, 7')
    A(f's_lshr_b32 s{sB}, s2, 7')
    A(f's_and_b32 s{sH}, s{sG}, 15')
    if stamps:
        for i in range(10): A(f's_mov_b32 s{sSt+2+i}, 0')
    A(f's_cmp_eq_u32 s{sWave}, 0')
    A('s_cbranch_scc1 L_side')

    A(f's_sub_u32 s{sA}, s{sWave}, 1')
    A(f's_lshl_b32 s{sAoff}, s{sA}, 15')
    A(f's_lshl_b32 s{sE[0]}, s{sJ}, 9')
    A(f's_add_u32 s{sOff}, s{sE[0]}, s{sAoff}')
    A(f's_add_u32 s{sXoff}, s{sOff}, {NC << 17}')
    A(f'v_bfe_u32 v{vKoff}, v0, 2, 2')
    A(f'v_lshlrev_b32 v{vKoff}, 13, v{vKoff}')
    A('v_and_b32 v1, 3, v0')
    A(f'v_lshl_add_u32 v{vKoff}, v1, 6, v{vKoff}')
    A('v_lshrrev_b32 v1, 4, v0')
    A(f'v_lshl_add_u32 v{vKoff}, v1, 4, v{vKoff}')
    A(f'v_lshlrev_b32 v{vVoff}, 13, v1')
    A('v_and_b32 v1, 15, v0')
    A(f'v_lshl_add_u32 v{vVoff}, v1, 4, v{vVoff}')
    A(f's_lshl_b32 s{sT0}, s{sA}, 12')
    A(f's_add_u32 s{sT0}, s{sT0}, {L_KV}')
    A(f's_mov_b32 s{sCnt}, 8')
    A(f's_lshl_b32 s{sT1}, s{sG}, 23')
    A(f's_mov_b32 s{rI+2}, {1 << 23}')
    A(f's_mov_b32 s{rI+3}, 0x20000')
    A('s_waitcnt lgkmcnt(0)')
    A(f's_add_u32 s{rI}, s{sK}, s{sT1}')
    A(f's_addc_u32 s{rI+1}, s{sK+1}, 0')
    stamp(0)
    A('L_pro_loop:')
    A(f's_add_u32 s{sOff2}, s{sXoff}, 4096')
    for n in range(4):
        A(f's_add_u32 m0, s{sT0}, {n*1024 - IOFF[n]}')
        A(f's_waitcnt vmcnt({Wp-1})')
        A(f'buffer_load_dwordx4 v{vKoff}, {srd(rI)}, s{sXoff if n < 2 else sOff2} offen offset:{IOFF[n]} {kvflags} lds')
    A(f's_add_u32 s{sT0}, s{sT0}, 16384')
    A(f's_add_u32 s{sXoff}, s{sXoff}, {1 << 17}')
    A(f's_sub_u32 s{sCnt}, s{sCnt}, 1')
    A(f's_cmp_lg_u32 s{sCnt}, 0')
    A('s_cbranch_scc1 L_pro_loop')
    def setup0():
        A(f's_mov_b64 s[{sKb}:{sKb+1}], s[{rI}:{rI+1}]')
        A(f's_add_u32 s{sVb}, s{sV}, s{sT1}')
        A(f's_addc_u32 s{sVb+1}, s{sV+1}, 0')
        mk_srd(rWS, sWSP, None, WS_SIZE)
        A(f's_add_u32 s{sE[1]}, s{sE[0]}, {(1 << 17) + (1 << 24)}')
        A(f's_add_u32 s{sE[2]}, s{sE[0]}, {(2 << 17) + (2 << 24)}')
        consts()
    def setup1():
        A(f'v_mov_b32 v{vM}, 0xff800000')
        A(f'v_mov_b32 v{vML}, 0')
        A(f'v_mov_b32 v{vL}, 0')
        for r in range(4): A(f'v_mov_b32 v{acc+r}, 0')
        A(f'v_lshrrev_b32 v{vXO}, 5, v0')
        A(f'v_lshlrev_b32 v{vXO}, 9, v{vXO}')
        A('v_and_b32 v2, 15, v0')
        A(f'v_lshl_add_u32 v{vXO}, v2, 5, v{vXO}')
        A('v_and_b32 v2, 16, v0')
        A(f'v_add_u32 v{vXO}, v{vXO}, v2')
        A(f's_lshl_b32 s{sT1}, s{sA}, 10')
        A(f'v_add_u32 v{vXO}, s{sT1}, v{vXO}')
        A(f'v_and_b32 v{vXM}, 8, v0')
        A(f's_lshl_b32 s{sT1}, s{sA}, 4')
        A(f'v_add_u32 v{vXM}, s{sT1}, v{vXM}')
        A(f'v_and_b32 v{vSb}, 0x38, v0')
        A(f's_lshl_b32 s{sT1}, s{sA}, 12')
        A(f'v_add_u32 v{vSb}, s{sT1}, v{vSb}')
        A(f'v_mov_b32 v{vSa}, v{vSb}')
        A(f'v_lshlrev_b32 v{vL16}, 4, v0')
        A(f'v_mov_b32 v{vTQ}, 12')
        A(f'v_mov_b32 v{vTK}, 0')
    def setup2():
        roles(vPub)
    def setup3():
        A(f's_lshl_b32 s{sT1}, s{sH}, 2')
        A(f's_add_u32 s{sT1}, s{sT1}, s{sB}')
        A(f's_lshl_b32 s{sT1}, s{sT1}, 3')
        A(f's_add_u32 s{sT1}, s{sT1}, s{sJ}')
        A(f's_lshl_b32 s{sAP}, s{sT1}, 9')
        A(f's_add_u32 s{sAP}, s{sAP}, {WS_AP}')
        A(f's_lshl_b32 s{sAML}, s2, 7')
        A(f's_add_u32 s{sAML}, s{sAML}, {WS_AML}')
        A(f'v_lshrrev_b32 v{vAPo}, 5, v0')
        A(f'v_lshlrev_b32 v{vAPo}, 13, v{vAPo}')
        A(f'v_and_b32 v2, 0x1f0, v{vL16}')
        A(f'v_add_u32 v{vAPo}, v{vAPo}, v2')
        off4(vSlab, 1152)
        A(f's_lshl_b32 s{sT1}, s{sA}, 8')
        A(f'v_add_u32 v{vSlab}, s{sT1}, v{vSlab}')
    def setup4():
        A(f'v_lshrrev_b32 v{vOg}, 3, v0')
        A(f'v_lshlrev_b32 v{vXr}, 7, v{vOg}')
        A(f'v_lshlrev_b32 v{vOg}, 9, v{vOg}')
        A('v_and_b32 v2, 7, v0')
        A(f'v_lshl_add_u32 v{vOg}, v2, 4, v{vOg}')
        A(f'v_lshrrev_b32 v{vTw}, 4, v0')
        A(f'v_lshlrev_b32 v{vTw}, 8, v{vTw}')
        A(f'v_lshl_add_u32 v{vTw}, v2, 2, v{vTw}')
        A(f's_lshr_b32 s{sT1}, s{sA}, 1')
        A(f's_lshl_b32 s{sT1}, s{sT1}, 7')
        A(f's_and_b32 s{sT2}, s{sA}, 1')
        A(f's_lshl_b32 s{sT2}, s{sT2}, 5')
        A(f's_add_u32 s{sT1}, s{sT1}, s{sT2}')
        A(f'v_add_u32 v{vTw}, s{sT1}, v{vTw}')
    def setup5():
        q_addr()
        A(f's_lshl_b32 s{sT1}, s{sA}, 2')
        A(f'v_mov_b32 v{vPG}, s{sT1}')
    fill = [setup0, setup1, setup2, setup3, setup4, setup5]
    for u in range(2):
        A(f's_add_u32 s{sOff2}, s{sOff}, 4096')
        for n in range(4):
            A(f's_waitcnt vmcnt({Wp-1})')
            A(f'buffer_load_dwordx4 {v4(BUF[u]+4*n)}, v{vKoff}, {srd(rI)}, s{sOff if n < 2 else sOff2} offen offset:{IOFF[n]} {kvflags}')
            if fill: fill.pop(0)()
        if u == 0: A(f's_add_u32 s{sOff}, s{sOff}, {1 << 17}')
    stamp(6)
    A('s_barrier')
    A(f'ds_read_b128 {v4(vQ)}, v1 offset:{L_Q}')
    A(f'ds_read_b32 v{vTK}, v{vTK} offset:{L_TAG}')
    A('v_lshrrev_b32 v1, 5, v0')
    A('v_lshlrev_b32 v1, 3, v1')
    A('s_waitcnt lgkmcnt(0)')
    A(f'v_readfirstlane_b32 s{sT1}, v{vTK}')
    mk_tags(sT1)
    if prio: A(f's_setprio {prio}')
    stamp(1)
    WW = W if len(W) == 12 else W * 3
    if stamps: A(f's_mov_b32 s{sCnt}, 0')
    A('L_loop:')
    for p in range(3):
        q = (p + 2) % 3
        nx = (p + 1) % 3
        Wk = WW[4*p:4*p+4]
        kq = min(k for k in range(4) if any(8 + kk - Wk[kk] >= 3 for kk in range(k + 1)))
        def issue(k):
            A(f's_waitcnt vmcnt({Wk[k]-1})')
            A(f'buffer_load_dwordx4 {v4(BUF[q]+4*k)}, v{vIoff}, {srd(rI)}, s{sOff if k < 2 else sOff2} offen offset:{IOFF[k]} {kvflags}')
            if k == 0: A(f'ds_write_b32 v{vPG}, v{vTQ} offset:{L_PG}')
            if k == rdpos: A(f'ds_read_b32 v{vTK}, v{vTQ} offset:{L_TQ}')
        if stamps:
            for idx, val in ((7, 24), (8, NC), (9, 2*NC)):
                A(f's_cmp_lg_u32 s{sCnt}, {val}')
                A(f's_cbranch_scc1 L_ns{p}_{idx}')
                stamp(idx)
                A(f'L_ns{p}_{idx}:')
            A(f's_add_u32 s{sCnt}, s{sCnt}, 1')
        A(f's_and_b32 s{sOff}, s{sE[q]}, 0x00fe0e00')
        A(f's_add_u32 s{sOff}, s{sOff}, s{sAoff}')
        A(f's_add_u32 s{sOff2}, s{sOff}, 4096')
        A(f's_bitcmp1_b32 s{sE[q]}, 1')
        A(f's_cselect_b64 s[{rI}:{rI+1}], s[{sVb}:{sVb+1}], s[{sKb}:{sKb+1}]')
        A(f's_cselect_b64 s[{sP}:{sP+1}], -1, 0')
        A(f'v_cndmask_b32 v{vIoff}, v{vKoff}, v{vVoff}, s[{sP}:{sP+1}]')
        A(f's_lshr_b32 s{sT0}, s{sE[nx]}, 24')
        A(f's_lshl_b32 s{sT0}, s{sT0}, 6')
        A(f's_bitcmp1_b32 s{sE[p]}, 1')
        A(f's_cbranch_scc1 L_V{p}')
        def scpre():
            A(f'v_add_u32 v{vSa}, s{sT0}, v{vSb}')
            A(f'ds_read_b64 {v2(SCR)}, v{vSa} offset:{L_SC}')
        qk, red, scale = k_parts(BUF[p])
        sched = {k: [] for k in range(4)}
        for i, c in enumerate([qk, red, scale]): sched[min(kq + i, 3)].append(c)
        sched[min(kq + 2, 3)].append(scpre)
        for k in range(4):
            issue(k)
            for c in sched[k]: c()
        A(f's_branch L_tk{p}')
        A(f'L_V{p}:')
        soft, masks, pv = v_parts(BUF[p], str(p))
        ksoft, kmask, kpv = vsched
        kpv = max(kq, kpv)
        if ksoft < 0: soft()
        if kmask < 0: masks()
        for k in range(4):
            issue(k)
            if k == ksoft: soft()
            if k == kmask: masks()
            if k == kpv:
                pv()
                A(f's_bitcmp1_b32 s{sE[nx]}, 23')
                A('s_cbranch_scc1 L_loop_done')
            if k == 2: scpre()
        A(f'L_tk{p}:')
        A('s_waitcnt lgkmcnt(0)')
        A(f'v_readfirstlane_b32 s{sE[p]}, v{vTK}')
        A(f's_cmp_eq_u32 s{sE[p]}, 0')
        A(f's_cbranch_scc1 L_tkw{p}')
        A(f'v_add_u32 v{vTQ}, 4, v{vTQ}')
    A('s_branch L_loop')
    for p in range(3):
        A(f'L_tkw{p}:')
        A(f's_sub_u32 s{sSpin}, s{sSpin}, 1')
        A(f's_cmp_le_i32 s{sSpin}, 0')
        A('s_cbranch_scc1 L_loop_done')
        A(f'ds_read_b32 v{vTK}, v{vTQ} offset:{L_TQ}')
        A(f's_branch L_tk{p}')
    for p in range(3): resc(str(p))
    A('L_loop_done:')
    stamp(2)
    xor16('v_add_f32', vL, T)
    xor32('v_add_f32', vL, T)
    A(f'ds_write_b128 v{vXO}, {v4(acc)} offset:{L_XO}')
    A(f'v_mov_b32 v{vML}, v{vL}')
    A(f'ds_write_b64 v{vXM}, {v2(vM)} offset:{L_XM}')
    WOT = WOR + 64
    def slab_loads():
        A(f's_mov_b32 s{sOff}, 0')
        for t in range(16):
            A(f'buffer_load_dwordx4 {v4(WOR+4*t)}, v{vSlab}, {srd(rS)}, s{sOff} offen {wflags}')
            if t < 15: A(f's_add_u32 s{sOff}, s{sOff}, {4*1152}')
        A(f's_cmp_lg_u32 s{sA}, 3')
        A('s_cbranch_scc1 L_notail')
        off8(8, 1152, 9)
        A(f's_mov_b32 s{sOff}, 1024')
        for u in range(8):
            A(f'buffer_load_dwordx4 {v4(WOT+4*u)}, v8, {srd(rS)}, s{sOff} offen {wflags}')
            if u < 7: A(f's_add_u32 s{sOff}, s{sOff}, {8*1152}')
        for r in range(8): A(f'v_mov_b32 v{56+r}, 0')
        A('L_notail:')
    if slabpos == 0:
        A(f's_bitcmp0_b32 s{sRole}, 0')
        A('s_cbranch_scc1 L_noslab')
        slab_loads()
        A('L_noslab:')
    A('s_waitcnt lgkmcnt(0)')
    A('s_barrier')
    A(f's_cmp_lg_u32 s{sA}, 0')
    A('s_cbranch_scc1 L_att_nopub')
    for a in range(4): A(f'ds_read_b64 {v2(44+2*a)}, v1 offset:{L_XM + a*16}')
    for a in range(4): A(f'ds_read_b128 {v4(24+4*a)}, v{vL16} offset:{L_XO + a*1024}')
    A('s_waitcnt lgkmcnt(4)')
    A('v_max3_f32 v56, v44, v46, v48')
    A('v_max_f32 v56, v56, v50')
    for a in range(4): A(f'v_sub_f32 v{44+2*a}, v{44+2*a}, v56')
    for a in range(4): A(f'v_mul_f32 v{44+2*a}, s{sLog2e}, v{44+2*a}')
    for a in range(4): A(f'v_exp_f32 v{44+2*a}, v{44+2*a}')
    A('v_mov_b32 v58, v56')
    A('v_mul_f32 v57, v45, v44')
    for a in range(1, 4): A(f'v_fmac_f32 v57, v{45+2*a}, v{44+2*a}')
    A('v_permlane32_swap_b32 v56, v58')
    A('v_mov_b32 v59, v57')
    A('s_waitcnt lgkmcnt(0)')
    for r in range(4): A(f'v_mul_f32 v{24+r}, v{24+r}, v44')
    A('v_permlane32_swap_b32 v57, v59')
    for a in range(1, 4):
        for r in range(4): A(f'v_fmac_f32 v{24+r}, v{24+4*a+r}, v{44+2*a}')
    tagq(56, 56)
    publish(24, vAPo, sAP)
    A('s_mov_b64 exec, 0xff')
    A(f'buffer_store_dwordx4 v[56:59], v{vL16}, {srd(rWS)}, s{sAML} offen {stf}')
    A('s_mov_b64 exec, -1')
    A('L_att_nopub:')
    stamp(3)
    A(f's_bitcmp0_b32 s{sRole}, 0')
    A(f's_cbranch_scc1 {LEND}')
    if slabpos == 1: slab_loads()
    for r in range(4): A(f'v_mov_b32 v{acc+r}, 0')
    A(f's_cmp_lg_u32 s{sRole}, 1')
    A('s_cbranch_scc1 L_owner')
    A('s_waitcnt vmcnt(0)')
    A('s_branch L_proj')
    A('L_owner:')
    A(f's_lshr_b32 s{sT1}, s{sA}, 1')
    A(f's_lshl_b32 s{sT2}, s{sG}, 1')
    A(f's_add_u32 s{sT2}, s{sT2}, s{sT1}')
    A(f's_lshl_b32 s{sOff}, s{sT2}, 12')
    A(f's_and_b32 s{sCnt}, s{sA}, 1')
    A(f's_and_b32 s{sT0}, s{sUnit}, 1')
    A(f's_lshl_b32 s{sF0}, s{sT0}, 1')
    A(f's_add_u32 s{sF0}, s{sF0}, s{sCnt}')
    A(f's_lshl_b32 s{sF0}, s{sF0}, 7')
    A(f's_add_u32 s{sOff}, s{sOff}, s{sF0}')
    A(f's_add_u32 s{sOff}, s{sOff}, {WS_AP}')
    A(f's_lshl_b32 s{sT2}, s{sT1}, 4')
    A(f's_lshr_b32 s{sF0}, s{sG}, 1')
    A(f's_add_u32 s{sT2}, s{sT2}, s{sF0}')
    A(f's_lshl_b32 s{sT2}, s{sT2}, 10')
    A(f's_add_u32 s{sT2}, s{sT2}, {WS_AML}')
    A(f's_and_b32 s{sF0}, s{sG}, 1')
    A(f's_cselect_b64 s[{sP}:{sP+1}], -1, 0')
    A('L_own_poll:')
    A(f'buffer_load_dwordx4 v[28:31], v{vL16}, {srd(rWS)}, s{sT2} offen {ldf}')
    A(f'buffer_load_dwordx4 v[24:27], v{vOg}, {srd(rWS)}, s{sOff} offen {ldf}')
    A('s_waitcnt vmcnt(0)')
    check_tags(quads(24, 2), 32, 33, 'L_own_poll', 'L_own')
    stamp(4)
    A(f'v_cndmask_b32 v28, v28, v30, s[{sP}:{sP+1}]')
    A(f'v_cndmask_b32 v29, v29, v31, s[{sP}:{sP+1}]')
    A(f'v_max_f32_dpp v30, v28, v28 row_ror:8 {DPP}')
    xor16('v_max_f32', 30, 31)
    xor32('v_max_f32', 30, 31)
    A('v_sub_f32 v28, v28, v30')
    A(f'v_mul_f32 v28, s{sLog2e}, v28')
    A('v_exp_f32 v28, v28')
    A('v_mul_f32 v29, v29, v28')
    for r in range(4): A(f'v_mul_f32 v{24+r}, v{24+r}, v28')
    A(f'v_add_f32_dpp v29, v29, v29 row_ror:8 {DPP}')
    A('v_permlane32_swap_b32 v24, v26')
    A('v_permlane32_swap_b32 v25, v27')
    A('v_mov_b32 v31, v29')
    A('v_add_f32 v24, v24, v26')
    A('v_add_f32 v25, v25, v27')
    A('v_permlane16_swap_b32 v29, v31')
    A('v_add_f32 v29, v29, v31')
    A('v_permlane16_swap_b32 v24, v25')
    A('v_mov_b32 v31, v29')
    A('v_add_f32 v24, v24, v25')
    A('v_permlane32_swap_b32 v29, v31')
    A('v_add_f32 v29, v29, v31')
    A(f'v_add_f32_dpp v24, v24, v24 row_ror:8 {DPP}')
    A('v_rcp_f32 v29, v29')
    A('v_mul_f32 v24, v24, v29')
    A('v_cvt_pk_bf16_f32 v24, v24, v24')
    A(f'ds_write_b32 v{vTw}, v24 offset:{L_T2}')
    A('s_waitcnt lgkmcnt(0)')
    A('s_barrier')
    A('L_proj:')
    for q in range(4): A(f'ds_read_b128 {v4(24+4*q)}, v{vXr} offset:{L_T2 + q*16}')
    A(f's_cmp_eq_u32 s{sA}, 3')
    A('s_cbranch_scc1 L_proj3')
    for tail in (0, 1):
        if tail: A('L_proj3:')
        def pmf(t):
            A(f'v_mfma_f32_16x16x32_bf16 {v4(acc)}, {v4(40 + 4*(t&3))}, {v4(WOR+4*t)}, {v4(acc)}')
            if tail: A(f'v_mfma_f32_16x16x32_bf16 {v4(56 + 4*(t&1))}, {v4(40 + 4*(t&3))}, {v4(WOT+4*(t>>1))}, {v4(56 + 4*(t&1))}')
        for t in range(16):
            if t % 4 == 0: A(f's_waitcnt lgkmcnt({3 - t//4})')
            mkA(40 + 4*(t & 3), 24 + t)
            if t >= 1: pmf(t - 1)
        pmf(15)
        publish(acc, vPub, sPub)
        if tail:
            for r in range(4):
                A(f'v_add_f32_dpp v{56+r}, v{60+r}, v{56+r} row_ror:8 {DPP}')
            publish(56, vPub, sPub2, sLo8)
        stamp(5)
        endpgm()

    A('L_side:')
    A('s_setprio 3')
    XR = 24
    XF = 136
    WQ = 64
    A(f's_mov_b32 s{sA}, 4')
    A('v_lshrrev_b32 v1, 5, v0')
    A('v_mul_u32_u24 v1, 1152, v1')
    A('v_and_b32 v2, 31, v0')
    A('v_lshl_add_u32 v1, v2, 2, v1')
    off8(3, 8192)
    A(f's_lshl_b32 s{sT0}, s{sB}, 3')
    A(f's_add_u32 s{sT0}, s{sT0}, s{sJ}')
    A(f's_lshr_b32 s{sT1}, s{sT0}, 2')
    A(f's_and_b32 s{sT0}, s{sT0}, 3')
    A(f's_mul_i32 s{sT2}, s{sT1}, {144*8192}')
    A(f's_lshl_b32 s{sOff}, s{sH}, 9')
    A(f's_add_u32 s{sT2}, s{sT2}, s{sOff}')
    A(f's_lshl_b32 s{sOff}, s{sT0}, 7')
    A(f's_add_u32 s{sT2}, s{sT2}, s{sOff}')
    A(f's_mul_i32 s{sXoff}, s{sG}, {CNT_STRIDE}')
    A(f's_add_u32 s{sXoff}, s{sXoff}, {WS_CNT}')
    A(f's_cmp_eq_u32 s{sJ}, 0')
    A(f's_cselect_b32 s{sCnt}, s{sXoff}, {WS_SIZE}')
    A('v_mov_b32 v35, 0')
    A('s_waitcnt lgkmcnt(0)')
    mk_srd(rWS, sWSP, None, WS_SIZE)
    A(f'buffer_store_dword v35, off, {srd(rWS)}, s{sCnt} sc1')
    mk_srd(rB, sX, None, 2304)
    for n in range(9): A(f'buffer_load_dword v{XR+n}, v1, {srd(rB)}, 0 offen offset:{n*128}')
    A(f'buffer_load_dword v33, off, {srd(rWS)}, 0 sc1')
    mk_srd(rA, sWQ, sT2, f's_sub_u32 s{rA+2}, {576*8192}, s{sT2}')
    A(f's_mov_b32 s{sOff}, 0')
    for u in range(18):
        A(f'buffer_load_dwordx4 {v4(WQ+4*u)}, v3, {srd(rA)}, s{sOff} offen {wflags}')
        if u < 17: A(f's_add_u32 s{sOff}, s{sOff}, 65536')
    stamp(0)
    consts()
    A('v_lshlrev_b32 v1, 2, v0')
    A(f'ds_write_b32 v1, v35 offset:{L_PG}')
    for i in range(4): A(f'ds_write_b32 v1, v35 offset:{L_TQ + 256*i}')
    A(f's_lshl_b32 s{sCnt}, s{sJ}, 9')
    A(f's_add_u32 s{sCnt}, s{sCnt}, 1')
    A(f'v_lshl_add_u32 v36, v0, 17, s{sCnt}')
    A('v_lshl_add_u32 v36, v0, 24, v36')
    A('v_or_b32 v37, 2, v36')
    A(f's_mov_b32 exec_hi, 0x{(1 << (NC - 32)) - 1:x}')
    A(f'ds_write_b32 v1, v36 offset:{L_TQ}')
    A(f'ds_write_b32 v1, v37 offset:{L_TQ + 4*NC}')
    A('s_mov_b64 exec, -1')
    A('v_and_b32 v1, 1, v0')
    A('v_lshlrev_b32 v1, 2, v1')
    A('v_lshrrev_b32 v2, 5, v0')
    A('v_add_u32 v1, v1, v2')
    A('v_mul_u32_u24 v1, 576, v1')
    A('v_bfe_u32 v2, v0, 1, 4')
    A('v_lshl_add_u32 v1, v2, 2, v1')
    A('v_lshrrev_b32 v3, 3, v0')
    A('v_mul_u32_u24 v3, 576, v3')
    A(f's_mul_i32 s{sT2}, s{sT1}, 144')
    A(f'v_add_u32 v3, s{sT2}, v3')
    A('v_lshrrev_b32 v34, 5, v0')
    A('v_lshlrev_b32 v34, 12, v34')
    A('v_and_b32 v2, 7, v0')
    A('v_lshl_add_u32 v34, v2, 5, v34')
    A('v_and_b32 v2, 16, v0')
    A('v_add_u32 v34, v34, v2')
    A(f's_lshl_b32 s{sT2}, s{sH}, 13')
    A(f's_lshl_b32 s{sT1}, s{sT1}, 10')
    A(f's_add_u32 s{sT2}, s{sT2}, s{sT1}')
    A(f's_lshl_b32 s{sT0}, s{sT0}, 8')
    A(f's_add_u32 s{sT2}, s{sT2}, s{sT0}')
    A(f's_add_u32 s{sT2}, s{sT2}, {WS_QP}')
    A('s_waitcnt vmcnt(18)')
    stamp(1)
    A(f'v_readfirstlane_b32 s{sT0}, v33')
    A(f'ds_write_b32 v35, v33 offset:{L_TAG}')
    for n in range(9):
        A(f'v_lshlrev_b32 v{XF+2*n}, 16, v{XR+n}')
        A(f'v_and_b32 v{XF+2*n+1}, 0xffff0000, v{XR+n}')
    mk_tags(sT0)
    A(f'v_add_f32 v8, v{XF}, v{XF+1}')
    A(f'v_add_f32 v9, v{XF+2}, v{XF+3}')
    for i in range(4, 18, 2):
        A(f'v_add_f32 v8, v8, v{XF+i}')
        A(f'v_add_f32 v9, v9, v{XF+i+1}')
    A('v_add_f32 v8, v8, v9')
    row_sum16(8)
    xor16('v_add_f32', 8, 9)
    A(f'v_mul_f32 v8, {f32(1/576)}, v8')
    A(f'v_sub_f32 v12, v{XF}, v8')
    A(f'v_sub_f32 v13, v{XF+1}, v8')
    A('v_mul_f32 v10, v12, v12')
    A('v_mul_f32 v11, v13, v13')
    for i in range(2, 18, 2):
        A(f'v_sub_f32 v12, v{XF+i}, v8')
        A(f'v_sub_f32 v13, v{XF+i+1}, v8')
        A('v_fmac_f32 v10, v12, v12')
        A('v_fmac_f32 v11, v13, v13')
    A('v_add_f32 v10, v10, v11')
    row_sum16(10)
    xor16('v_add_f32', 10, 9)
    A(f'v_mul_f32 v10, {f32(1/576)}, v10')
    rnd_bf16(8, 8)
    rnd_bf16(10, 10)
    A(f'v_add_f32 v10, {f32(1e-5)}, v10')
    rnd_bf16(10, 10)
    A('v_sqrt_f32 v10, v10')
    rnd_bf16(10, 10)
    A('v_rcp_f32 v10, v10')
    for n in range(9):
        a, b = XF + 2*n, XF + 2*n + 1
        A(f'v_sub_f32 v{a}, v{a}, v8')
        A(f'v_sub_f32 v{b}, v{b}, v8')
        A(f'v_cvt_pk_bf16_f32 v{b}, v{a}, v{b}')
        A(f'v_lshlrev_b32 v{a}, 16, v{b}')
        A(f'v_and_b32 v{b}, 0xffff0000, v{b}')
        A(f'v_mul_f32 v{a}, v{a}, v10')
        A(f'v_mul_f32 v{b}, v{b}, v10')
        A(f'v_cvt_pk_bf16_f32 v{a}, v{a}, v{a}')
        A(f'v_cvt_pk_bf16_f32 v{b}, v{b}, v{b}')
        A(f'ds_write_b32 v1, v{a} offset:{L_T + n*64}')
        A(f'ds_write_b32 v1, v{b} offset:{L_T + 1152 + n*64}')
    A('s_waitcnt lgkmcnt(0)')
    for q in range(9): A(f'ds_read_b128 {v4(XF+4*q)}, v3 offset:{L_T + q*16}')
    for r in range(8): A(f'v_mov_b32 v{8+r}, 0')
    def qmf(u):
        b0 = 40 + 8*(u & 1)
        A(f'v_mfma_f32_16x16x32_bf16 v[8:11], {v4(b0)}, {v4(WQ+4*u)}, v[8:11]')
        A(f'v_mfma_f32_16x16x32_bf16 v[12:15], {v4(b0+4)}, {v4(WQ+4*u)}, v[12:15]')
    for u in range(18):
        if u % 2 == 0: A(f's_waitcnt lgkmcnt({8 - u//2})')
        b0 = 40 + 8*(u & 1)
        mkA(b0, XF + 2*u)
        mkA(b0 + 4, XF + 2*u + 1)
        if u >= 1:
            if (u - 1) % 6 == 0: A(f's_waitcnt vmcnt({12 - (u-1)})')
            qmf(u - 1)
    qmf(17)
    for r in range(4):
        A(f'v_add_f32_dpp v{8+r}, v{12+r}, v{8+r} row_ror:8 {DPP}')
    publish(8, 34, sT2, sLo8)
    stamp(2)
    A('v_mov_b32 v172, v37')
    roles()
    mk_srd(rO, sOUT, None, 2304)
    A(f's_lshl_b32 s{sT2}, s{sH}, 1')
    A(f's_add_u32 s{sT2}, s{sT2}, s{sB}')
    A(f's_lshl_b32 s{sT2}, s{sT2}, 12')
    A(f's_add_u32 s{sT2}, s{sT2}, {WS_QP}')
    A('v_lshlrev_b32 v1, 4, v0')
    A('v_lshlrev_b32 v3, 3, v0')
    if qsleep:
        A('s_waitcnt vmcnt(0)')
        A(f's_sleep {qsleep}')
    A('L_q_poll:')
    if qsleep2: A(f's_sleep {qsleep2}')
    for i in range(4):
        A(f'buffer_load_dwordx4 {v4(64+4*i)}, v1, {srd(rWS)}, s{sT2} offen offset:{i*1024} {ldf}')
    A('s_waitcnt vmcnt(0)')
    check_tags(quads(64, 4), 8, 9, 'L_q_poll', 'L_q')
    for i in range(16): A(f'v_and_b32 v{64+i}, -16, v{64+i}')
    for r in range(4):
        A(f'v_add_f32 v{64+r}, v{64+r}, v{68+r}')
        A(f'v_add_f32 v{72+r}, v{72+r}, v{76+r}')
    for r in range(4): A(f'v_add_f32 v{64+r}, v{64+r}, v{72+r}')
    A('v_cvt_pk_bf16_f32 v8, v64, v65')
    A('v_cvt_pk_bf16_f32 v9, v66, v67')
    A(f'ds_write_b64 v3, v[8:9] offset:{L_Q}')
    A('s_waitcnt lgkmcnt(0)')
    stamp(3)
    A('s_barrier')
    A('s_setprio 0')
    q_addr()
    A(f'ds_read_b128 {v4(vQ)}, v1 offset:{L_Q}')
    A(f'v_lshlrev_b32 v1, 4, v0')
    A(f'v_add_u32 v1, {L_KV}, v1')
    A(f'v_and_b32 v{vSb}, 0x38, v0')
    A(f's_mov_b32 s{sCnt}, 0')
    A('L_cu_loop:')
    for n in range(4): A(f'ds_read_b128 {v4(BUF[0]+4*n)}, v1 offset:{n*1024}')
    A('v_add_u32 v1, 4096, v1')
    A(f's_and_b32 s{sT1}, s{sCnt}, 3')
    A(f's_lshl_b32 s{sT1}, s{sT1}, 12')
    A(f's_lshr_b32 s{sT2}, s{sCnt}, 2')
    A(f's_add_u32 s{sT2}, s{sT2}, {NC}')
    A(f's_lshl_b32 s{sT2}, s{sT2}, 6')
    A(f's_add_u32 s{sT1}, s{sT1}, s{sT2}')
    A(f'v_add_u32 v{vSa}, s{sT1}, v{vSb}')
    A('s_waitcnt lgkmcnt(0)')
    for c in k_parts(BUF[0]): c()
    A(f's_add_u32 s{sCnt}, s{sCnt}, 1')
    A(f's_cmp_lg_u32 s{sCnt}, 32')
    A('s_cbranch_scc1 L_cu_loop')
    A('v_lshlrev_b32 v1, 2, v0')
    A('s_waitcnt lgkmcnt(0)')
    A('s_mov_b32 exec_lo, 0')
    A(f's_mov_b32 exec_hi, 0x{0xff << (NC - 32):x}')
    A(f'ds_write_b32 v1, v172 offset:{L_TQ + 4*NC}')
    A('s_mov_b64 exec, -1')
    stamp(7)
    A(f's_cmp_lg_u32 s{sRole}, 1')
    A('s_cbranch_scc1 L_agent')
    A(f's_lshl_b32 s{sT1}, s{sUnit}, 7')
    mk_srd(rA, sWG, sT1, f's_sub_u32 s{rA+2}, {576*9216}, s{sT1}')
    mk_srd(rB, sWU, sT1, f's_sub_u32 s{rB+2}, {576*9216}, s{sT1}')
    off8(3, 9216)
    GB = [64, 80]
    def ffn_ld(buf):
        A(f'buffer_load_dwordx4 {v4(GB[buf])}, v3, {srd(rA)}, s{sOff} offen {wflags}')
        A(f'buffer_load_dwordx4 {v4(GB[buf]+4)}, v3, {srd(rB)}, s{sOff} offen {wflags}')
        A(f's_add_u32 s{sOff}, s{sOff}, {8*9216}')
        A(f'buffer_load_dwordx4 {v4(GB[buf]+8)}, v3, {srd(rA)}, s{sOff} offen {wflags}')
        A(f'buffer_load_dwordx4 {v4(GB[buf]+12)}, v3, {srd(rB)}, s{sOff} offen {wflags}')
        A(f's_add_u32 s{sOff}, s{sOff}, {8*9216}')
    A(f's_mov_b32 s{sOff}, 0')
    ffn_ld(0)
    FA = 24
    for r in range(16): A(f'v_mov_b32 v{FA+r}, 0')
    A('v_lshrrev_b32 v1, 3, v0')
    A('v_mul_u32_u24 v1, 576, v1')
    A(f's_mov_b32 s{sCnt}, 18')
    A('L_ffn_loop:')
    for buf in range(2):
        ffn_ld(1 - buf)
        A(f'ds_read_b128 v[8:11], v1 offset:{L_T + buf*16}')
        A(f's_waitcnt vmcnt({ffnw}) lgkmcnt(0)')
        for uu in range(2):
            mkA(56, 8 + 2*uu)
            mkA(60, 9 + 2*uu)
            g = GB[buf] + 8*uu
            A(f'v_mfma_f32_16x16x32_bf16 {v4(FA)}, v[56:59], {v4(g)}, {v4(FA)}')
            A(f'v_mfma_f32_16x16x32_bf16 {v4(FA+4)}, v[60:63], {v4(g)}, {v4(FA+4)}')
            A(f'v_mfma_f32_16x16x32_bf16 {v4(FA+8)}, v[56:59], {v4(g+4)}, {v4(FA+8)}')
            A(f'v_mfma_f32_16x16x32_bf16 {v4(FA+12)}, v[60:63], {v4(g+4)}, {v4(FA+12)}')
    A('v_add_u32 v1, 32, v1')
    A(f's_sub_u32 s{sCnt}, s{sCnt}, 1')
    A(f's_cmp_lg_u32 s{sCnt}, 0')
    A('s_cbranch_scc1 L_ffn_loop')
    A('v_lshrrev_b32 v1, 5, v0')
    A('v_lshlrev_b32 v1, 7, v1')
    A('v_and_b32 v2, 7, v0')
    A('v_lshl_add_u32 v1, v2, 3, v1')
    A('v_bfe_u32 v2, v0, 4, 1')
    A('v_lshl_add_u32 v1, v2, 2, v1')
    for r in range(4):
        A(f'v_add_f32_dpp v{FA+r}, v{FA+4+r}, v{FA+r} row_ror:8 {DPP}')
        A(f'v_add_f32_dpp v{FA+8+r}, v{FA+12+r}, v{FA+8+r} row_ror:8 {DPP}')
    for r in range(4):
        rnd_bf16(FA+r, FA+r)
        rnd_bf16(FA+8+r, FA+8+r)
        silu(FA+r, FA+r, FA+4+r)
        rnd_bf16(FA+r, FA+r)
        A(f'v_mul_f32 v{FA+r}, v{FA+r}, v{FA+8+r}')
        A(f'v_cvt_pk_bf16_f32 v{FA+r}, v{FA+r}, v{FA+r}')
    A(f's_mov_b64 exec, s[{sLo8}:{sLo8+1}]')
    for r in range(4): A(f'ds_write_b32 v1, v{FA+r} offset:{L_T2 + r*256}')
    A('s_mov_b64 exec, -1')
    A('L_agent:')
    stamp(4)
    A('v_mov_b32 v1, 0')
    A(f's_mov_b32 s{sCnt}, {NC*8 + 32}')
    A(f's_mov_b32 s{sAoff}, {NP}')
    A(f's_cmp_eq_u32 s{sRole}, 1')
    A(f's_cselect_b32 s{sAoff}, {NP - THF}, s{sAoff}')
    A(f's_cmp_eq_u32 s{sRole}, 3')
    A(f's_cselect_b32 s{sAoff}, {NP - THO}, s{sAoff}')
    A('L_ag_wait:')
    A('s_sleep 2')
    A(f'ds_read_b128 v[8:11], v1 offset:{L_PG}')
    A(f's_sub_u32 s{sT1}, s{sCnt}, {4*lead}')
    A('s_waitcnt lgkmcnt(0)')
    A(f'v_{trig}3_u32 v8, v8, v9, v10')
    A(f'v_{trig}_u32 v8, v8, v11')
    A(f'v_cmp_gt_u32 vcc, s{sT1}, v8')
    spin_check('L_ag_wait', 'L_ag')
    A('v_mov_b32 v8, 1')
    A('s_mov_b64 exec, 1')
    A(f'buffer_atomic_add v8, off, {srd(rWS)}, s{sXoff} sc0')
    A('s_mov_b64 exec, -1')
    A(f'v_mov_b32 v9, s{sCnt}')
    A('s_waitcnt vmcnt(0)')
    A(f'v_readfirstlane_b32 s{sT1}, v8')
    A(f's_add_u32 s{sCnt}, s{sCnt}, 8')
    A(f's_min_u32 s{sT1}, s{sT1}, {NP}')
    A(f's_add_u32 s{sT2}, s{sT1}, {(NC + 8)*8}')
    A(f's_and_b32 s{sF0}, s{sT2}, 7')
    A(f's_lshl_b32 s{sF0}, s{sF0}, 9')
    A(f's_lshr_b32 s{sT2}, s{sT2}, 3')
    A(f's_lshl_b32 s{sT2}, s{sT2}, 17')
    A(f's_add_u32 s{sT2}, s{sT2}, s{sF0}')
    A(f's_add_u32 s{sT2}, s{sT2}, {(63 << 24) + 1}')
    A(f'v_mov_b32 v10, s{sT2}')
    A('v_or_b32 v11, 2, v10')
    A(f'ds_write_b64 v9, v[10:11] offset:{L_TQ}')
    A(f's_cmp_lt_u32 s{sT1}, s{sAoff}')
    A('s_cbranch_scc1 L_ag_wait')
    A(f'v_mov_b32 v10, {(63 << 24) + (1 << 23) + 1}')
    A('v_or_b32 v11, 2, v10')
    A(f'ds_write_b64 v9, v[10:11] offset:{L_TQ + 8}')
    A('s_waitcnt lgkmcnt(0)')
    stamp(8)
    if codepf & 2:
        A(f's_getpc_b64 s[{sP}:{sP+1}]')
        A('L_pcref:')
        A(f's_sub_u32 s{sP}, s{sP}, L_pcref-L_loop_done')
        A(f's_subb_u32 s{sP+1}, s{sP+1}, 0')
        A('v_lshlrev_b32 v1, 4, v0')
        for i in range(4): A(f'global_load_dwordx4 v[224:227], v1, s[{sP}:{sP+1}] offset:{i*1024}')
    A(f's_cmp_lg_u32 s{sRole}, 2')
    A(f's_cbranch_scc1 {LEND}')
    A('s_setprio 3')
    A('L_red:')
    mk_srd(rB, sX, None, 2304)
    A('v_and_b32 v18, 3, v0')
    A('v_lshlrev_b32 v18, 2, v18')
    A('v_lshrrev_b32 v2, 4, v0')
    A('v_add_lshl_u32 v18, v18, v2, 1')
    A(f's_lshl_b32 s{sCnt}, s{sUnit}, 5')
    A(f'buffer_load_ushort v19, v18, {srd(rB)}, s{sCnt} offen')
    A(f's_lshr_b32 s{sT1}, s{sUnit}, 1')
    A(f's_and_b32 s{sT2}, s{sUnit}, 1')
    A(f's_lshl_b32 s{sT2}, s{sT2}, 6')
    A(f's_mul_i32 s{sOff}, s{sT1}, {72*128}')
    A(f's_add_u32 s{sOff}, s{sOff}, s{sT2}')
    A(f's_add_u32 s{sOff}, s{sOff}, {WS_DP}')
    A(f's_lshl_b32 s{sT1}, s{sT1}, 13')
    A(f's_add_u32 s{sT1}, s{sT1}, s{sT2}')
    A(f's_add_u32 s{sT1}, s{sT1}, {WS_SP}')
    A('v_lshrrev_b32 v1, 2, v0')
    A('v_lshlrev_b32 v1, 7, v1')
    A('v_and_b32 v2, 3, v0')
    A('v_lshl_add_u32 v1, v2, 4, v1')
    A('v_add_u32 v2, 4096, v1')
    A('v_and_b32 v3, 0x3ff, v1')
    A('v_add_u32 v3, 8192, v3')
    A(f's_mov_b32 s{sP}, 0x000f000f')
    A(f's_mov_b32 s{sP+1}, 0x000f000f')
    A('s_barrier')
    def sum_red(b, n):
        for r in range(4):
            A(f'v_add_f32 v{b+r}, v{b+r}, v{b+4+r}')
            A(f'v_add_f32 v{b+8+r}, v{b+8+r}, v{b+12+r}')
        if n == 5:
            for r in range(4): A(f'v_add_f32 v{b+r}, v{b+r}, v{b+16+r}')
        for r in range(4): A(f'v_add_f32 v{b+r}, v{b+r}, v{b+8+r}')
        rscatter4(b)
        A(f'v_add_f32_dpp v{b}, v{b}, v{b} row_ror:4 {DPP}')
        A(f'v_add_f32_dpp v{b}, v{b}, v{b} row_ror:8 {DPP}')
    def sp_loads():
        for i in range(4):
            A(f'buffer_load_dwordx4 {v4(64+4*i)}, v{1 + i//2}, {srd(rWS)}, s{sT1} offen offset:{(i&1)*2048} {ldf}')
    A('L_dp_poll:')
    for i in range(5):
        A(f'buffer_load_dwordx4 {v4(84+4*i)}, v{1 + i//2}, {srd(rWS)}, s{sOff} offen offset:{(i&1)*2048} {ldf}')
    sp_loads()
    A('s_waitcnt vmcnt(4)')
    check_tags(quads(84, 5), 8, 9, 'L_dp_poll', 'L_dp')
    for r in range(4): A(f'v_cndmask_b32 v{100+r}, v{100+r}, 0, s[{sHi}:{sHi+1}]')
    sum_red(84, 5)
    rnd_bf16(24, 84)
    silu(24, 24, 26)
    rnd_bf16(24, 24)
    A('v_lshlrev_b32 v26, 16, v19')
    stamp(5)
    A('s_branch L_sp_chk')
    A('L_sp_poll:')
    sp_loads()
    A('L_sp_chk:')
    A('s_waitcnt vmcnt(0)')
    check_tags(quads(64, 4), 8, 9, 'L_sp_poll', 'L_sp')
    stamp(6)
    sum_red(64, 4)
    rnd_bf16(28, 64)
    A('v_mul_f32 v28, v28, v24')
    rnd_bf16(28, 28)
    A('v_add_f32 v28, v28, v26')
    A('v_cvt_pk_bf16_f32 v28, v28, v28')
    A(f's_mov_b64 exec, s[{sP}:{sP+1}]')
    A(f'buffer_store_short v28, v18, {srd(rO)}, s{sCnt} offen')
    A(f's_cmp_lg_u32 s{sUnit}, 0')
    A(f's_cbranch_scc1 {LEND}')
    A('s_mov_b64 exec, 1')
    A(f'v_mov_b32 v1, s{sTg}')
    A(f'buffer_store_dword v1, off, {srd(rWS)}, 0')
    if stamps:
        A('L_exit:')
        A('s_mov_b64 exec, 1')
        A(f's_mul_i32 s{sSt}, s2, 5')
        A(f's_add_u32 s{sSt}, s{sSt}, s{sWave}')
        A(f's_lshl_b32 s{sSt}, s{sSt}, 6')
        A(f's_add_u32 s{sSt}, s{sSt}, {WS_ST}')
        for q in range(3):
            for r in range(4):
                i = 4*q + r
                A(f'v_mov_b32 v{224+i}, ' + (f's{sSt+2+i}' if i < 10 else (f'v{vTQ}' if i == 10 else '0')))
            A(f'buffer_store_dwordx4 {v4(224+4*q)}, off, {srd(rWS)}, s{sSt} offset:{16*q}')
    A('L_end:')
    A('s_endpgm')
    A('.fill 1024, 4, 0xbf810000')

    body = A.finish()
    out = HEADER
    out += f'; @launch grid=(256,1,1) block=(320,1,1) lds={LDS_BYTES}\n'
    out += '.amdgcn_target "amdgcn-amd-amdhsa--gfx950"\n.text\n'
    out += f'.globl {KNAME}\n.p2align 8\n.type {KNAME},@function\n'
    out += body
    out += f'''.section .rodata,"a"
.p2align 6
.amdhsa_kernel {KNAME}
  .amdhsa_next_free_vgpr 240
  .amdhsa_next_free_sgpr 100
  .amdhsa_accum_offset 240
  .amdhsa_group_segment_fixed_size 0
  .amdhsa_kernarg_size 96
  .amdhsa_user_sgpr_count 2
  .amdhsa_user_sgpr_kernarg_segment_ptr 1
  .amdhsa_system_sgpr_workgroup_id_x 1
  .amdhsa_float_denorm_mode_32 3
.end_amdhsa_kernel
'''
    return out

if __name__ == '__main__':
    import argparse
    ap = argparse.ArgumentParser()
    ap.add_argument('-o', default='k.s')
    ap.add_argument('-W', default='5555')
    ap.add_argument('--Wp', type=int, default=6)
    ap.add_argument('--NC', type=int, default=48)
    ap.add_argument('--lead', type=int, default=3)
    ap.add_argument('--rdpos', type=int, default=2)
    ap.add_argument('--vsched', default='0,0,1')
    ap.add_argument('--ffnw', type=int, default=2)
    ap.add_argument('--THO', type=int, default=8)
    ap.add_argument('--trig', default='min')
    ap.add_argument('--prio', type=int, default=1)
    ap.add_argument('--slabpos', type=int, default=1)
    ap.add_argument('--stf', default='sc1')
    ap.add_argument('--ldf', default='sc1')
    ap.add_argument('--THF', type=int, default=8)
    ap.add_argument('--stamps', action='store_true')
    ap.add_argument('--codepf', type=int, default=0)
    ap.add_argument('--qsleep', type=int, default=30)
    ap.add_argument('--qsleep2', type=int, default=8)
    ap.add_argument('--abl', default='')
    a = ap.parse_args()
    open(a.o, 'w').write(gen(W=tuple(int(c) for c in a.W), Wp=a.Wp, stamps=a.stamps, codepf=a.codepf,
                             qsleep=a.qsleep, qsleep2=a.qsleep2, abl=a.abl, NC=a.NC, lead=a.lead, rdpos=a.rdpos,
                             vsched=tuple(int(x) for x in a.vsched.split(',')), ffnw=a.ffnw, THO=a.THO, THF=a.THF, trig=a.trig, prio=a.prio, slabpos=a.slabpos, stf=a.stf, ldf=a.ldf))
```

```python
import sys, struct
from asmlib import Asm

KNAME = 'recurrent_scan__gqa_block_cached__swiglu_ffn__decode_kernel'
def f32(x): return '0x%08x' % struct.unpack('<I', struct.pack('<f', x))[0]

WS_EPOCH = 0x0
WS_CNT = 0x1000
CNT_STRIDE = 4352
WS_QP = 0x40000
WS_AP = 0x60000
WS_AML = 0xA0000
WS_SP = 0xB0000
WS_DP = 0x100000
WS_ST = 0x200000
WS_SIZE = 0x400000
L_T = 0
L_Q = 4608
L_T2 = 5120
L_XO = 6144
L_XM = 10240
L_TAG = 10304
L_PG = 10320
L_TQ = 10368
L_SC = 11392
L_KV = 27776
LDS_BYTES = L_KV + 131072
SLAB = 64 * 1152

HEADER = open('recurrent_scan__gqa_block_cached__swiglu_ffn__decode.s.ref').read().split('; Override launch')[0]

def gen(W=(5,5,5,5), Wp=6, stamps=False, kvflags='nt', wflags='nt', NC=54, codepf=4, qsleep=10, qsleep2=4,
        abl='', lead=3, rdpos=2, vsched=(0,0,1), ffnw=2, THO=13, THF=10, trig='min', prio=1, slabpos=1, stf='sc1', ldf='sc1', WV=None, EXF=0, WpF=6, bar1=1, epf='sc1'):
    NPB = 512 - 8*NC - 64
    LF = 8 - EXF
    assert LF in (4, 8)
    NP = NPB + 3*LF
    assert NC + 8 <= 63 and 2*NC + 8 + 2*NP + 4 <= 256 and all(4 <= x <= 8 for x in W)
    IOFF = [0, 256, 0, 256]
    A = Asm()
    sX, sK, sV, sWQ, sWO, sWG, sWU, sWD, sOUT, sDBG, sWSP = 4, 6, 8, 10, 12, 16, 18, 20, 22, 24, 26
    rI, rS, rWS, rA, rB, rO = 28, 32, 36, 40, 44, 48
    sWave, sG, sJ, sB, sH, sRole, sUnit, sOff, sCnt, sT0, sT1, sT2 = 3, 52, 53, 54, 55, 56, 57, 58, 59, 60, 61, 62
    sScale, sLog2e, sNLog2e, sSpin = 63, 64, 65, 66
    sA = 67
    sHi = 68
    sLo8 = 70
    sF0, sF1 = 72, 73
    sAoff, sXoff = 74, 75
    sTg = 76
    sP = 80
    sAP, sAML = 82, 83
    sSt = 84
    sE = [96, 97, 98]
    sOff2 = 99
    sPub2 = 15
    sPub = 14
    sKb, sVb = 4, 6
    def srd(r): return f's[{r}:{r+3}]'
    def v4(r): return f'v[{r}:{r+3}]'
    def v2(r): return f'v[{r}:{r+1}]'
    def stamp(idx):
        if not stamps: return
        A(f's_memrealtime s[{sSt}:{sSt+1}]')
        A('s_waitcnt lgkmcnt(0)')
        A(f's_mov_b32 s{sSt+2+idx}, s{sSt}')
    def endpgm():
        A('s_branch L_exit' if stamps else 's_endpgm')
    LEND = 'L_exit' if stamps else 'L_end'

    def mk_srd(r, base, off_sgpr, size):
        if off_sgpr is None:
            A(f's_mov_b32 s{r}, s{base}')
            A(f's_mov_b32 s{r+1}, s{base+1}')
        else:
            A(f's_add_u32 s{r}, s{base}, s{off_sgpr}')
            A(f's_addc_u32 s{r+1}, s{base+1}, 0')
        if isinstance(size, int): A(f's_mov_b32 s{r+2}, {size}')
        else: A(size)
        A(f's_mov_b32 s{r+3}, 0x20000')
    def xor16(op, x, t):
        A(f'v_mov_b32 v{t}, v{x}')
        A(f'v_permlane16_swap_b32 v{x}, v{t}')
        A(f'{op} v{x}, v{x}, v{t}')
    def xor32(op, x, t):
        A(f'v_mov_b32 v{t}, v{x}')
        A(f'v_permlane32_swap_b32 v{x}, v{t}')
        A(f'{op} v{x}, v{x}, v{t}')
    DPP = 'row_mask:0xf bank_mask:0xf'
    def row_sum16(x):
        A(f'v_add_f32_dpp v{x}, v{x}, v{x} quad_perm:[1,0,3,2] {DPP}')
        A(f'v_add_f32_dpp v{x}, v{x}, v{x} quad_perm:[2,3,0,1] {DPP}')
        A(f'v_add_f32_dpp v{x}, v{x}, v{x} row_half_mirror {DPP}')
        A(f'v_add_f32_dpp v{x}, v{x}, v{x} row_mirror {DPP}')
    def rscatter4(x):
        A(f'v_permlane32_swap_b32 v{x}, v{x+2}')
        A(f'v_permlane32_swap_b32 v{x+1}, v{x+3}')
        A(f'v_add_f32 v{x}, v{x}, v{x+2}')
        A(f'v_add_f32 v{x+1}, v{x+1}, v{x+3}')
        A(f'v_permlane16_swap_b32 v{x}, v{x+1}')
        A(f'v_add_f32 v{x}, v{x}, v{x+1}')
    def rnd_bf16(dst, src):
        A(f'v_cvt_pk_bf16_f32 v{dst}, v{src}, v{src}')
        A(f'v_and_b32 v{dst}, 0xffff0000, v{dst}')
    def mkA(dst, x):
        for w in range(4):
            A(f'v_and_b32 v{dst+w}, v{x}, v{4+w}')
    def spin_check(retry_label, name):
        A(f's_cbranch_vccz {name}_ok')
        A(f's_sub_u32 s{sSpin}, s{sSpin}, 1')
        A(f's_cmp_gt_i32 s{sSpin}, 0')
        A(f's_cbranch_scc1 {retry_label}')
        A(f'{name}_ok:')
    def tag_vcc(words, t0, t1):
        acc_ = [t0, t1]
        for i, (w, tg) in enumerate(words):
            if i < 2: A(f'v_xor_b32 v{acc_[i]}, s{tg}, v{w}')
            else: A(f'v_bitop3_b32 v{acc_[i&1]}, v{w}, s{tg}, v{acc_[i&1]} bitop3:0xbe')
        A(f'v_bitop3_b32 v{t0}, v{t0}, v{t1}, 15 bitop3:0xa8')
        A(f'v_cmp_ne_u32 vcc, 0, v{t0}')
    def check_tags(words, t0, t1, retry_label, name):
        tag_vcc(words, t0, t1)
        spin_check(retry_label, name)
    def quads(base, n): return [(base + i, sTg + (i & 3)) for i in range(4*n)]
    def silu(dst, x, t):
        A(f'v_mul_f32 v{t}, s{sNLog2e}, v{x}')
        A(f'v_exp_f32 v{t}, v{t}')
        A(f'v_add_f32 v{t}, 1.0, v{t}')
        A(f'v_rcp_f32 v{t}, v{t}')
        A(f'v_mul_f32 v{dst}, v{x}, v{t}')
    def tagq(dst, src):
        for r in range(4): A(f'v_bfi_b32 v{dst+r}, 15, s{sTg+r}, v{src+r}')
    def publish(vals, voff, soff, mask=None):
        tagq(vals, vals)
        if mask: A(f's_mov_b64 exec, s[{mask}:{mask+1}]')
        A(f'buffer_store_dwordx4 {v4(vals)}, v{voff}, {srd(rWS)}, s{soff} offen {stf}')
        if mask: A('s_mov_b64 exec, -1')
    def mk_tags(src):
        A(f's_add_u32 s{sTg}, s{src}, 1')
        A(f's_add_u32 s{sTg+1}, s{src}, 6')
        A(f's_add_u32 s{sTg+2}, s{src}, 11')
        A(f's_add_u32 s{sTg+3}, s{src}, 14')
    def off8(dst, stride, t=2):
        A(f'v_lshrrev_b32 v{dst}, 4, v0')
        A(f'v_bfe_u32 v{t}, v0, 3, 1')
        A(f'v_lshl_add_u32 v{dst}, v{t}, 2, v{dst}')
        A(f'v_mul_u32_u24 v{dst}, {stride}, v{dst}')
        A(f'v_and_b32 v{t}, 7, v0')
        A(f'v_lshl_add_u32 v{dst}, v{t}, 4, v{dst}')
    def off4(dst, stride, t=2):
        A(f'v_lshrrev_b32 v{dst}, 4, v0')
        A(f'v_mul_u32_u24 v{dst}, {stride}, v{dst}')
        A(f'v_and_b32 v{t}, 15, v0')
        A(f'v_lshl_add_u32 v{dst}, v{t}, 4, v{dst}')
    def consts():
        A(f's_mov_b32 s{sScale}, {f32(128 ** -0.5)}')
        A(f's_mov_b32 s{sLog2e}, {f32(1.4426950408889634)}')
        A(f's_mov_b32 s{sNLog2e}, {f32(-1.4426950408889634)}')
        A(f's_mov_b32 s{sSpin}, 0x40000')
        A(f's_mov_b32 s{sHi}, 0')
        A(f's_mov_b32 s{sHi+1}, -1')
        A(f's_mov_b32 s{sLo8}, 0x00ff00ff')
        A(f's_mov_b32 s{sLo8+1}, 0x00ff00ff')
        A('v_and_b32 v1, 1, v0')
        A('v_lshlrev_b32 v1, 4, v1')
        A('v_mov_b32 v2, 0xffff')
        A('v_lshlrev_b32 v1, v1, v2')
        A('v_bfe_u32 v2, v0, 1, 2')
        for w in range(4):
            A(f'v_cmp_eq_u32 vcc, {w}, v2')
            A(f'v_cndmask_b32 v{4+w}, 0, v1, vcc')
    def heavy(dst):
        A(f's_lshr_b32 s{dst}, s{sG}, 3')
        A(f's_xor_b32 s{dst}, s{dst}, s{sG}')
        A(f's_and_b32 s{dst}, s{dst}, 3')
    def roles():
        A(f's_sub_u32 s{sF0}, s{sJ}, s{sG}')
        A(f's_and_b32 s{sF0}, s{sF0}, 7')
        A(f's_cmp_le_u32 s{sF0}, 3')
        A(f's_cselect_b32 s{sRole}, 1, 2')
        A(f's_cselect_b32 s{sT1}, 1, 4')
        A(f's_sub_u32 s{sT1}, s{sF0}, s{sT1}')
        A(f's_and_b32 s{sUnit}, s{sG}, 7')
        A(f's_lshl_b32 s{sUnit}, s{sUnit}, 1')
        A(f's_add_u32 s{sUnit}, s{sUnit}, s{sT1}')
        A(f's_lshl_b32 s{sUnit}, s{sUnit}, 2')
        A(f's_lshr_b32 s{sT2}, s{sG}, 3')
        A(f's_add_u32 s{sUnit}, s{sUnit}, s{sT2}')
        heavy(sT2)
        A(f's_cselect_b32 s{sT2}, 0, s{sRole}')
        A(f's_lshr_b32 s{sP}, s{sG}, 2')
        A(f's_add_u32 s{sP}, s{sP}, 64')
        A(f's_cmp_eq_u32 s{sT1}, 2')
        A(f's_cselect_b32 s{sRole}, s{sT2}, s{sRole}')
        A(f's_cselect_b32 s{sUnit}, s{sP}, s{sUnit}')
        A(f's_lshl_b32 s{sF1}, s{sG}, 1')
        A(f's_and_b32 s{sT1}, s{sF0}, 1')
        A(f's_add_u32 s{sF1}, s{sF1}, s{sT1}')
        A(f's_add_u32 s{sF0}, s{sF0}, 1')
        A(f's_and_b32 s{sF0}, s{sF0}, 6')
        A(f's_cselect_b32 s{sRole}, s{sRole}, 3')
        A(f's_cselect_b32 s{sUnit}, s{sUnit}, s{sF1}')
    def role_slab(vpub):
        A(f's_cmp_lg_u32 s{sRole}, 3')
        A(f's_cselect_b64 s[{sP}:{sP+1}], s[{sWD}:{sWD+1}], s[{sWO}:{sWO+1}]')
        A(f's_mov_b32 s{sT2}, {64*128}')
        A(f's_cselect_b32 s{sT2}, {72*128}, s{sT2}')
        A(f's_mov_b32 s{sPub}, {WS_SP}')
        A(f's_cselect_b32 s{sPub}, {WS_DP}, s{sPub}')
        A(f's_mul_i32 s{sT1}, s{sUnit}, {SLAB}')
        mk_srd(rS, sP, sT1, SLAB)
        A(f's_lshl_b32 s{sT1}, s{sUnit}, 7')
        A(f's_add_u32 s{sPub}, s{sPub}, s{sT1}')
        A(f's_lshl_b32 s{sT1}, s{sA}, 2')
        A(f's_mul_i32 s{sT1}, s{sT1}, s{sT2}')
        A(f's_add_u32 s{sPub}, s{sPub}, s{sT1}')
        A(f's_lshl_b32 s{sT1}, s{sT2}, 2')
        A(f's_add_u32 s{sPub2}, s{sPub}, s{sT1}')
        A(f'v_lshrrev_b32 v{vpub}, 5, v0')
        A(f'v_mul_u32_u24 v{vpub}, 18, v{vpub}')
        A('v_bfe_u32 v2, v0, 2, 2')
        A(f'v_add_u32 v{vpub}, v{vpub}, v2')
        A(f'v_mul_u32_u24 v{vpub}, s{sT2}, v{vpub}')
        A('v_and_b32 v2, 3, v0')
        A(f'v_lshl_add_u32 v{vpub}, v2, 5, v{vpub}')
        A('v_and_b32 v2, 16, v0')
        A(f'v_add_u32 v{vpub}, v{vpub}, v2')

    vKoff, vVoff, vM, vML, vQ, acc, vL = 8, 9, 10, 11, 12, 16, 20
    vXO, vXM, vTQ, vTK, vPG = 3, 21, 22, 23, 2
    D = 24; S = 40; U = 44; T = 46; T2 = 47; AF = 48
    BUF = [64, 80, 96]
    vIoff, vSb, vSa, vL16 = 112, 113, 114, 115
    SCR = 116
    vPub, vSlab, vXr, vOg, vTw, vAPo = 118, 119, 120, 121, 122, 123
    WOR = 128
    def unpack4(src):
        A(f'v_lshlrev_b32 v{S}, 16, v{src}')
        A(f'v_and_b32 v{S+1}, 0xffff0000, v{src}')
        A(f'v_lshlrev_b32 v{S+2}, 16, v{src+1}')
        A(f'v_and_b32 v{S+3}, 0xffff0000, v{src+1}')
    def k_parts(buf):
        def qk():
            for n in range(4):
                A(f'v_mfma_f32_16x16x32_bf16 {v4(D+4*n)}, {v4(buf+4*n)}, {v4(vQ)}, 0')
        def red():
            for r in range(4):
                for n in range(4):
                    if r == 0: A(f'v_mov_b32_dpp v{S+n}, v{D+4*n} quad_perm:[0,0,0,0] {DPP}')
                    else: A(f'v_add_f32_dpp v{S+n}, v{D+4*n+r}, v{S+n} quad_perm:[{r},{r},{r},{r}] {DPP}')
        def scale():
            A(f'v_cvt_pk_bf16_f32 v{U}, v{S}, v{S+1}')
            A(f'v_cvt_pk_bf16_f32 v{U+1}, v{S+2}, v{S+3}')
            unpack4(U)
            for n in range(4): A(f'v_mul_f32 v{S+n}, s{sScale}, v{S+n}')
            A(f'v_cvt_pk_bf16_f32 v{U}, v{S}, v{S+1}')
            A(f'v_cvt_pk_bf16_f32 v{U+1}, v{S+2}, v{S+3}')
            A(f'ds_write_b64 v{vSa}, {v2(U)} offset:{L_SC}')
        return qk, red, scale
    def v_parts(buf, name):
        def soft():
            unpack4(SCR)
            A(f'v_max3_f32 v{T}, v{S}, v{S+1}, v{S+2}')
            A(f'v_max_f32 v{T}, v{T}, v{S+3}')
            A(f'v_cmp_gt_f32 vcc, v{T}, v{vM}')
            A(f's_cbranch_vccnz L_resc{name}')
            A(f'L_back{name}:')
            for n in range(4): A(f'v_fma_f32 v{S+n}, v{S+n}, s{sLog2e}, v{vML}')
            for n in range(4): A(f'v_exp_f32 v{S+n}, v{S+n}')
            A(f'v_add_f32 v{T}, v{S}, v{S+1}')
            A(f'v_add_f32 v{T2}, v{S+2}, v{S+3}')
            for n in range(4): A(f'v_cvt_pk_bf16_f32 v{S+n}, v{S+n}, v{S+n}')
            A(f'v_add_f32 v{T}, v{T}, v{T2}')
            A(f'v_add_f32 v{vL}, v{vL}, v{T}')
        def masks():
            for n in range(4): mkA(AF + 4*n, S + n)
        def pv():
            for n in range(4):
                A(f'v_mfma_f32_16x16x32_bf16 {v4(acc)}, {v4(AF+4*n)}, {v4(buf+4*n)}, {v4(acc)}')
        return soft, masks, pv
    def resc(name):
        A(f'L_resc{name}:')
        A(f'v_max_f32 v{T}, v{T}, v{vM}')
        xor16('v_max_f32', T, T2)
        xor32('v_max_f32', T, T2)
        A(f'v_sub_f32 v{T2}, v{vM}, v{T}')
        A(f'v_mul_f32 v{T2}, s{sLog2e}, v{T2}')
        A(f'v_exp_f32 v{T2}, v{T2}')
        A(f'v_mov_b32 v{vM}, v{T}')
        A(f'v_mul_f32 v{vML}, s{sNLog2e}, v{T}')
        A(f'v_mul_f32 v{vL}, v{vL}, v{T2}')
        A(f'v_readlane_b32 s{sF0}, v{T2}, 0')
        A(f'v_readlane_b32 s{sF1}, v{T2}, 8')
        A(f'v_mov_b32 v{T}, s{sF0}')
        A(f'v_mov_b32 v{T2}, s{sF1}')
        A(f'v_cndmask_b32 v{T}, v{T}, v{T2}, s[{sHi}:{sHi+1}]')
        for r in range(4): A(f'v_mul_f32 v{acc+r}, v{acc+r}, v{T}')
        A(f's_branch L_back{name}')
    def q_addr():
        A('v_bfe_u32 v1, v0, 3, 1')
        A('v_lshlrev_b32 v1, 8, v1')
        A('v_and_b32 v2, 3, v0')
        A('v_lshl_add_u32 v1, v2, 6, v1')
        A('v_lshrrev_b32 v2, 4, v0')
        A('v_lshl_add_u32 v1, v2, 4, v1')

    A(f'{KNAME}:')
    A('s_cmp_ge_u32 s2, 256')
    A('s_cbranch_scc1 L_end')
    A('s_load_dwordx16 s[4:19], s[0:1], 0')
    A('s_load_dwordx8 s[20:27], s[0:1], 64')
    if codepf & 1:
        A(f's_getpc_b64 s[{sP}:{sP+1}]')
        A('v_lshlrev_b32 v1, 4, v0')
        A('v_add_u32 v2, 5120, v1')
        A('v_add_u32 v3, 10240, v1')
        A(f'global_load_dwordx4 v[224:227], v1, s[{sP}:{sP+1}]')
        A(f'global_load_dwordx4 v[228:231], v2, s[{sP}:{sP+1}]')
        A(f'global_load_dwordx4 v[232:235], v3, s[{sP}:{sP+1}]')
    A('v_lshrrev_b32 v1, 6, v0')
    A('v_and_b32 v0, 63, v0')
    A(f'v_readfirstlane_b32 s{sWave}, v1')
    A(f's_lshr_b32 s{sG}, s2, 3')
    A(f's_and_b32 s{sJ}, s2, 7')
    A(f's_lshr_b32 s{sB}, s2, 7')
    A(f's_and_b32 s{sH}, s{sG}, 15')
    roles()
    if stamps:
        for i in range(10): A(f's_mov_b32 s{sSt+2+i}, 0')
    A(f's_cmp_eq_u32 s{sWave}, 0')
    A('s_cbranch_scc1 L_side')

    A(f's_sub_u32 s{sA}, s{sWave}, 1')
    A(f's_lshl_b32 s{sAoff}, s{sA}, 15')
    A(f's_lshl_b32 s{sE[0]}, s{sJ}, 9')
    A(f's_add_u32 s{sOff}, s{sE[0]}, s{sAoff}')
    A(f's_add_u32 s{sXoff}, s{sOff}, {NC << 17}')
    A(f'v_bfe_u32 v{vKoff}, v0, 2, 2')
    A(f'v_lshlrev_b32 v{vKoff}, 13, v{vKoff}')
    A('v_and_b32 v1, 3, v0')
    A(f'v_lshl_add_u32 v{vKoff}, v1, 6, v{vKoff}')
    A('v_lshrrev_b32 v1, 4, v0')
    A(f'v_lshl_add_u32 v{vKoff}, v1, 4, v{vKoff}')
    A(f'v_lshlrev_b32 v{vVoff}, 13, v1')
    A('v_and_b32 v1, 15, v0')
    A(f'v_lshl_add_u32 v{vVoff}, v1, 4, v{vVoff}')
    A(f's_lshl_b32 s{sT0}, s{sA}, 12')
    A(f's_add_u32 s{sT0}, s{sT0}, {L_KV}')
    A(f's_mov_b32 s{sCnt}, 8')
    A(f's_lshl_b32 s{sT1}, s{sG}, 23')
    A(f's_mov_b32 s{rI+2}, {1 << 23}')
    A(f's_mov_b32 s{rI+3}, 0x20000')
    A('s_waitcnt lgkmcnt(0)')
    A(f's_add_u32 s{rI}, s{sK}, s{sT1}')
    A(f's_addc_u32 s{rI+1}, s{sK+1}, 0')
    stamp(0)
    A(f's_cmp_eq_u32 s{sRole}, 1')
    A('s_cbranch_scc1 L_pro_ffn')
    A('L_pro_loop:')
    A(f's_add_u32 s{sOff2}, s{sXoff}, 4096')
    for n in range(4):
        A(f's_add_u32 m0, s{sT0}, {n*1024 - IOFF[n]}')
        A(f's_waitcnt vmcnt({Wp-1})')
        A(f'buffer_load_dwordx4 v{vKoff}, {srd(rI)}, s{sXoff if n < 2 else sOff2} offen offset:{IOFF[n]} {kvflags} lds')
    A(f's_add_u32 s{sT0}, s{sT0}, 16384')
    A(f's_add_u32 s{sXoff}, s{sXoff}, {1 << 17}')
    A(f's_sub_u32 s{sCnt}, s{sCnt}, 1')
    A(f's_cmp_lg_u32 s{sCnt}, 0')
    A('s_cbranch_scc1 L_pro_loop')
    A('s_branch L_pro_join')
    def gu_srds():
        A(f's_lshl_b32 s{sT2}, s{sUnit}, 7')
        mk_srd(rA, sWG, sT2, f's_sub_u32 s{rA+2}, {576*9216}, s{sT2}')
        mk_srd(rB, sWU, sT2, f's_sub_u32 s{rB+2}, {576*9216}, s{sT2}')
    A('L_pro_ffn:')
    gu_srds()
    off8(1, 9216)
    A(f's_mul_i32 s{sXoff}, s{sA}, {16*9216}')
    if bar1: A('s_barrier')
    A('L_pf_loop:')
    A(f's_add_u32 s{sOff2}, s{sXoff}, {8*9216}')
    for n in range(4):
        A(f's_add_u32 m0, s{sT0}, {n*1024}')
        A(f's_waitcnt vmcnt({WpF-1})')
        A(f'buffer_load_dwordx4 v1, {srd(rB if n & 1 else rA)}, s{sXoff if n < 2 else sOff2} offen {wflags} lds')
    A(f's_add_u32 s{sT0}, s{sT0}, 16384')
    A(f's_add_u32 s{sXoff}, s{sXoff}, {64*9216}')
    A(f's_sub_u32 s{sCnt}, s{sCnt}, 1')
    A(f's_cmp_lg_u32 s{sCnt}, 0')
    A('s_cbranch_scc1 L_pf_loop')

    A('L_pro_join:')
    def setup0():
        A(f's_mov_b64 s[{sKb}:{sKb+1}], s[{rI}:{rI+1}]')
        A(f's_add_u32 s{sVb}, s{sV}, s{sT1}')
        A(f's_addc_u32 s{sVb+1}, s{sV+1}, 0')
        mk_srd(rWS, sWSP, None, WS_SIZE)
        A(f's_add_u32 s{sE[1]}, s{sE[0]}, {(1 << 17) + (1 << 24)}')
        A(f's_add_u32 s{sE[2]}, s{sE[0]}, {(2 << 17) + (2 << 24)}')
        consts()
    def setup1():
        A(f'v_mov_b32 v{vM}, 0xff800000')
        A(f'v_mov_b32 v{vML}, 0')
        A(f'v_mov_b32 v{vL}, 0')
        for r in range(4): A(f'v_mov_b32 v{acc+r}, 0')
        A(f'v_lshrrev_b32 v{vXO}, 5, v0')
        A(f'v_lshlrev_b32 v{vXO}, 9, v{vXO}')
        A('v_and_b32 v2, 15, v0')
        A(f'v_lshl_add_u32 v{vXO}, v2, 5, v{vXO}')
        A('v_and_b32 v2, 16, v0')
        A(f'v_add_u32 v{vXO}, v{vXO}, v2')
        A(f's_lshl_b32 s{sT1}, s{sA}, 10')
        A(f'v_add_u32 v{vXO}, s{sT1}, v{vXO}')
        A(f'v_and_b32 v{vXM}, 8, v0')
        A(f's_lshl_b32 s{sT1}, s{sA}, 4')
        A(f'v_add_u32 v{vXM}, s{sT1}, v{vXM}')
        A(f'v_and_b32 v{vSb}, 0x38, v0')
        A(f's_lshl_b32 s{sT1}, s{sA}, 12')
        A(f'v_add_u32 v{vSb}, s{sT1}, v{vSb}')
        A(f'v_mov_b32 v{vSa}, v{vSb}')
        A(f'v_lshlrev_b32 v{vL16}, 4, v0')
        A(f'v_mov_b32 v{vTQ}, 12')
        A(f'v_mov_b32 v{vTK}, 0')
    def setup2():
        role_slab(vPub)
    def setup3():
        A(f's_lshl_b32 s{sT1}, s{sH}, 2')
        A(f's_add_u32 s{sT1}, s{sT1}, s{sB}')
        A(f's_lshl_b32 s{sT1}, s{sT1}, 3')
        A(f's_add_u32 s{sT1}, s{sT1}, s{sJ}')
        A(f's_lshl_b32 s{sAP}, s{sT1}, 9')
        A(f's_add_u32 s{sAP}, s{sAP}, {WS_AP}')
        A(f's_lshl_b32 s{sAML}, s2, 7')
        A(f's_add_u32 s{sAML}, s{sAML}, {WS_AML}')
        A(f'v_lshrrev_b32 v{vAPo}, 5, v0')
        A(f'v_lshlrev_b32 v{vAPo}, 13, v{vAPo}')
        A(f'v_and_b32 v2, 0x1f0, v{vL16}')
        A(f'v_add_u32 v{vAPo}, v{vAPo}, v2')
        off4(vSlab, 1152)
        A(f's_lshl_b32 s{sT1}, s{sA}, 8')
        A(f'v_add_u32 v{vSlab}, s{sT1}, v{vSlab}')
    def setup4():
        A(f'v_lshrrev_b32 v{vOg}, 3, v0')
        A(f'v_lshlrev_b32 v{vXr}, 7, v{vOg}')
        A(f'v_lshlrev_b32 v{vOg}, 9, v{vOg}')
        A('v_and_b32 v2, 7, v0')
        A(f'v_lshl_add_u32 v{vOg}, v2, 4, v{vOg}')
        A(f'v_lshrrev_b32 v{vTw}, 4, v0')
        A(f'v_lshlrev_b32 v{vTw}, 8, v{vTw}')
        A(f'v_lshl_add_u32 v{vTw}, v2, 2, v{vTw}')
        A(f's_lshr_b32 s{sT1}, s{sA}, 1')
        A(f's_lshl_b32 s{sT1}, s{sT1}, 7')
        A(f's_and_b32 s{sT2}, s{sA}, 1')
        A(f's_lshl_b32 s{sT2}, s{sT2}, 5')
        A(f's_add_u32 s{sT1}, s{sT1}, s{sT2}')
        A(f'v_add_u32 v{vTw}, s{sT1}, v{vTw}')
    def setup5():
        q_addr()
        A(f's_lshl_b32 s{sT1}, s{sA}, 2')
        A(f'v_mov_b32 v{vPG}, s{sT1}')
    fill = [setup0, setup1, setup2, setup3, setup4, setup5]
    for u in range(2):
        A(f's_add_u32 s{sOff2}, s{sOff}, 4096')
        for n in range(4):
            A(f's_waitcnt vmcnt({Wp-1})')
            A(f'buffer_load_dwordx4 {v4(BUF[u]+4*n)}, v{vKoff}, {srd(rI)}, s{sOff if n < 2 else sOff2} offen offset:{IOFF[n]} {kvflags}')
            if fill: fill.pop(0)()
        if u == 0: A(f's_add_u32 s{sOff}, s{sOff}, {1 << 17}')
    stamp(6)
    A('s_barrier')
    A(f'ds_read_b128 {v4(vQ)}, v1 offset:{L_Q}')
    A(f'ds_read_b32 v{vTK}, v{vTK} offset:{L_TAG}')
    A('v_lshrrev_b32 v1, 5, v0')
    A('v_lshlrev_b32 v1, 3, v1')
    A('s_waitcnt lgkmcnt(0)')
    A(f'v_readfirstlane_b32 s{sT1}, v{vTK}')
    mk_tags(sT1)
    if prio: A(f's_setprio {prio}')
    stamp(1)
    WW = W if len(W) == 12 else W * 3
    if stamps: A(f's_mov_b32 s{sCnt}, 0')
    A('L_loop:')
    for p in range(3):
        q = (p + 2) % 3
        nx = (p + 1) % 3
        Wk = WW[4*p:4*p+4]
        kq = min(k for k in range(4) if any(8 + kk - Wk[kk] >= 3 for kk in range(k + 1)))
        def issue(k, Wk=Wk):
            A(f's_waitcnt vmcnt({Wk[k]-1})')
            A(f'buffer_load_dwordx4 {v4(BUF[q]+4*k)}, v{vIoff}, {srd(rI)}, s{sOff if k < 2 else sOff2} offen offset:{IOFF[k]} {kvflags}')
            if k == 0: A(f'ds_write_b32 v{vPG}, v{vTQ} offset:{L_PG}')
            if k == rdpos: A(f'ds_read_b32 v{vTK}, v{vTQ} offset:{L_TQ}')
        if stamps:
            for idx, val in ((7, 24), (8, NC), (9, 2*NC)):
                A(f's_cmp_lg_u32 s{sCnt}, {val}')
                A(f's_cbranch_scc1 L_ns{p}_{idx}')
                stamp(idx)
                A(f'L_ns{p}_{idx}:')
            A(f's_add_u32 s{sCnt}, s{sCnt}, 1')
        A(f's_and_b32 s{sOff}, s{sE[q]}, 0x00fe0e00')
        A(f's_add_u32 s{sOff}, s{sOff}, s{sAoff}')
        A(f's_add_u32 s{sOff2}, s{sOff}, 4096')
        A(f's_bitcmp1_b32 s{sE[q]}, 1')
        A(f's_cselect_b64 s[{rI}:{rI+1}], s[{sVb}:{sVb+1}], s[{sKb}:{sKb+1}]')
        A(f's_cselect_b64 s[{sP}:{sP+1}], -1, 0')
        A(f'v_cndmask_b32 v{vIoff}, v{vKoff}, v{vVoff}, s[{sP}:{sP+1}]')
        A(f's_lshr_b32 s{sT0}, s{sE[nx]}, 24')
        A(f's_lshl_b32 s{sT0}, s{sT0}, 6')
        A(f's_bitcmp1_b32 s{sE[p]}, 1')
        A(f's_cbranch_scc1 L_V{p}')
        def scpre():
            A(f'v_add_u32 v{vSa}, s{sT0}, v{vSb}')
            A(f'ds_read_b64 {v2(SCR)}, v{vSa} offset:{L_SC}')
        qk, red, scale = k_parts(BUF[p])
        sched = {k: [] for k in range(4)}
        for i, c in enumerate([qk, red, scale]): sched[min(kq + i, 3)].append(c)
        sched[min(kq + 2, 3)].append(scpre)
        for k in range(4):
            issue(k)
            for c in sched[k]: c()
        A(f's_branch L_tk{p}')
        A(f'L_V{p}:')
        soft, masks, pv = v_parts(BUF[p], str(p))
        ksoft, kmask, kpv = vsched
        Wv = Wk if WV is None else (WV if len(WV) == 12 else WV * 3)[4*p:4*p+4]
        kpv = max(min(k for k in range(4) if any(8 + kk - Wv[kk] >= 3 for kk in range(k + 1))), kpv)
        if ksoft < 0: soft()
        if kmask < 0: masks()
        for k in range(4):
            issue(k, Wv)
            if k == ksoft: soft()
            if k == kmask: masks()
            if k == kpv:
                pv()
                A(f's_bitcmp1_b32 s{sE[nx]}, 23')
                A('s_cbranch_scc1 L_loop_done')
            if k == 2: scpre()
        A(f'L_tk{p}:')
        A('s_waitcnt lgkmcnt(0)')
        A(f'v_readfirstlane_b32 s{sE[p]}, v{vTK}')
        A(f's_cmp_eq_u32 s{sE[p]}, 0')
        A(f's_cbranch_scc1 L_tkw{p}')
        A(f'v_add_u32 v{vTQ}, 4, v{vTQ}')
    A('s_branch L_loop')
    for p in range(3):
        A(f'L_tkw{p}:')
        A(f's_sub_u32 s{sSpin}, s{sSpin}, 1')
        A(f's_cmp_le_i32 s{sSpin}, 0')
        A('s_cbranch_scc1 L_loop_done')
        A(f'ds_read_b32 v{vTK}, v{vTQ} offset:{L_TQ}')
        A(f's_branch L_tk{p}')
    for p in range(3): resc(str(p))
    A('L_loop_done:')
    stamp(2)
    xor16('v_add_f32', vL, T)
    xor32('v_add_f32', vL, T)
    A(f'ds_write_b128 v{vXO}, {v4(acc)} offset:{L_XO}')
    A(f'v_mov_b32 v{vML}, v{vL}')
    A(f'ds_write_b64 v{vXM}, {v2(vM)} offset:{L_XM}')
    WOT = WOR + 64
    def slab_loads():
        A(f's_mov_b32 s{sOff}, 0')
        for t in range(16):
            A(f'buffer_load_dwordx4 {v4(WOR+4*t)}, v{vSlab}, {srd(rS)}, s{sOff} offen {wflags}')
            if t < 15: A(f's_add_u32 s{sOff}, s{sOff}, {4*1152}')
        A(f's_cmp_lg_u32 s{sA}, 3')
        A('s_cbranch_scc1 L_notail')
        off8(8, 1152, 9)
        A(f's_mov_b32 s{sOff}, 1024')
        for u in range(8):
            A(f'buffer_load_dwordx4 {v4(WOT+4*u)}, v8, {srd(rS)}, s{sOff} offen {wflags}')
            if u < 7: A(f's_add_u32 s{sOff}, s{sOff}, {8*1152}')
        for r in range(8): A(f'v_mov_b32 v{56+r}, 0')
        A('L_notail:')
    if slabpos == 0:
        A(f's_bitcmp0_b32 s{sRole}, 0')
        A('s_cbranch_scc1 L_noslab')
        slab_loads()
        A('L_noslab:')
    A('s_waitcnt lgkmcnt(0)')
    A('s_barrier')
    A(f's_cmp_lg_u32 s{sA}, 0')
    A('s_cbranch_scc1 L_att_nopub')
    for a in range(4): A(f'ds_read_b64 {v2(44+2*a)}, v1 offset:{L_XM + a*16}')
    for a in range(4): A(f'ds_read_b128 {v4(24+4*a)}, v{vL16} offset:{L_XO + a*1024}')
    A('s_waitcnt lgkmcnt(4)')
    A('v_max3_f32 v56, v44, v46, v48')
    A('v_max_f32 v56, v56, v50')
    for a in range(4): A(f'v_sub_f32 v{44+2*a}, v{44+2*a}, v56')
    for a in range(4): A(f'v_mul_f32 v{44+2*a}, s{sLog2e}, v{44+2*a}')
    for a in range(4): A(f'v_exp_f32 v{44+2*a}, v{44+2*a}')
    A('v_mov_b32 v58, v56')
    A('v_mul_f32 v57, v45, v44')
    for a in range(1, 4): A(f'v_fmac_f32 v57, v{45+2*a}, v{44+2*a}')
    A('v_permlane32_swap_b32 v56, v58')
    A('v_mov_b32 v59, v57')
    A('s_waitcnt lgkmcnt(0)')
    for r in range(4): A(f'v_mul_f32 v{24+r}, v{24+r}, v44')
    A('v_permlane32_swap_b32 v57, v59')
    for a in range(1, 4):
        for r in range(4): A(f'v_fmac_f32 v{24+r}, v{24+4*a+r}, v{44+2*a}')
    tagq(56, 56)
    publish(24, vAPo, sAP)
    A('s_mov_b64 exec, 0xff')
    A(f'buffer_store_dwordx4 v[56:59], v{vL16}, {srd(rWS)}, s{sAML} offen {stf}')
    A('s_mov_b64 exec, -1')
    A('L_att_nopub:')
    stamp(3)
    A(f's_bitcmp0_b32 s{sRole}, 0')
    A(f's_cbranch_scc1 {LEND}')
    if slabpos == 1: slab_loads()
    for r in range(4): A(f'v_mov_b32 v{acc+r}, 0')
    A(f's_cmp_lg_u32 s{sRole}, 1')
    A('s_cbranch_scc1 L_owner')
    A('s_waitcnt vmcnt(0)')
    A('s_branch L_proj')
    A('L_owner:')
    A(f's_lshr_b32 s{sT1}, s{sA}, 1')
    A(f's_lshl_b32 s{sT2}, s{sG}, 1')
    A(f's_add_u32 s{sT2}, s{sT2}, s{sT1}')
    A(f's_lshl_b32 s{sOff}, s{sT2}, 12')
    A(f's_and_b32 s{sCnt}, s{sA}, 1')
    A(f's_and_b32 s{sT0}, s{sUnit}, 1')
    A(f's_lshl_b32 s{sF0}, s{sT0}, 1')
    A(f's_add_u32 s{sF0}, s{sF0}, s{sCnt}')
    A(f's_lshl_b32 s{sF0}, s{sF0}, 7')
    A(f's_add_u32 s{sOff}, s{sOff}, s{sF0}')
    A(f's_add_u32 s{sOff}, s{sOff}, {WS_AP}')
    A(f's_lshl_b32 s{sT2}, s{sT1}, 4')
    A(f's_lshr_b32 s{sF0}, s{sG}, 1')
    A(f's_add_u32 s{sT2}, s{sT2}, s{sF0}')
    A(f's_lshl_b32 s{sT2}, s{sT2}, 10')
    A(f's_add_u32 s{sT2}, s{sT2}, {WS_AML}')
    A(f's_and_b32 s{sF0}, s{sG}, 1')
    A(f's_cselect_b64 s[{sP}:{sP+1}], -1, 0')
    A('L_own_poll:')
    A(f'buffer_load_dwordx4 v[28:31], v{vL16}, {srd(rWS)}, s{sT2} offen {ldf}')
    A(f'buffer_load_dwordx4 v[24:27], v{vOg}, {srd(rWS)}, s{sOff} offen {ldf}')
    A('s_waitcnt vmcnt(0)')
    check_tags(quads(24, 2), 32, 33, 'L_own_poll', 'L_own')
    stamp(4)
    A(f'v_cndmask_b32 v28, v28, v30, s[{sP}:{sP+1}]')
    A(f'v_cndmask_b32 v29, v29, v31, s[{sP}:{sP+1}]')
    A(f'v_max_f32_dpp v30, v28, v28 row_ror:8 {DPP}')
    xor16('v_max_f32', 30, 31)
    xor32('v_max_f32', 30, 31)
    A('v_sub_f32 v28, v28, v30')
    A(f'v_mul_f32 v28, s{sLog2e}, v28')
    A('v_exp_f32 v28, v28')
    A('v_mul_f32 v29, v29, v28')
    for r in range(4): A(f'v_mul_f32 v{24+r}, v{24+r}, v28')
    A(f'v_add_f32_dpp v29, v29, v29 row_ror:8 {DPP}')
    A('v_permlane32_swap_b32 v24, v26')
    A('v_permlane32_swap_b32 v25, v27')
    A('v_mov_b32 v31, v29')
    A('v_add_f32 v24, v24, v26')
    A('v_add_f32 v25, v25, v27')
    A('v_permlane16_swap_b32 v29, v31')
    A('v_add_f32 v29, v29, v31')
    A('v_permlane16_swap_b32 v24, v25')
    A('v_mov_b32 v31, v29')
    A('v_add_f32 v24, v24, v25')
    A('v_permlane32_swap_b32 v29, v31')
    A('v_add_f32 v29, v29, v31')
    A(f'v_add_f32_dpp v24, v24, v24 row_ror:8 {DPP}')
    A('v_rcp_f32 v29, v29')
    A('v_mul_f32 v24, v24, v29')
    A('v_cvt_pk_bf16_f32 v24, v24, v24')
    A(f'ds_write_b32 v{vTw}, v24 offset:{L_T2}')
    A('s_waitcnt lgkmcnt(0)')
    A('s_barrier')
    A('L_proj:')
    for q in range(4): A(f'ds_read_b128 {v4(24+4*q)}, v{vXr} offset:{L_T2 + q*16}')
    A(f's_cmp_eq_u32 s{sA}, 3')
    A('s_cbranch_scc1 L_proj3')
    for tail in (0, 1):
        if tail: A('L_proj3:')
        def pmf(t):
            A(f'v_mfma_f32_16x16x32_bf16 {v4(acc)}, {v4(40 + 4*(t&3))}, {v4(WOR+4*t)}, {v4(acc)}')
            if tail: A(f'v_mfma_f32_16x16x32_bf16 {v4(56 + 4*(t&1))}, {v4(40 + 4*(t&3))}, {v4(WOT+4*(t>>1))}, {v4(56 + 4*(t&1))}')
        for t in range(16):
            if t % 4 == 0: A(f's_waitcnt lgkmcnt({3 - t//4})')
            mkA(40 + 4*(t & 3), 24 + t)
            if t >= 1: pmf(t - 1)
        pmf(15)
        publish(acc, vPub, sPub)
        if tail:
            for r in range(4):
                A(f'v_add_f32_dpp v{56+r}, v{60+r}, v{56+r} row_ror:8 {DPP}')
            publish(56, vPub, sPub2, sLo8)
        stamp(5)
        endpgm()

    A('L_side:')
    A('s_setprio 3')
    if codepf & 4:
        A(f's_getpc_b64 s[{sP}:{sP+1}]')
        A('v_lshlrev_b32 v1, 4, v0')
        A('v_add_u32 v2, 4096, v1')
        for i in range(1, 6): A(f'global_load_dwordx4 v[224:227], v{1 + i//4}, s[{sP}:{sP+1}] offset:{(i&3)*1024}')
    XR = 24
    XF = 136
    WQ = 64
    A(f's_mov_b32 s{sA}, 4')
    A('v_lshrrev_b32 v1, 5, v0')
    A('v_mul_u32_u24 v1, 1152, v1')
    A('v_and_b32 v2, 31, v0')
    A('v_lshl_add_u32 v1, v2, 2, v1')
    off8(3, 8192)
    A(f's_lshl_b32 s{sT0}, s{sB}, 3')
    A(f's_add_u32 s{sT0}, s{sT0}, s{sJ}')
    A(f's_lshr_b32 s{sT1}, s{sT0}, 2')
    A(f's_add_u32 s{sT0}, s{sT0}, s{sH}')
    A(f's_lshr_b32 s{sT2}, s{sH}, 2')
    A(f's_add_u32 s{sT0}, s{sT0}, s{sT2}')
    A(f's_and_b32 s{sT0}, s{sT0}, 3')
    A(f's_mul_i32 s{sT2}, s{sT1}, {144*8192}')
    A(f's_lshl_b32 s{sOff}, s{sH}, 9')
    A(f's_add_u32 s{sT2}, s{sT2}, s{sOff}')
    A(f's_lshl_b32 s{sOff}, s{sT0}, 7')
    A(f's_add_u32 s{sT2}, s{sT2}, s{sOff}')
    A(f's_mul_i32 s{sXoff}, s{sG}, {CNT_STRIDE}')
    A(f's_add_u32 s{sXoff}, s{sXoff}, {WS_CNT}')
    A(f's_cmp_eq_u32 s{sJ}, 0')
    A(f's_cselect_b32 s{sCnt}, s{sXoff}, {WS_SIZE}')
    A('v_mov_b32 v35, 0')
    A('s_waitcnt lgkmcnt(0)')
    mk_srd(rWS, sWSP, None, WS_SIZE)
    A(f'buffer_store_dword v35, off, {srd(rWS)}, s{sCnt} sc1')
    mk_srd(rB, sX, None, 2304)
    for n in range(9): A(f'buffer_load_dword v{XR+n}, v1, {srd(rB)}, 0 offen offset:{n*128}')
    A(f'buffer_load_dword v33, off, {srd(rWS)}, 0 {epf}')
    mk_srd(rA, sWQ, sT2, f's_sub_u32 s{rA+2}, {576*8192}, s{sT2}')
    A(f's_mov_b32 s{sOff}, 0')
    for u in range(18):
        A(f'buffer_load_dwordx4 {v4(WQ+4*u)}, v3, {srd(rA)}, s{sOff} offen {wflags}')
        if u < 17: A(f's_add_u32 s{sOff}, s{sOff}, 65536')
    if bar1:
        A(f's_cmp_lg_u32 s{sRole}, 1')
        A('s_cbranch_scc1 L_nobar1')
        A('s_barrier')
        A('L_nobar1:')
    stamp(0)
    consts()
    A('v_lshlrev_b32 v1, 2, v0')
    A(f'ds_write_b32 v1, v35 offset:{L_PG}')
    for i in range(4): A(f'ds_write_b32 v1, v35 offset:{L_TQ + 256*i}')
    A(f's_lshl_b32 s{sCnt}, s{sJ}, 9')
    A(f's_add_u32 s{sCnt}, s{sCnt}, 1')
    A(f'v_lshl_add_u32 v36, v0, 17, s{sCnt}')
    A('v_lshl_add_u32 v36, v0, 24, v36')
    A('v_or_b32 v37, 2, v36')
    A(f's_cmp_eq_u32 s{sRole}, 1')
    A(f's_mov_b32 s{sF0}, 0x{(1 << (NC - 32)) - 1:x}')
    A(f's_cselect_b32 s{sF0}, 0x{(1 << (NC + EXF - 32)) - 1:x}, s{sF0}')
    A(f's_cselect_b32 s{sF1}, {4*EXF}, 0')
    A(f'v_add_u32 v2, s{sF1}, v1')
    A(f's_mov_b32 exec_hi, s{sF0}')
    A(f'ds_write_b32 v1, v36 offset:{L_TQ}')
    A(f'ds_write_b32 v2, v37 offset:{L_TQ + 4*NC}')
    A('s_mov_b64 exec, -1')
    A('v_and_b32 v1, 1, v0')
    A('v_lshlrev_b32 v1, 2, v1')
    A('v_lshrrev_b32 v2, 5, v0')
    A('v_add_u32 v1, v1, v2')
    A('v_mul_u32_u24 v1, 576, v1')
    A('v_bfe_u32 v2, v0, 1, 4')
    A('v_lshl_add_u32 v1, v2, 2, v1')
    A('v_lshrrev_b32 v3, 3, v0')
    A('v_mul_u32_u24 v3, 576, v3')
    A(f's_mul_i32 s{sT2}, s{sT1}, 144')
    A(f'v_add_u32 v3, s{sT2}, v3')
    A('v_lshrrev_b32 v34, 5, v0')
    A('v_lshlrev_b32 v34, 12, v34')
    A('v_and_b32 v2, 7, v0')
    A('v_lshl_add_u32 v34, v2, 5, v34')
    A('v_and_b32 v2, 16, v0')
    A('v_add_u32 v34, v34, v2')
    A(f's_lshl_b32 s{sT2}, s{sH}, 13')
    A(f's_lshl_b32 s{sT1}, s{sT1}, 10')
    A(f's_add_u32 s{sT2}, s{sT2}, s{sT1}')
    A(f's_lshl_b32 s{sT0}, s{sT0}, 8')
    A(f's_add_u32 s{sT2}, s{sT2}, s{sT0}')
    A(f's_add_u32 s{sT2}, s{sT2}, {WS_QP}')
    A('s_waitcnt vmcnt(18)')
    stamp(1)
    A(f'v_readfirstlane_b32 s{sT0}, v33')
    A(f'ds_write_b32 v35, v33 offset:{L_TAG}')
    for n in range(9):
        A(f'v_lshlrev_b32 v{XF+2*n}, 16, v{XR+n}')
        A(f'v_and_b32 v{XF+2*n+1}, 0xffff0000, v{XR+n}')
    mk_tags(sT0)
    A(f'v_add_f32 v8, v{XF}, v{XF+1}')
    A(f'v_add_f32 v9, v{XF+2}, v{XF+3}')
    for i in range(4, 18, 2):
        A(f'v_add_f32 v8, v8, v{XF+i}')
        A(f'v_add_f32 v9, v9, v{XF+i+1}')
    A('v_add_f32 v8, v8, v9')
    row_sum16(8)
    xor16('v_add_f32', 8, 9)
    A(f'v_mul_f32 v8, {f32(1/576)}, v8')
    A(f'v_sub_f32 v12, v{XF}, v8')
    A(f'v_sub_f32 v13, v{XF+1}, v8')
    A('v_mul_f32 v10, v12, v12')
    A('v_mul_f32 v11, v13, v13')
    for i in range(2, 18, 2):
        A(f'v_sub_f32 v12, v{XF+i}, v8')
        A(f'v_sub_f32 v13, v{XF+i+1}, v8')
        A('v_fmac_f32 v10, v12, v12')
        A('v_fmac_f32 v11, v13, v13')
    A('v_add_f32 v10, v10, v11')
    row_sum16(10)
    xor16('v_add_f32', 10, 9)
    A(f'v_mul_f32 v10, {f32(1/576)}, v10')
    rnd_bf16(8, 8)
    rnd_bf16(10, 10)
    A(f'v_add_f32 v10, {f32(1e-5)}, v10')
    rnd_bf16(10, 10)
    A('v_sqrt_f32 v10, v10')
    rnd_bf16(10, 10)
    A('v_rcp_f32 v10, v10')
    for n in range(9):
        a, b = XF + 2*n, XF + 2*n + 1
        A(f'v_sub_f32 v{a}, v{a}, v8')
        A(f'v_sub_f32 v{b}, v{b}, v8')
        A(f'v_cvt_pk_bf16_f32 v{b}, v{a}, v{b}')
        A(f'v_lshlrev_b32 v{a}, 16, v{b}')
        A(f'v_and_b32 v{b}, 0xffff0000, v{b}')
        A(f'v_mul_f32 v{a}, v{a}, v10')
        A(f'v_mul_f32 v{b}, v{b}, v10')
        A(f'v_cvt_pk_bf16_f32 v{a}, v{a}, v{a}')
        A(f'v_cvt_pk_bf16_f32 v{b}, v{b}, v{b}')
        A(f'ds_write_b32 v1, v{a} offset:{L_T + n*64}')
        A(f'ds_write_b32 v1, v{b} offset:{L_T + 1152 + n*64}')
    A('s_waitcnt lgkmcnt(0)')
    for q in range(9): A(f'ds_read_b128 {v4(XF+4*q)}, v3 offset:{L_T + q*16}')
    for r in range(8): A(f'v_mov_b32 v{8+r}, 0')
    def qmf(u):
        b0 = 40 + 8*(u & 1)
        A(f'v_mfma_f32_16x16x32_bf16 v[8:11], {v4(b0)}, {v4(WQ+4*u)}, v[8:11]')
        A(f'v_mfma_f32_16x16x32_bf16 v[12:15], {v4(b0+4)}, {v4(WQ+4*u)}, v[12:15]')
    for u in range(18):
        if u % 2 == 0: A(f's_waitcnt lgkmcnt({8 - u//2})')
        b0 = 40 + 8*(u & 1)
        mkA(b0, XF + 2*u)
        mkA(b0 + 4, XF + 2*u + 1)
        if u >= 1:
            if (u - 1) % 6 == 0: A(f's_waitcnt vmcnt({12 - (u-1)})')
            qmf(u - 1)
    qmf(17)
    for r in range(4):
        A(f'v_add_f32_dpp v{8+r}, v{12+r}, v{8+r} row_ror:8 {DPP}')
    publish(8, 34, sT2, sLo8)
    stamp(2)
    A('v_mov_b32 v192, v37')
    mk_srd(rO, sOUT, None, 2304)
    GR = 128
    A(f's_cmp_lg_u32 s{sRole}, 1')
    A('s_cbranch_scc1 L_nogu')
    gu_srds()
    off8(3, 9216)
    A(f's_mov_b32 s{sOff}, {512*9216}')
    for u in range(8):
        A(f'buffer_load_dwordx4 {v4(GR+8*u)}, v3, {srd(rA)}, s{sOff} offen {wflags}')
        A(f'buffer_load_dwordx4 {v4(GR+8*u+4)}, v3, {srd(rB)}, s{sOff} offen {wflags}')
        if u < 7: A(f's_add_u32 s{sOff}, s{sOff}, {8*9216}')
    A('L_nogu:')
    A(f's_lshl_b32 s{sT2}, s{sH}, 1')
    A(f's_add_u32 s{sT2}, s{sT2}, s{sB}')
    A(f's_lshl_b32 s{sT2}, s{sT2}, 12')
    A(f's_add_u32 s{sT2}, s{sT2}, {WS_QP}')
    A('v_lshlrev_b32 v1, 4, v0')
    A('v_lshlrev_b32 v3, 3, v0')
    if qsleep:
        A('s_waitcnt vmcnt(0)')
        A(f's_sleep {qsleep}')
    A('L_q_poll:')
    if qsleep2: A(f's_sleep {qsleep2}')
    for i in range(4):
        A(f'buffer_load_dwordx4 {v4(64+4*i)}, v1, {srd(rWS)}, s{sT2} offen offset:{i*1024} {ldf}')
    A('s_waitcnt vmcnt(0)')
    check_tags(quads(64, 4), 8, 9, 'L_q_poll', 'L_q')
    for i in range(16): A(f'v_and_b32 v{64+i}, -16, v{64+i}')
    for r in range(4):
        A(f'v_add_f32 v{64+r}, v{64+r}, v{68+r}')
        A(f'v_add_f32 v{72+r}, v{72+r}, v{76+r}')
    for r in range(4): A(f'v_add_f32 v{64+r}, v{64+r}, v{72+r}')
    A('v_cvt_pk_bf16_f32 v8, v64, v65')
    A('v_cvt_pk_bf16_f32 v9, v66, v67')
    A(f'ds_write_b64 v3, v[8:9] offset:{L_Q}')
    A('s_waitcnt lgkmcnt(0)')
    stamp(3)
    A('s_barrier')
    A('s_setprio 0')
    A(f's_cmp_eq_u32 s{sRole}, 1')
    A('s_cbranch_scc1 L_ffn')
    q_addr()
    A(f'ds_read_b128 {v4(vQ)}, v1 offset:{L_Q}')
    A(f'v_lshlrev_b32 v1, 4, v0')
    A(f'v_add_u32 v1, {L_KV}, v1')
    A(f'v_and_b32 v{vSb}, 0x38, v0')
    A(f's_mov_b32 s{sCnt}, 0')
    A('L_cu_loop:')
    for n in range(4): A(f'ds_read_b128 {v4(BUF[0]+4*n)}, v1 offset:{n*1024}')
    A('v_add_u32 v1, 4096, v1')
    A(f's_and_b32 s{sT1}, s{sCnt}, 3')
    A(f's_lshl_b32 s{sT1}, s{sT1}, 12')
    A(f's_lshr_b32 s{sT2}, s{sCnt}, 2')
    A(f's_add_u32 s{sT2}, s{sT2}, {NC}')
    A(f's_lshl_b32 s{sT2}, s{sT2}, 6')
    A(f's_add_u32 s{sT1}, s{sT1}, s{sT2}')
    A(f'v_add_u32 v{vSa}, s{sT1}, v{vSb}')
    A('s_waitcnt lgkmcnt(0)')
    for c in k_parts(BUF[0]): c()
    A(f's_add_u32 s{sCnt}, s{sCnt}, 1')
    A(f's_cmp_lg_u32 s{sCnt}, 32')
    A('s_cbranch_scc1 L_cu_loop')
    A('v_lshlrev_b32 v1, 2, v0')
    A('s_waitcnt lgkmcnt(0)')
    A('s_mov_b32 exec_lo, 0')
    A(f's_mov_b32 exec_hi, 0x{0xff << (NC - 32):x}')
    A(f'ds_write_b32 v1, v192 offset:{L_TQ + 4*NC}')
    A('s_mov_b64 exec, -1')
    stamp(7)
    A('s_branch L_agent')
    A('L_ffn:')
    FA = 24
    for r in range(16): A(f'v_mov_b32 v{FA+r}, 0')
    A('v_lshrrev_b32 v1, 3, v0')
    A('v_mul_u32_u24 v1, 576, v1')
    A('v_lshlrev_b32 v3, 4, v0')
    A(f'v_add_u32 v3, {L_KV}, v3')
    A(f's_mov_b32 s{sCnt}, 32')
    def gu_step(g0):
        for uu in range(2):
            mkA(56, 8 + 2*uu)
            mkA(60, 9 + 2*uu)
            g = g0 + 8*uu
            A(f'v_mfma_f32_16x16x32_bf16 {v4(FA)}, v[56:59], {v4(g)}, {v4(FA)}')
            A(f'v_mfma_f32_16x16x32_bf16 {v4(FA+4)}, v[60:63], {v4(g)}, {v4(FA+4)}')
            A(f'v_mfma_f32_16x16x32_bf16 {v4(FA+8)}, v[56:59], {v4(g+4)}, {v4(FA+8)}')
            A(f'v_mfma_f32_16x16x32_bf16 {v4(FA+12)}, v[60:63], {v4(g+4)}, {v4(FA+12)}')
    A('L_ffn_loop:')
    A(f'ds_read_b128 v[8:11], v1 offset:{L_T}')
    for n in range(4): A(f'ds_read_b128 {v4(64+4*n)}, v3 offset:{n*1024}')
    A('v_add_u32 v1, 16, v1')
    A('v_add_u32 v3, 4096, v3')
    A('s_waitcnt lgkmcnt(0)')
    gu_step(64)
    A(f's_sub_u32 s{sCnt}, s{sCnt}, 1')
    A(f's_cmp_lg_u32 s{sCnt}, 0')
    A('s_cbranch_scc1 L_ffn_loop')
    for i in range(4):
        A(f'ds_read_b128 v[8:11], v1 offset:{L_T + 16*i}')
        A('s_waitcnt lgkmcnt(0)')
        gu_step(GR + 16*i)
    A('v_lshrrev_b32 v1, 5, v0')
    A('v_lshlrev_b32 v1, 7, v1')
    A('v_and_b32 v2, 7, v0')
    A('v_lshl_add_u32 v1, v2, 3, v1')
    A('v_bfe_u32 v2, v0, 4, 1')
    A('v_lshl_add_u32 v1, v2, 2, v1')
    for r in range(4):
        A(f'v_add_f32_dpp v{FA+r}, v{FA+4+r}, v{FA+r} row_ror:8 {DPP}')
        A(f'v_add_f32_dpp v{FA+8+r}, v{FA+12+r}, v{FA+8+r} row_ror:8 {DPP}')
    for r in range(4):
        rnd_bf16(FA+r, FA+r)
        rnd_bf16(FA+8+r, FA+8+r)
        silu(FA+r, FA+r, FA+4+r)
        rnd_bf16(FA+r, FA+r)
        A(f'v_mul_f32 v{FA+r}, v{FA+r}, v{FA+8+r}')
        A(f'v_cvt_pk_bf16_f32 v{FA+r}, v{FA+r}, v{FA+r}')
    A(f's_mov_b64 exec, s[{sLo8}:{sLo8+1}]')
    for r in range(4): A(f'ds_write_b32 v1, v{FA+r} offset:{L_T2 + r*256}')
    A('s_mov_b64 exec, -1')
    A('L_agent:')
    stamp(4)
    A('v_mov_b32 v1, 0')
    A(f's_mov_b32 s{sCnt}, {NC*8 + 32}')
    A(f's_cmp_eq_u32 s{sRole}, 1')
    A(f's_cselect_b32 s{sCnt}, {NC*8 + 8*EXF}, s{sCnt}')
    sNL, sNP = sAP, sAML
    heavy(sT1)
    A(f's_cselect_b32 s{sNL}, {2*LF}, {3*LF}')
    A(f's_add_u32 s{sNP}, s{sNL}, {NPB}')
    A(f's_mov_b32 s{sT1}, 0')
    A(f's_cmp_eq_u32 s{sRole}, 1')
    A(f's_cselect_b32 s{sT1}, {THF}, s{sT1}')
    A(f's_cmp_eq_u32 s{sRole}, 3')
    A(f's_cselect_b32 s{sT1}, {THO}, s{sT1}')
    A(f's_sub_u32 s{sAoff}, s{sNP}, s{sT1}')
    A('L_ag_wait:')
    A('s_sleep 2')
    A(f'ds_read_b128 v[8:11], v1 offset:{L_PG}')
    A(f's_sub_u32 s{sT1}, s{sCnt}, {4*lead}')
    A('s_waitcnt lgkmcnt(0)')
    A(f'v_{trig}3_u32 v8, v8, v9, v10')
    A(f'v_{trig}_u32 v8, v8, v11')
    A(f'v_cmp_gt_u32 vcc, s{sT1}, v8')
    spin_check('L_ag_wait', 'L_ag')
    A('v_mov_b32 v8, 1')
    A('s_mov_b64 exec, 1')
    A(f'buffer_atomic_add v8, off, {srd(rWS)}, s{sXoff} sc0')
    A('s_mov_b64 exec, -1')
    A(f'v_mov_b32 v9, s{sCnt}')
    A('s_waitcnt vmcnt(0)')
    A(f'v_readfirstlane_b32 s{sT1}, v8')
    A(f's_add_u32 s{sCnt}, s{sCnt}, 8')
    A(f's_min_u32 s{sT1}, s{sT1}, s{sNP}')
    A(f's_sub_u32 s{sT2}, s{sT1}, s{sNL}')
    A(f's_add_u32 s{sT2}, s{sT2}, {(NC + 8)*8}')
    A(f's_lshr_b32 s{sF0}, s{sT1}, {2 if LF == 4 else 3}')
    A(f's_add_u32 s{sF0}, s{sF0}, s{sG}')
    A(f's_add_u32 s{sF0}, s{sF0}, 1')
    A(f's_and_b32 s{sF0}, s{sF0}, 7')
    A(f's_and_b32 s{sF1}, s{sT1}, {LF - 1}')
    A(f's_add_u32 s{sF1}, s{sF1}, {NC + EXF}')
    A(f's_lshl_b32 s{sF1}, s{sF1}, 3')
    A(f's_add_u32 s{sF0}, s{sF0}, s{sF1}')
    A(f's_cmp_lt_u32 s{sT1}, s{sNL}')
    A(f's_cselect_b32 s{sT2}, s{sF0}, s{sT2}')
    A(f's_and_b32 s{sF0}, s{sT2}, 7')
    A(f's_lshl_b32 s{sF0}, s{sF0}, 9')
    A(f's_lshr_b32 s{sT2}, s{sT2}, 3')
    A(f's_lshl_b32 s{sT2}, s{sT2}, 17')
    A(f's_add_u32 s{sT2}, s{sT2}, s{sF0}')
    A(f's_add_u32 s{sT2}, s{sT2}, {(63 << 24) + 1}')
    A(f'v_mov_b32 v10, s{sT2}')
    A('v_or_b32 v11, 2, v10')
    A(f'ds_write_b64 v9, v[10:11] offset:{L_TQ}')
    A(f's_cmp_lt_u32 s{sT1}, s{sAoff}')
    A('s_cbranch_scc1 L_ag_wait')
    A(f'v_mov_b32 v10, {(63 << 24) + (1 << 23) + 1}')
    A('v_or_b32 v11, 2, v10')
    A(f'ds_write_b64 v9, v[10:11] offset:{L_TQ + 8}')
    A('s_waitcnt lgkmcnt(0)')
    stamp(8)
    if codepf & 2:
        A(f's_getpc_b64 s[{sP}:{sP+1}]')
        A('L_pcref:')
        A(f's_sub_u32 s{sP}, s{sP}, L_pcref-L_loop_done')
        A(f's_subb_u32 s{sP+1}, s{sP+1}, 0')
        A('v_lshlrev_b32 v1, 4, v0')
        for i in range(4): A(f'global_load_dwordx4 v[224:227], v1, s[{sP}:{sP+1}] offset:{i*1024}')
    A(f's_cmp_lg_u32 s{sRole}, 2')
    A(f's_cbranch_scc1 {LEND}')
    A('s_setprio 3')
    A('L_red:')
    mk_srd(rB, sX, None, 2304)
    A('v_and_b32 v18, 3, v0')
    A('v_lshlrev_b32 v18, 2, v18')
    A('v_lshrrev_b32 v2, 4, v0')
    A('v_add_lshl_u32 v18, v18, v2, 1')
    A(f's_lshl_b32 s{sCnt}, s{sUnit}, 5')
    A(f'buffer_load_ushort v19, v18, {srd(rB)}, s{sCnt} offen')
    A(f's_lshr_b32 s{sT1}, s{sUnit}, 1')
    A(f's_and_b32 s{sT2}, s{sUnit}, 1')
    A(f's_lshl_b32 s{sT2}, s{sT2}, 6')
    A(f's_mul_i32 s{sOff}, s{sT1}, {72*128}')
    A(f's_add_u32 s{sOff}, s{sOff}, s{sT2}')
    A(f's_add_u32 s{sOff}, s{sOff}, {WS_DP}')
    A(f's_lshl_b32 s{sT1}, s{sT1}, 13')
    A(f's_add_u32 s{sT1}, s{sT1}, s{sT2}')
    A(f's_add_u32 s{sT1}, s{sT1}, {WS_SP}')
    A('v_lshrrev_b32 v1, 2, v0')
    A('v_lshlrev_b32 v1, 7, v1')
    A('v_and_b32 v2, 3, v0')
    A('v_lshl_add_u32 v1, v2, 4, v1')
    A('v_add_u32 v2, 4096, v1')
    A('v_and_b32 v3, 0x3ff, v1')
    A('v_add_u32 v3, 8192, v3')
    A(f's_mov_b32 s{sP}, 0x000f000f')
    A(f's_mov_b32 s{sP+1}, 0x000f000f')
    A('s_barrier')
    def sum_red(b, n):
        for r in range(4):
            A(f'v_add_f32 v{b+r}, v{b+r}, v{b+4+r}')
            A(f'v_add_f32 v{b+8+r}, v{b+8+r}, v{b+12+r}')
        if n == 5:
            for r in range(4): A(f'v_add_f32 v{b+r}, v{b+r}, v{b+16+r}')
        for r in range(4): A(f'v_add_f32 v{b+r}, v{b+r}, v{b+8+r}')
        rscatter4(b)
        A(f'v_add_f32_dpp v{b}, v{b}, v{b} row_ror:4 {DPP}')
        A(f'v_add_f32_dpp v{b}, v{b}, v{b} row_ror:8 {DPP}')
    def sp_loads():
        for i in range(4):
            A(f'buffer_load_dwordx4 {v4(64+4*i)}, v{1 + i//2}, {srd(rWS)}, s{sT1} offen offset:{(i&1)*2048} {ldf}')
    A('L_dp_poll:')
    for i in range(5):
        A(f'buffer_load_dwordx4 {v4(84+4*i)}, v{1 + i//2}, {srd(rWS)}, s{sOff} offen offset:{(i&1)*2048} {ldf}')
    sp_loads()
    A('s_waitcnt vmcnt(4)')
    check_tags(quads(84, 5), 8, 9, 'L_dp_poll', 'L_dp')
    for r in range(4): A(f'v_cndmask_b32 v{100+r}, v{100+r}, 0, s[{sHi}:{sHi+1}]')
    sum_red(84, 5)
    rnd_bf16(24, 84)
    silu(24, 24, 26)
    rnd_bf16(24, 24)
    A('v_lshlrev_b32 v26, 16, v19')
    stamp(5)
    A('s_branch L_sp_chk')
    A('L_sp_poll:')
    sp_loads()
    A('L_sp_chk:')
    A('s_waitcnt vmcnt(0)')
    check_tags(quads(64, 4), 8, 9, 'L_sp_poll', 'L_sp')
    stamp(6)
    sum_red(64, 4)
    rnd_bf16(28, 64)
    A('v_mul_f32 v28, v28, v24')
    rnd_bf16(28, 28)
    A('v_add_f32 v28, v28, v26')
    A('v_cvt_pk_bf16_f32 v28, v28, v28')
    A(f's_mov_b64 exec, s[{sP}:{sP+1}]')
    A(f'buffer_store_short v28, v18, {srd(rO)}, s{sCnt} offen')
    A(f's_cmp_lg_u32 s{sUnit}, 0')
    A(f's_cbranch_scc1 {LEND}')
    A('s_mov_b64 exec, 1')
    A(f'v_mov_b32 v1, s{sTg}')
    A(f'buffer_store_dword v1, off, {srd(rWS)}, 0')
    if stamps:
        A('L_exit:')
        A('s_mov_b64 exec, 1')
        A(f's_mul_i32 s{sSt}, s2, 5')
        A(f's_add_u32 s{sSt}, s{sSt}, s{sWave}')
        A(f's_lshl_b32 s{sSt}, s{sSt}, 6')
        A(f's_add_u32 s{sSt}, s{sSt}, {WS_ST}')
        for q in range(3):
            for r in range(4):
                i = 4*q + r
                A(f'v_mov_b32 v{224+i}, ' + (f's{sSt+2+i}' if i < 10 else (f'v{vTQ}' if i == 10 else '0')))
            A(f'buffer_store_dwordx4 {v4(224+4*q)}, off, {srd(rWS)}, s{sSt} offset:{16*q}')
    A('L_end:')
    A('s_endpgm')
    A('.fill 1024, 4, 0xbf810000')

    body = A.finish()
    out = HEADER
    out += f'; @launch grid=(256,1,1) block=(320,1,1) lds={LDS_BYTES}\n'
    out += '.amdgcn_target "amdgcn-amd-amdhsa--gfx950"\n.text\n'
    out += f'.globl {KNAME}\n.p2align 8\n.type {KNAME},@function\n'
    out += body
    out += f'''.section .rodata,"a"
.p2align 6
.amdhsa_kernel {KNAME}
  .amdhsa_next_free_vgpr 240
  .amdhsa_next_free_sgpr 100
  .amdhsa_accum_offset 240
  .amdhsa_group_segment_fixed_size 0
  .amdhsa_kernarg_size 96
  .amdhsa_user_sgpr_count 2
  .amdhsa_user_sgpr_kernarg_segment_ptr 1
  .amdhsa_system_sgpr_workgroup_id_x 1
  .amdhsa_float_denorm_mode_32 3
.end_amdhsa_kernel
'''
    return out

if __name__ == '__main__':
    import argparse
    ap = argparse.ArgumentParser()
    ap.add_argument('-o', default='k.s')
    ap.add_argument('-W', default='5555')
    ap.add_argument('--Wp', type=int, default=6)
    ap.add_argument('--NC', type=int, default=54)
    ap.add_argument('--lead', type=int, default=3)
    ap.add_argument('--rdpos', type=int, default=2)
    ap.add_argument('--vsched', default='0,0,1')
    ap.add_argument('--ffnw', type=int, default=2)
    ap.add_argument('--THO', type=int, default=13)
    ap.add_argument('--trig', default='min')
    ap.add_argument('--prio', type=int, default=1)
    ap.add_argument('--slabpos', type=int, default=1)
    ap.add_argument('--stf', default='sc1')
    ap.add_argument('--WV', default=None)
    ap.add_argument('--bar1', type=int, default=1)
    ap.add_argument('--epf', default='sc1')
    ap.add_argument('--WpF', type=int, default=6)
    ap.add_argument('--XF', type=int, default=0)
    ap.add_argument('--ldf', default='sc1')
    ap.add_argument('--THF', type=int, default=10)
    ap.add_argument('--stamps', action='store_true')
    ap.add_argument('--codepf', type=int, default=4)
    ap.add_argument('--qsleep', type=int, default=10)
    ap.add_argument('--qsleep2', type=int, default=4)
    ap.add_argument('--abl', default='')
    a = ap.parse_args()
    open(a.o, 'w').write(gen(W=tuple(int(c) for c in a.W), Wp=a.Wp, stamps=a.stamps, codepf=a.codepf,
                             qsleep=a.qsleep, qsleep2=a.qsleep2, abl=a.abl, NC=a.NC, lead=a.lead, rdpos=a.rdpos,
                             vsched=tuple(int(x) for x in a.vsched.split(',')), ffnw=a.ffnw, THO=a.THO, THF=a.THF, trig=a.trig, prio=a.prio, slabpos=a.slabpos, stf=a.stf, ldf=a.ldf, WV=None if a.WV is None else tuple(int(c) for c in a.WV), EXF=a.XF, WpF=a.WpF, bar1=a.bar1, epf=a.epf))
```

```python
import sys, struct
from asmlib import Asm

KNAME = 'recurrent_scan__gqa_block_cached__swiglu_ffn__decode_kernel'
def f32(x): return '0x%08x' % struct.unpack('<I', struct.pack('<f', x))[0]

WS_EPOCH = 0x0
WS_CNT = 0x1000
CNT_STRIDE = 4352
WS_QP = 0x40000
WS_AP = 0x60000
WS_AML = 0xA0000
WS_SP = 0xB0000
WS_DP = 0x100000
WS_ST = 0x200000
WS_SIZE = 0x400000
L_T = 0
L_Q = 4608
L_T2 = 5120
L_XO = 6144
L_XM = 10240
L_TAG = 10304
L_PG = 10320
L_TQ = 10368
L_SC = 11392
L_KV = 27776
LDS_BYTES = L_KV + 131072
SLAB = 64 * 1152

HEADER = open('recurrent_scan__gqa_block_cached__swiglu_ffn__decode.s.ref').read().split('; Override launch')[0]

def gen(W=(5,5,5,5), Wp=6, stamps=False, kvflags='nt', wflags='nt', NC=54, codepf=4, qsleep=10, qsleep2=4,
        abl='', lead=3, rdpos=2, vsched=(0,0,1), ffnw=2, THO=13, THF=10, trig='min', prio=1, slabpos=1, stf='sc1', ldf='sc1', WV=None, EXF=0, WpF=6, bar1=1, epf='sc1', dbgt=False):
    NPB = 512 - 8*NC - 64
    LF = 8 - EXF
    assert LF in (4, 8)
    NP = NPB + 3*LF
    assert NC + 8 <= 63 and 2*NC + 8 + 2*NP + 4 <= 256 and all(4 <= x <= 8 for x in W)
    IOFF = [0, 256, 0, 256]
    A = Asm()
    sX, sK, sV, sWQ, sWO, sWG, sWU, sWD, sOUT, sDBG, sWSP = 4, 6, 8, 10, 12, 16, 18, 20, 22, 24, 26
    rI, rS, rWS, rA, rB, rO = 28, 32, 36, 40, 44, 48
    sWave, sG, sJ, sB, sH, sRole, sUnit, sOff, sCnt, sT0, sT1, sT2 = 3, 52, 53, 54, 55, 56, 57, 58, 59, 60, 61, 62
    sScale, sLog2e, sNLog2e, sSpin = 63, 64, 65, 66
    sA = 67
    sHi = 68
    sLo8 = 70
    sF0, sF1 = 72, 73
    sAoff, sXoff = 74, 75
    sTg = 76
    sP = 80
    sAP, sAML = 82, 83
    sSt = 84
    sE = [96, 97, 98]
    sOff2 = 99
    sPub2 = 15
    sPub = 14
    sKb, sVb = 4, 6
    def srd(r): return f's[{r}:{r+3}]'
    def v4(r): return f'v[{r}:{r+3}]'
    def v2(r): return f'v[{r}:{r+1}]'
    def stamp(idx):
        if not stamps: return
        A(f's_memrealtime s[{sSt}:{sSt+1}]')
        A('s_waitcnt lgkmcnt(0)')
        A(f's_mov_b32 s{sSt+2+idx}, s{sSt}')
    def endpgm():
        A('s_branch L_exit' if stamps else 's_endpgm')
    LEND = 'L_exit' if stamps else 'L_end'

    def mk_srd(r, base, off_sgpr, size):
        if off_sgpr is None:
            A(f's_mov_b32 s{r}, s{base}')
            A(f's_mov_b32 s{r+1}, s{base+1}')
        else:
            A(f's_add_u32 s{r}, s{base}, s{off_sgpr}')
            A(f's_addc_u32 s{r+1}, s{base+1}, 0')
        if isinstance(size, int): A(f's_mov_b32 s{r+2}, {size}')
        else: A(size)
        A(f's_mov_b32 s{r+3}, 0x20000')
    def xor16(op, x, t):
        A(f'v_mov_b32 v{t}, v{x}')
        A(f'v_permlane16_swap_b32 v{x}, v{t}')
        A(f'{op} v{x}, v{x}, v{t}')
    def xor32(op, x, t):
        A(f'v_mov_b32 v{t}, v{x}')
        A(f'v_permlane32_swap_b32 v{x}, v{t}')
        A(f'{op} v{x}, v{x}, v{t}')
    DPP = 'row_mask:0xf bank_mask:0xf'
    def row_sum16(x):
        A(f'v_add_f32_dpp v{x}, v{x}, v{x} quad_perm:[1,0,3,2] {DPP}')
        A(f'v_add_f32_dpp v{x}, v{x}, v{x} quad_perm:[2,3,0,1] {DPP}')
        A(f'v_add_f32_dpp v{x}, v{x}, v{x} row_half_mirror {DPP}')
        A(f'v_add_f32_dpp v{x}, v{x}, v{x} row_mirror {DPP}')
    def rscatter4(x):
        A(f'v_permlane32_swap_b32 v{x}, v{x+2}')
        A(f'v_permlane32_swap_b32 v{x+1}, v{x+3}')
        A(f'v_add_f32 v{x}, v{x}, v{x+2}')
        A(f'v_add_f32 v{x+1}, v{x+1}, v{x+3}')
        A(f'v_permlane16_swap_b32 v{x}, v{x+1}')
        A(f'v_add_f32 v{x}, v{x}, v{x+1}')
    def rnd_bf16(dst, src):
        A(f'v_cvt_pk_bf16_f32 v{dst}, v{src}, v{src}')
        A(f'v_and_b32 v{dst}, 0xffff0000, v{dst}')
    def mkA(dst, x):
        for w in range(4):
            A(f'v_and_b32 v{dst+w}, v{x}, v{4+w}')
    def spin_check(retry_label, name):
        A(f's_cbranch_vccz {name}_ok')
        A(f's_sub_u32 s{sSpin}, s{sSpin}, 1')
        A(f's_cmp_gt_i32 s{sSpin}, 0')
        A(f's_cbranch_scc1 {retry_label}')
        A(f'{name}_ok:')
    def tag_vcc(words, t0, t1):
        acc_ = [t0, t1]
        for i, (w, tg) in enumerate(words):
            if i < 2: A(f'v_xor_b32 v{acc_[i]}, s{tg}, v{w}')
            else: A(f'v_bitop3_b32 v{acc_[i&1]}, v{w}, s{tg}, v{acc_[i&1]} bitop3:0xbe')
        A(f'v_bitop3_b32 v{t0}, v{t0}, v{t1}, 15 bitop3:0xa8')
        A(f'v_cmp_ne_u32 vcc, 0, v{t0}')
    def check_tags(words, t0, t1, retry_label, name):
        tag_vcc(words, t0, t1)
        spin_check(retry_label, name)
    def quads(base, n): return [(base + i, sTg + (i & 3)) for i in range(4*n)]
    def silu(dst, x, t):
        A(f'v_mul_f32 v{t}, s{sNLog2e}, v{x}')
        A(f'v_exp_f32 v{t}, v{t}')
        A(f'v_add_f32 v{t}, 1.0, v{t}')
        A(f'v_rcp_f32 v{t}, v{t}')
        A(f'v_mul_f32 v{dst}, v{x}, v{t}')
    def tagq(dst, src):
        for r in range(4): A(f'v_bfi_b32 v{dst+r}, 15, s{sTg+r}, v{src+r}')
    def publish(vals, voff, soff, mask=None):
        tagq(vals, vals)
        if mask: A(f's_mov_b64 exec, s[{mask}:{mask+1}]')
        A(f'buffer_store_dwordx4 {v4(vals)}, v{voff}, {srd(rWS)}, s{soff} offen {stf}')
        if mask: A('s_mov_b64 exec, -1')
    def mk_tags(src):
        A(f's_add_u32 s{sTg}, s{src}, 1')
        A(f's_add_u32 s{sTg+1}, s{src}, 6')
        A(f's_add_u32 s{sTg+2}, s{src}, 11')
        A(f's_add_u32 s{sTg+3}, s{src}, 14')
    def off8(dst, stride, t=2):
        A(f'v_lshrrev_b32 v{dst}, 4, v0')
        A(f'v_bfe_u32 v{t}, v0, 3, 1')
        A(f'v_lshl_add_u32 v{dst}, v{t}, 2, v{dst}')
        A(f'v_mul_u32_u24 v{dst}, {stride}, v{dst}')
        A(f'v_and_b32 v{t}, 7, v0')
        A(f'v_lshl_add_u32 v{dst}, v{t}, 4, v{dst}')
    def off4(dst, stride, t=2):
        A(f'v_lshrrev_b32 v{dst}, 4, v0')
        A(f'v_mul_u32_u24 v{dst}, {stride}, v{dst}')
        A(f'v_and_b32 v{t}, 15, v0')
        A(f'v_lshl_add_u32 v{dst}, v{t}, 4, v{dst}')
    def consts():
        A(f's_mov_b32 s{sScale}, {f32(128 ** -0.5)}')
        A(f's_mov_b32 s{sLog2e}, {f32(1.4426950408889634)}')
        A(f's_mov_b32 s{sNLog2e}, {f32(-1.4426950408889634)}')
        A(f's_mov_b32 s{sSpin}, 0x40000')
        A(f's_mov_b32 s{sHi}, 0')
        A(f's_mov_b32 s{sHi+1}, -1')
        A(f's_mov_b32 s{sLo8}, 0x00ff00ff')
        A(f's_mov_b32 s{sLo8+1}, 0x00ff00ff')
        A('v_and_b32 v1, 1, v0')
        A('v_lshlrev_b32 v1, 4, v1')
        A('v_mov_b32 v2, 0xffff')
        A('v_lshlrev_b32 v1, v1, v2')
        A('v_bfe_u32 v2, v0, 1, 2')
        for w in range(4):
            A(f'v_cmp_eq_u32 vcc, {w}, v2')
            A(f'v_cndmask_b32 v{4+w}, 0, v1, vcc')
    def heavy(dst):
        A(f's_lshr_b32 s{dst}, s{sG}, 3')
        A(f's_xor_b32 s{dst}, s{dst}, s{sG}')
        A(f's_and_b32 s{dst}, s{dst}, 3')
    def roles():
        A(f's_sub_u32 s{sF0}, s{sJ}, s{sG}')
        A(f's_and_b32 s{sF0}, s{sF0}, 7')
        A(f's_cmp_le_u32 s{sF0}, 3')
        A(f's_cselect_b32 s{sRole}, 1, 2')
        A(f's_cselect_b32 s{sT1}, 1, 4')
        A(f's_sub_u32 s{sT1}, s{sF0}, s{sT1}')
        A(f's_and_b32 s{sUnit}, s{sG}, 7')
        A(f's_lshl_b32 s{sUnit}, s{sUnit}, 1')
        A(f's_add_u32 s{sUnit}, s{sUnit}, s{sT1}')
        A(f's_lshl_b32 s{sUnit}, s{sUnit}, 2')
        A(f's_lshr_b32 s{sT2}, s{sG}, 3')
        A(f's_add_u32 s{sUnit}, s{sUnit}, s{sT2}')
        heavy(sT2)
        A(f's_cselect_b32 s{sT2}, 0, s{sRole}')
        A(f's_lshr_b32 s{sP}, s{sG}, 2')
        A(f's_add_u32 s{sP}, s{sP}, 64')
        A(f's_cmp_eq_u32 s{sT1}, 2')
        A(f's_cselect_b32 s{sRole}, s{sT2}, s{sRole}')
        A(f's_cselect_b32 s{sUnit}, s{sP}, s{sUnit}')
        A(f's_lshl_b32 s{sF1}, s{sG}, 1')
        A(f's_and_b32 s{sT1}, s{sF0}, 1')
        A(f's_add_u32 s{sF1}, s{sF1}, s{sT1}')
        A(f's_add_u32 s{sF0}, s{sF0}, 1')
        A(f's_and_b32 s{sF0}, s{sF0}, 6')
        A(f's_cselect_b32 s{sRole}, s{sRole}, 3')
        A(f's_cselect_b32 s{sUnit}, s{sUnit}, s{sF1}')
    def role_slab(vpub):
        A(f's_cmp_lg_u32 s{sRole}, 3')
        A(f's_cselect_b64 s[{sP}:{sP+1}], s[{sWD}:{sWD+1}], s[{sWO}:{sWO+1}]')
        A(f's_mov_b32 s{sT2}, {64*128}')
        A(f's_cselect_b32 s{sT2}, {72*128}, s{sT2}')
        A(f's_mov_b32 s{sPub}, {WS_SP}')
        A(f's_cselect_b32 s{sPub}, {WS_DP}, s{sPub}')
        A(f's_mul_i32 s{sT1}, s{sUnit}, {SLAB}')
        mk_srd(rS, sP, sT1, SLAB)
        A(f's_lshl_b32 s{sT1}, s{sUnit}, 7')
        A(f's_add_u32 s{sPub}, s{sPub}, s{sT1}')
        A(f's_lshl_b32 s{sT1}, s{sA}, 2')
        A(f's_mul_i32 s{sT1}, s{sT1}, s{sT2}')
        A(f's_add_u32 s{sPub}, s{sPub}, s{sT1}')
        A(f's_lshl_b32 s{sT1}, s{sT2}, 2')
        A(f's_add_u32 s{sPub2}, s{sPub}, s{sT1}')
        A(f'v_lshrrev_b32 v{vpub}, 5, v0')
        A(f'v_mul_u32_u24 v{vpub}, 18, v{vpub}')
        A('v_bfe_u32 v2, v0, 2, 2')
        A(f'v_add_u32 v{vpub}, v{vpub}, v2')
        A(f'v_mul_u32_u24 v{vpub}, s{sT2}, v{vpub}')
        A('v_and_b32 v2, 3, v0')
        A(f'v_lshl_add_u32 v{vpub}, v2, 5, v{vpub}')
        A('v_and_b32 v2, 16, v0')
        A(f'v_add_u32 v{vpub}, v{vpub}, v2')

    vKoff, vVoff, vM, vML, vQ, acc, vL = 8, 9, 10, 11, 12, 16, 20
    vXO, vXM, vTQ, vTK, vPG = 3, 21, 22, 23, 2
    D = 24; S = 40; U = 44; T = 46; T2 = 47; AF = 48
    BUF = [64, 80, 96]
    vIoff, vSb, vSa, vL16 = 112, 113, 114, 115
    SCR = 116
    vPub, vSlab, vXr, vOg, vTw, vAPo = 118, 119, 120, 121, 122, 123
    WOR = 128
    def unpack4(src):
        A(f'v_lshlrev_b32 v{S}, 16, v{src}')
        A(f'v_and_b32 v{S+1}, 0xffff0000, v{src}')
        A(f'v_lshlrev_b32 v{S+2}, 16, v{src+1}')
        A(f'v_and_b32 v{S+3}, 0xffff0000, v{src+1}')
    def k_parts(buf):
        def qk():
            for n in range(4):
                A(f'v_mfma_f32_16x16x32_bf16 {v4(D+4*n)}, {v4(buf+4*n)}, {v4(vQ)}, 0')
        def red():
            for r in range(4):
                for n in range(4):
                    if r == 0: A(f'v_mov_b32_dpp v{S+n}, v{D+4*n} quad_perm:[0,0,0,0] {DPP}')
                    else: A(f'v_add_f32_dpp v{S+n}, v{D+4*n+r}, v{S+n} quad_perm:[{r},{r},{r},{r}] {DPP}')
        def scale():
            A(f'v_cvt_pk_bf16_f32 v{U}, v{S}, v{S+1}')
            A(f'v_cvt_pk_bf16_f32 v{U+1}, v{S+2}, v{S+3}')
            unpack4(U)
            for n in range(4): A(f'v_mul_f32 v{S+n}, s{sScale}, v{S+n}')
            A(f'v_cvt_pk_bf16_f32 v{U}, v{S}, v{S+1}')
            A(f'v_cvt_pk_bf16_f32 v{U+1}, v{S+2}, v{S+3}')
            A(f'ds_write_b64 v{vSa}, {v2(U)} offset:{L_SC}')
        return qk, red, scale
    def v_parts(buf, name):
        def soft():
            unpack4(SCR)
            A(f'v_max3_f32 v{T}, v{S}, v{S+1}, v{S+2}')
            A(f'v_max_f32 v{T}, v{T}, v{S+3}')
            A(f'v_cmp_gt_f32 vcc, v{T}, v{vM}')
            A(f's_cbranch_vccnz L_resc{name}')
            A(f'L_back{name}:')
            for n in range(4): A(f'v_fma_f32 v{S+n}, v{S+n}, s{sLog2e}, v{vML}')
            for n in range(4): A(f'v_exp_f32 v{S+n}, v{S+n}')
            A(f'v_add_f32 v{T}, v{S}, v{S+1}')
            A(f'v_add_f32 v{T2}, v{S+2}, v{S+3}')
            for n in range(4): A(f'v_cvt_pk_bf16_f32 v{S+n}, v{S+n}, v{S+n}')
            A(f'v_add_f32 v{T}, v{T}, v{T2}')
            A(f'v_add_f32 v{vL}, v{vL}, v{T}')
        def masks():
            for n in range(4): mkA(AF + 4*n, S + n)
        def pv():
            for n in range(4):
                A(f'v_mfma_f32_16x16x32_bf16 {v4(acc)}, {v4(AF+4*n)}, {v4(buf+4*n)}, {v4(acc)}')
        return soft, masks, pv
    def resc(name):
        A(f'L_resc{name}:')
        A(f'v_max_f32 v{T}, v{T}, v{vM}')
        xor16('v_max_f32', T, T2)
        xor32('v_max_f32', T, T2)
        A(f'v_sub_f32 v{T2}, v{vM}, v{T}')
        A(f'v_mul_f32 v{T2}, s{sLog2e}, v{T2}')
        A(f'v_exp_f32 v{T2}, v{T2}')
        A(f'v_mov_b32 v{vM}, v{T}')
        A(f'v_mul_f32 v{vML}, s{sNLog2e}, v{T}')
        A(f'v_mul_f32 v{vL}, v{vL}, v{T2}')
        A(f'v_readlane_b32 s{sF0}, v{T2}, 0')
        A(f'v_readlane_b32 s{sF1}, v{T2}, 8')
        A(f'v_mov_b32 v{T}, s{sF0}')
        A(f'v_mov_b32 v{T2}, s{sF1}')
        A(f'v_cndmask_b32 v{T}, v{T}, v{T2}, s[{sHi}:{sHi+1}]')
        for r in range(4): A(f'v_mul_f32 v{acc+r}, v{acc+r}, v{T}')
        A(f's_branch L_back{name}')
    def q_addr():
        A('v_bfe_u32 v1, v0, 3, 1')
        A('v_lshlrev_b32 v1, 8, v1')
        A('v_and_b32 v2, 3, v0')
        A('v_lshl_add_u32 v1, v2, 6, v1')
        A('v_lshrrev_b32 v2, 4, v0')
        A('v_lshl_add_u32 v1, v2, 4, v1')

    A(f'{KNAME}:')
    A('s_cmp_ge_u32 s2, 256')
    A('s_cbranch_scc1 L_end')
    if dbgt: A(f's_memrealtime s[{sSt+2}:{sSt+3}]')
    A('s_load_dwordx16 s[4:19], s[0:1], 0')
    A('s_load_dwordx8 s[20:27], s[0:1], 64')
    if codepf & 1:
        A(f's_getpc_b64 s[{sP}:{sP+1}]')
        A('v_lshlrev_b32 v1, 4, v0')
        A('v_add_u32 v2, 5120, v1')
        A('v_add_u32 v3, 10240, v1')
        A(f'global_load_dwordx4 v[224:227], v1, s[{sP}:{sP+1}]')
        A(f'global_load_dwordx4 v[228:231], v2, s[{sP}:{sP+1}]')
        A(f'global_load_dwordx4 v[232:235], v3, s[{sP}:{sP+1}]')
    A('v_lshrrev_b32 v1, 6, v0')
    A('v_and_b32 v0, 63, v0')
    A(f'v_readfirstlane_b32 s{sWave}, v1')
    A(f's_lshr_b32 s{sG}, s2, 3')
    A(f's_and_b32 s{sJ}, s2, 7')
    A(f's_lshr_b32 s{sB}, s2, 7')
    A(f's_and_b32 s{sH}, s{sG}, 15')
    roles()
    if stamps:
        for i in range(10): A(f's_mov_b32 s{sSt+2+i}, 0')
    A(f's_cmp_eq_u32 s{sWave}, 0')
    A('s_cbranch_scc1 L_side')

    A(f's_sub_u32 s{sA}, s{sWave}, 1')
    A(f's_lshl_b32 s{sAoff}, s{sA}, 15')
    A(f's_lshl_b32 s{sE[0]}, s{sJ}, 9')
    A(f's_add_u32 s{sOff}, s{sE[0]}, s{sAoff}')
    A(f's_add_u32 s{sXoff}, s{sOff}, {NC << 17}')
    A(f'v_bfe_u32 v{vKoff}, v0, 2, 2')
    A(f'v_lshlrev_b32 v{vKoff}, 13, v{vKoff}')
    A('v_and_b32 v1, 3, v0')
    A(f'v_lshl_add_u32 v{vKoff}, v1, 6, v{vKoff}')
    A('v_lshrrev_b32 v1, 4, v0')
    A(f'v_lshl_add_u32 v{vKoff}, v1, 4, v{vKoff}')
    A(f'v_lshlrev_b32 v{vVoff}, 13, v1')
    A('v_and_b32 v1, 15, v0')
    A(f'v_lshl_add_u32 v{vVoff}, v1, 4, v{vVoff}')
    A(f's_lshl_b32 s{sT0}, s{sA}, 12')
    A(f's_add_u32 s{sT0}, s{sT0}, {L_KV}')
    A(f's_mov_b32 s{sCnt}, 8')
    A(f's_lshl_b32 s{sT1}, s{sG}, 23')
    A(f's_mov_b32 s{rI+2}, {1 << 23}')
    A(f's_mov_b32 s{rI+3}, 0x20000')
    A('s_waitcnt lgkmcnt(0)')
    A(f's_add_u32 s{rI}, s{sK}, s{sT1}')
    A(f's_addc_u32 s{rI+1}, s{sK+1}, 0')
    stamp(0)
    A(f's_cmp_eq_u32 s{sRole}, 1')
    A('s_cbranch_scc1 L_pro_ffn')
    A('L_pro_loop:')
    A(f's_add_u32 s{sOff2}, s{sXoff}, 4096')
    for n in range(4):
        A(f's_add_u32 m0, s{sT0}, {n*1024 - IOFF[n]}')
        A(f's_waitcnt vmcnt({Wp-1})')
        A(f'buffer_load_dwordx4 v{vKoff}, {srd(rI)}, s{sXoff if n < 2 else sOff2} offen offset:{IOFF[n]} {kvflags} lds')
    A(f's_add_u32 s{sT0}, s{sT0}, 16384')
    A(f's_add_u32 s{sXoff}, s{sXoff}, {1 << 17}')
    A(f's_sub_u32 s{sCnt}, s{sCnt}, 1')
    A(f's_cmp_lg_u32 s{sCnt}, 0')
    A('s_cbranch_scc1 L_pro_loop')
    A('s_branch L_pro_join')
    def gu_srds():
        A(f's_lshl_b32 s{sT2}, s{sUnit}, 7')
        mk_srd(rA, sWG, sT2, f's_sub_u32 s{rA+2}, {576*9216}, s{sT2}')
        mk_srd(rB, sWU, sT2, f's_sub_u32 s{rB+2}, {576*9216}, s{sT2}')
    A('L_pro_ffn:')
    gu_srds()
    off8(1, 9216)
    A(f's_mul_i32 s{sXoff}, s{sA}, {16*9216}')
    if bar1: A('s_barrier')
    A('L_pf_loop:')
    A(f's_add_u32 s{sOff2}, s{sXoff}, {8*9216}')
    for n in range(4):
        A(f's_add_u32 m0, s{sT0}, {n*1024}')
        A(f's_waitcnt vmcnt({WpF-1})')
        A(f'buffer_load_dwordx4 v1, {srd(rB if n & 1 else rA)}, s{sXoff if n < 2 else sOff2} offen {wflags} lds')
    A(f's_add_u32 s{sT0}, s{sT0}, 16384')
    A(f's_add_u32 s{sXoff}, s{sXoff}, {64*9216}')
    A(f's_sub_u32 s{sCnt}, s{sCnt}, 1')
    A(f's_cmp_lg_u32 s{sCnt}, 0')
    A('s_cbranch_scc1 L_pf_loop')

    A('L_pro_join:')
    def setup0():
        A(f's_mov_b64 s[{sKb}:{sKb+1}], s[{rI}:{rI+1}]')
        A(f's_add_u32 s{sVb}, s{sV}, s{sT1}')
        A(f's_addc_u32 s{sVb+1}, s{sV+1}, 0')
        mk_srd(rWS, sWSP, None, WS_SIZE)
        A(f's_add_u32 s{sE[1]}, s{sE[0]}, {(1 << 17) + (1 << 24)}')
        A(f's_add_u32 s{sE[2]}, s{sE[0]}, {(2 << 17) + (2 << 24)}')
        consts()
    def setup1():
        A(f'v_mov_b32 v{vM}, 0xff800000')
        A(f'v_mov_b32 v{vML}, 0')
        A(f'v_mov_b32 v{vL}, 0')
        for r in range(4): A(f'v_mov_b32 v{acc+r}, 0')
        A(f'v_lshrrev_b32 v{vXO}, 5, v0')
        A(f'v_lshlrev_b32 v{vXO}, 9, v{vXO}')
        A('v_and_b32 v2, 15, v0')
        A(f'v_lshl_add_u32 v{vXO}, v2, 5, v{vXO}')
        A('v_and_b32 v2, 16, v0')
        A(f'v_add_u32 v{vXO}, v{vXO}, v2')
        A(f's_lshl_b32 s{sT1}, s{sA}, 10')
        A(f'v_add_u32 v{vXO}, s{sT1}, v{vXO}')
        A(f'v_and_b32 v{vXM}, 8, v0')
        A(f's_lshl_b32 s{sT1}, s{sA}, 4')
        A(f'v_add_u32 v{vXM}, s{sT1}, v{vXM}')
        A(f'v_and_b32 v{vSb}, 0x38, v0')
        A(f's_lshl_b32 s{sT1}, s{sA}, 12')
        A(f'v_add_u32 v{vSb}, s{sT1}, v{vSb}')
        A(f'v_mov_b32 v{vSa}, v{vSb}')
        A(f'v_lshlrev_b32 v{vL16}, 4, v0')
        A(f'v_mov_b32 v{vTQ}, 12')
        A(f'v_mov_b32 v{vTK}, 0')
    def setup2():
        role_slab(vPub)
    def setup3():
        A(f's_lshl_b32 s{sT1}, s{sH}, 2')
        A(f's_add_u32 s{sT1}, s{sT1}, s{sB}')
        A(f's_lshl_b32 s{sT1}, s{sT1}, 3')
        A(f's_add_u32 s{sT1}, s{sT1}, s{sJ}')
        A(f's_lshl_b32 s{sAP}, s{sT1}, 9')
        A(f's_add_u32 s{sAP}, s{sAP}, {WS_AP}')
        A(f's_lshl_b32 s{sAML}, s2, 7')
        A(f's_add_u32 s{sAML}, s{sAML}, {WS_AML}')
        A(f'v_lshrrev_b32 v{vAPo}, 5, v0')
        A(f'v_lshlrev_b32 v{vAPo}, 13, v{vAPo}')
        A(f'v_and_b32 v2, 0x1f0, v{vL16}')
        A(f'v_add_u32 v{vAPo}, v{vAPo}, v2')
        off4(vSlab, 1152)
        A(f's_lshl_b32 s{sT1}, s{sA}, 8')
        A(f'v_add_u32 v{vSlab}, s{sT1}, v{vSlab}')
    def setup4():
        A(f'v_lshrrev_b32 v{vOg}, 3, v0')
        A(f'v_lshlrev_b32 v{vXr}, 7, v{vOg}')
        A(f'v_lshlrev_b32 v{vOg}, 9, v{vOg}')
        A('v_and_b32 v2, 7, v0')
        A(f'v_lshl_add_u32 v{vOg}, v2, 4, v{vOg}')
        A(f'v_lshrrev_b32 v{vTw}, 4, v0')
        A(f'v_lshlrev_b32 v{vTw}, 8, v{vTw}')
        A(f'v_lshl_add_u32 v{vTw}, v2, 2, v{vTw}')
        A(f's_lshr_b32 s{sT1}, s{sA}, 1')
        A(f's_lshl_b32 s{sT1}, s{sT1}, 7')
        A(f's_and_b32 s{sT2}, s{sA}, 1')
        A(f's_lshl_b32 s{sT2}, s{sT2}, 5')
        A(f's_add_u32 s{sT1}, s{sT1}, s{sT2}')
        A(f'v_add_u32 v{vTw}, s{sT1}, v{vTw}')
    def setup5():
        q_addr()
        A(f's_lshl_b32 s{sT1}, s{sA}, 2')
        A(f'v_mov_b32 v{vPG}, s{sT1}')
    fill = [setup0, setup1, setup2, setup3, setup4, setup5]
    for u in range(2):
        A(f's_add_u32 s{sOff2}, s{sOff}, 4096')
        for n in range(4):
            A(f's_waitcnt vmcnt({Wp-1})')
            A(f'buffer_load_dwordx4 {v4(BUF[u]+4*n)}, v{vKoff}, {srd(rI)}, s{sOff if n < 2 else sOff2} offen offset:{IOFF[n]} {kvflags}')
            if fill: fill.pop(0)()
        if u == 0: A(f's_add_u32 s{sOff}, s{sOff}, {1 << 17}')
    stamp(6)
    A('s_barrier')
    A(f'ds_read_b128 {v4(vQ)}, v1 offset:{L_Q}')
    A(f'ds_read_b32 v{vTK}, v{vTK} offset:{L_TAG}')
    A('v_lshrrev_b32 v1, 5, v0')
    A('v_lshlrev_b32 v1, 3, v1')
    A('s_waitcnt lgkmcnt(0)')
    A(f'v_readfirstlane_b32 s{sT1}, v{vTK}')
    mk_tags(sT1)
    if prio: A(f's_setprio {prio}')
    stamp(1)
    WW = W if len(W) == 12 else W * 3
    if stamps: A(f's_mov_b32 s{sCnt}, 0')
    A('L_loop:')
    for p in range(3):
        q = (p + 2) % 3
        nx = (p + 1) % 3
        Wk = WW[4*p:4*p+4]
        kq = min(k for k in range(4) if any(8 + kk - Wk[kk] >= 3 for kk in range(k + 1)))
        def issue(k, Wk=Wk):
            A(f's_waitcnt vmcnt({Wk[k]-1})')
            A(f'buffer_load_dwordx4 {v4(BUF[q]+4*k)}, v{vIoff}, {srd(rI)}, s{sOff if k < 2 else sOff2} offen offset:{IOFF[k]} {kvflags}')
            if k == 0: A(f'ds_write_b32 v{vPG}, v{vTQ} offset:{L_PG}')
            if k == rdpos: A(f'ds_read_b32 v{vTK}, v{vTQ} offset:{L_TQ}')
        if stamps:
            for idx, val in ((7, 24), (8, NC), (9, 2*NC)):
                A(f's_cmp_lg_u32 s{sCnt}, {val}')
                A(f's_cbranch_scc1 L_ns{p}_{idx}')
                stamp(idx)
                A(f'L_ns{p}_{idx}:')
            A(f's_add_u32 s{sCnt}, s{sCnt}, 1')
        A(f's_and_b32 s{sOff}, s{sE[q]}, 0x00fe0e00')
        A(f's_add_u32 s{sOff}, s{sOff}, s{sAoff}')
        A(f's_add_u32 s{sOff2}, s{sOff}, 4096')
        A(f's_bitcmp1_b32 s{sE[q]}, 1')
        A(f's_cselect_b64 s[{rI}:{rI+1}], s[{sVb}:{sVb+1}], s[{sKb}:{sKb+1}]')
        A(f's_cselect_b64 s[{sP}:{sP+1}], -1, 0')
        A(f'v_cndmask_b32 v{vIoff}, v{vKoff}, v{vVoff}, s[{sP}:{sP+1}]')
        A(f's_lshr_b32 s{sT0}, s{sE[nx]}, 24')
        A(f's_lshl_b32 s{sT0}, s{sT0}, 6')
        A(f's_bitcmp1_b32 s{sE[p]}, 1')
        A(f's_cbranch_scc1 L_V{p}')
        def scpre():
            A(f'v_add_u32 v{vSa}, s{sT0}, v{vSb}')
            A(f'ds_read_b64 {v2(SCR)}, v{vSa} offset:{L_SC}')
        qk, red, scale = k_parts(BUF[p])
        sched = {k: [] for k in range(4)}
        for i, c in enumerate([qk, red, scale]): sched[min(kq + i, 3)].append(c)
        sched[min(kq + 2, 3)].append(scpre)
        for k in range(4):
            issue(k)
            for c in sched[k]: c()
        A(f's_branch L_tk{p}')
        A(f'L_V{p}:')
        soft, masks, pv = v_parts(BUF[p], str(p))
        ksoft, kmask, kpv = vsched
        Wv = Wk if WV is None else (WV if len(WV) == 12 else WV * 3)[4*p:4*p+4]
        kpv = max(min(k for k in range(4) if any(8 + kk - Wv[kk] >= 3 for kk in range(k + 1))), kpv)
        if ksoft < 0: soft()
        if kmask < 0: masks()
        for k in range(4):
            issue(k, Wv)
            if k == ksoft: soft()
            if k == kmask: masks()
            if k == kpv:
                pv()
                A(f's_bitcmp1_b32 s{sE[nx]}, 23')
                A('s_cbranch_scc1 L_loop_done')
            if k == 2: scpre()
        A(f'L_tk{p}:')
        A('s_waitcnt lgkmcnt(0)')
        A(f'v_readfirstlane_b32 s{sE[p]}, v{vTK}')
        A(f's_cmp_eq_u32 s{sE[p]}, 0')
        A(f's_cbranch_scc1 L_tkw{p}')
        A(f'v_add_u32 v{vTQ}, 4, v{vTQ}')
    A('s_branch L_loop')
    for p in range(3):
        A(f'L_tkw{p}:')
        A(f's_sub_u32 s{sSpin}, s{sSpin}, 1')
        A(f's_cmp_le_i32 s{sSpin}, 0')
        A('s_cbranch_scc1 L_loop_done')
        A(f'ds_read_b32 v{vTK}, v{vTQ} offset:{L_TQ}')
        A(f's_branch L_tk{p}')
    for p in range(3): resc(str(p))
    A('L_loop_done:')
    stamp(2)
    xor16('v_add_f32', vL, T)
    xor32('v_add_f32', vL, T)
    A(f'ds_write_b128 v{vXO}, {v4(acc)} offset:{L_XO}')
    A(f'v_mov_b32 v{vML}, v{vL}')
    A(f'ds_write_b64 v{vXM}, {v2(vM)} offset:{L_XM}')
    WOT = WOR + 64
    def slab_loads():
        A(f's_mov_b32 s{sOff}, 0')
        for t in range(16):
            A(f'buffer_load_dwordx4 {v4(WOR+4*t)}, v{vSlab}, {srd(rS)}, s{sOff} offen {wflags}')
            if t < 15: A(f's_add_u32 s{sOff}, s{sOff}, {4*1152}')
        A(f's_cmp_lg_u32 s{sA}, 3')
        A('s_cbranch_scc1 L_notail')
        off8(8, 1152, 9)
        A(f's_mov_b32 s{sOff}, 1024')
        for u in range(8):
            A(f'buffer_load_dwordx4 {v4(WOT+4*u)}, v8, {srd(rS)}, s{sOff} offen {wflags}')
            if u < 7: A(f's_add_u32 s{sOff}, s{sOff}, {8*1152}')
        for r in range(8): A(f'v_mov_b32 v{56+r}, 0')
        A('L_notail:')
    if slabpos == 0:
        A(f's_bitcmp0_b32 s{sRole}, 0')
        A('s_cbranch_scc1 L_noslab')
        slab_loads()
        A('L_noslab:')
    A('s_waitcnt lgkmcnt(0)')
    A('s_barrier')
    A(f's_cmp_lg_u32 s{sA}, 0')
    A('s_cbranch_scc1 L_att_nopub')
    for a in range(4): A(f'ds_read_b64 {v2(44+2*a)}, v1 offset:{L_XM + a*16}')
    for a in range(4): A(f'ds_read_b128 {v4(24+4*a)}, v{vL16} offset:{L_XO + a*1024}')
    A('s_waitcnt lgkmcnt(4)')
    A('v_max3_f32 v56, v44, v46, v48')
    A('v_max_f32 v56, v56, v50')
    for a in range(4): A(f'v_sub_f32 v{44+2*a}, v{44+2*a}, v56')
    for a in range(4): A(f'v_mul_f32 v{44+2*a}, s{sLog2e}, v{44+2*a}')
    for a in range(4): A(f'v_exp_f32 v{44+2*a}, v{44+2*a}')
    A('v_mov_b32 v58, v56')
    A('v_mul_f32 v57, v45, v44')
    for a in range(1, 4): A(f'v_fmac_f32 v57, v{45+2*a}, v{44+2*a}')
    A('v_permlane32_swap_b32 v56, v58')
    A('v_mov_b32 v59, v57')
    A('s_waitcnt lgkmcnt(0)')
    for r in range(4): A(f'v_mul_f32 v{24+r}, v{24+r}, v44')
    A('v_permlane32_swap_b32 v57, v59')
    for a in range(1, 4):
        for r in range(4): A(f'v_fmac_f32 v{24+r}, v{24+4*a+r}, v{44+2*a}')
    tagq(56, 56)
    publish(24, vAPo, sAP)
    A('s_mov_b64 exec, 0xff')
    A(f'buffer_store_dwordx4 v[56:59], v{vL16}, {srd(rWS)}, s{sAML} offen {stf}')
    A('s_mov_b64 exec, -1')
    A('L_att_nopub:')
    stamp(3)
    A(f's_bitcmp0_b32 s{sRole}, 0')
    A(f's_cbranch_scc1 {LEND}')
    if slabpos == 1: slab_loads()
    for r in range(4): A(f'v_mov_b32 v{acc+r}, 0')
    A(f's_cmp_lg_u32 s{sRole}, 1')
    A('s_cbranch_scc1 L_owner')
    A('s_waitcnt vmcnt(0)')
    A('s_branch L_proj')
    A('L_owner:')
    A(f's_lshr_b32 s{sT1}, s{sA}, 1')
    A(f's_lshl_b32 s{sT2}, s{sG}, 1')
    A(f's_add_u32 s{sT2}, s{sT2}, s{sT1}')
    A(f's_lshl_b32 s{sOff}, s{sT2}, 12')
    A(f's_and_b32 s{sCnt}, s{sA}, 1')
    A(f's_and_b32 s{sT0}, s{sUnit}, 1')
    A(f's_lshl_b32 s{sF0}, s{sT0}, 1')
    A(f's_add_u32 s{sF0}, s{sF0}, s{sCnt}')
    A(f's_lshl_b32 s{sF0}, s{sF0}, 7')
    A(f's_add_u32 s{sOff}, s{sOff}, s{sF0}')
    A(f's_add_u32 s{sOff}, s{sOff}, {WS_AP}')
    A(f's_lshl_b32 s{sT2}, s{sT1}, 4')
    A(f's_lshr_b32 s{sF0}, s{sG}, 1')
    A(f's_add_u32 s{sT2}, s{sT2}, s{sF0}')
    A(f's_lshl_b32 s{sT2}, s{sT2}, 10')
    A(f's_add_u32 s{sT2}, s{sT2}, {WS_AML}')
    A(f's_and_b32 s{sF0}, s{sG}, 1')
    A(f's_cselect_b64 s[{sP}:{sP+1}], -1, 0')
    A('L_own_poll:')
    A(f'buffer_load_dwordx4 v[28:31], v{vL16}, {srd(rWS)}, s{sT2} offen {ldf}')
    A(f'buffer_load_dwordx4 v[24:27], v{vOg}, {srd(rWS)}, s{sOff} offen {ldf}')
    A('s_waitcnt vmcnt(0)')
    check_tags(quads(24, 2), 32, 33, 'L_own_poll', 'L_own')
    stamp(4)
    A(f'v_cndmask_b32 v28, v28, v30, s[{sP}:{sP+1}]')
    A(f'v_cndmask_b32 v29, v29, v31, s[{sP}:{sP+1}]')
    A(f'v_max_f32_dpp v30, v28, v28 row_ror:8 {DPP}')
    xor16('v_max_f32', 30, 31)
    xor32('v_max_f32', 30, 31)
    A('v_sub_f32 v28, v28, v30')
    A(f'v_mul_f32 v28, s{sLog2e}, v28')
    A('v_exp_f32 v28, v28')
    A('v_mul_f32 v29, v29, v28')
    for r in range(4): A(f'v_mul_f32 v{24+r}, v{24+r}, v28')
    A(f'v_add_f32_dpp v29, v29, v29 row_ror:8 {DPP}')
    A('v_permlane32_swap_b32 v24, v26')
    A('v_permlane32_swap_b32 v25, v27')
    A('v_mov_b32 v31, v29')
    A('v_add_f32 v24, v24, v26')
    A('v_add_f32 v25, v25, v27')
    A('v_permlane16_swap_b32 v29, v31')
    A('v_add_f32 v29, v29, v31')
    A('v_permlane16_swap_b32 v24, v25')
    A('v_mov_b32 v31, v29')
    A('v_add_f32 v24, v24, v25')
    A('v_permlane32_swap_b32 v29, v31')
    A('v_add_f32 v29, v29, v31')
    A(f'v_add_f32_dpp v24, v24, v24 row_ror:8 {DPP}')
    A('v_rcp_f32 v29, v29')
    A('v_mul_f32 v24, v24, v29')
    A('v_cvt_pk_bf16_f32 v24, v24, v24')
    A(f'ds_write_b32 v{vTw}, v24 offset:{L_T2}')
    A('s_waitcnt lgkmcnt(0)')
    A('s_barrier')
    A('L_proj:')
    for q in range(4): A(f'ds_read_b128 {v4(24+4*q)}, v{vXr} offset:{L_T2 + q*16}')
    A(f's_cmp_eq_u32 s{sA}, 3')
    A('s_cbranch_scc1 L_proj3')
    for tail in (0, 1):
        if tail: A('L_proj3:')
        def pmf(t):
            A(f'v_mfma_f32_16x16x32_bf16 {v4(acc)}, {v4(40 + 4*(t&3))}, {v4(WOR+4*t)}, {v4(acc)}')
            if tail: A(f'v_mfma_f32_16x16x32_bf16 {v4(56 + 4*(t&1))}, {v4(40 + 4*(t&3))}, {v4(WOT+4*(t>>1))}, {v4(56 + 4*(t&1))}')
        for t in range(16):
            if t % 4 == 0: A(f's_waitcnt lgkmcnt({3 - t//4})')
            mkA(40 + 4*(t & 3), 24 + t)
            if t >= 1: pmf(t - 1)
        pmf(15)
        publish(acc, vPub, sPub)
        if tail:
            for r in range(4):
                A(f'v_add_f32_dpp v{56+r}, v{60+r}, v{56+r} row_ror:8 {DPP}')
            publish(56, vPub, sPub2, sLo8)
        stamp(5)
        endpgm()

    A('L_side:')
    A('s_setprio 3')
    if codepf & 4:
        A(f's_getpc_b64 s[{sP}:{sP+1}]')
        A('v_lshlrev_b32 v1, 4, v0')
        A('v_add_u32 v2, 4096, v1')
        for i in range(1, 6): A(f'global_load_dwordx4 v[224:227], v{1 + i//4}, s[{sP}:{sP+1}] offset:{(i&3)*1024}')
    XR = 24
    XF = 136
    WQ = 64
    A(f's_mov_b32 s{sA}, 4')
    A('v_lshrrev_b32 v1, 5, v0')
    A('v_mul_u32_u24 v1, 1152, v1')
    A('v_and_b32 v2, 31, v0')
    A('v_lshl_add_u32 v1, v2, 2, v1')
    off8(3, 8192)
    A(f's_lshl_b32 s{sT0}, s{sB}, 3')
    A(f's_add_u32 s{sT0}, s{sT0}, s{sJ}')
    A(f's_lshr_b32 s{sT1}, s{sT0}, 2')
    A(f's_add_u32 s{sT0}, s{sT0}, s{sH}')
    A(f's_lshr_b32 s{sT2}, s{sH}, 2')
    A(f's_add_u32 s{sT0}, s{sT0}, s{sT2}')
    A(f's_and_b32 s{sT0}, s{sT0}, 3')
    A(f's_mul_i32 s{sT2}, s{sT1}, {144*8192}')
    A(f's_lshl_b32 s{sOff}, s{sH}, 9')
    A(f's_add_u32 s{sT2}, s{sT2}, s{sOff}')
    A(f's_lshl_b32 s{sOff}, s{sT0}, 7')
    A(f's_add_u32 s{sT2}, s{sT2}, s{sOff}')
    A(f's_mul_i32 s{sXoff}, s{sG}, {CNT_STRIDE}')
    A(f's_add_u32 s{sXoff}, s{sXoff}, {WS_CNT}')
    A(f's_cmp_eq_u32 s{sJ}, 0')
    A(f's_cselect_b32 s{sCnt}, s{sXoff}, {WS_SIZE}')
    A('v_mov_b32 v35, 0')
    A('s_waitcnt lgkmcnt(0)')
    if dbgt:
        A(f's_memrealtime s[{sSt}:{sSt+1}]')
        A('s_waitcnt lgkmcnt(0)')
        A(f's_mov_b32 s{sSt+4}, s{sSt}')
    mk_srd(rWS, sWSP, None, WS_SIZE)
    A(f'buffer_store_dword v35, off, {srd(rWS)}, s{sCnt} sc1')
    mk_srd(rB, sX, None, 2304)
    for n in range(9): A(f'buffer_load_dword v{XR+n}, v1, {srd(rB)}, 0 offen offset:{n*128}')
    A(f'buffer_load_dword v33, off, {srd(rWS)}, 0 {epf}')
    mk_srd(rA, sWQ, sT2, f's_sub_u32 s{rA+2}, {576*8192}, s{sT2}')
    A(f's_mov_b32 s{sOff}, 0')
    for u in range(18):
        A(f'buffer_load_dwordx4 {v4(WQ+4*u)}, v3, {srd(rA)}, s{sOff} offen {wflags}')
        if u < 17: A(f's_add_u32 s{sOff}, s{sOff}, 65536')
    if bar1:
        A(f's_cmp_lg_u32 s{sRole}, 1')
        A('s_cbranch_scc1 L_nobar1')
        A('s_barrier')
        A('L_nobar1:')
    stamp(0)
    consts()
    A('v_lshlrev_b32 v1, 2, v0')
    A(f'ds_write_b32 v1, v35 offset:{L_PG}')
    for i in range(4): A(f'ds_write_b32 v1, v35 offset:{L_TQ + 256*i}')
    A(f's_lshl_b32 s{sCnt}, s{sJ}, 9')
    A(f's_add_u32 s{sCnt}, s{sCnt}, 1')
    A(f'v_lshl_add_u32 v36, v0, 17, s{sCnt}')
    A('v_lshl_add_u32 v36, v0, 24, v36')
    A('v_or_b32 v37, 2, v36')
    A(f's_cmp_eq_u32 s{sRole}, 1')
    A(f's_mov_b32 s{sF0}, 0x{(1 << (NC - 32)) - 1:x}')
    A(f's_cselect_b32 s{sF0}, 0x{(1 << (NC + EXF - 32)) - 1:x}, s{sF0}')
    A(f's_cselect_b32 s{sF1}, {4*EXF}, 0')
    A(f'v_add_u32 v2, s{sF1}, v1')
    A(f's_mov_b32 exec_hi, s{sF0}')
    A(f'ds_write_b32 v1, v36 offset:{L_TQ}')
    A(f'ds_write_b32 v2, v37 offset:{L_TQ + 4*NC}')
    A('s_mov_b64 exec, -1')
    A('v_and_b32 v1, 1, v0')
    A('v_lshlrev_b32 v1, 2, v1')
    A('v_lshrrev_b32 v2, 5, v0')
    A('v_add_u32 v1, v1, v2')
    A('v_mul_u32_u24 v1, 576, v1')
    A('v_bfe_u32 v2, v0, 1, 4')
    A('v_lshl_add_u32 v1, v2, 2, v1')
    A('v_lshrrev_b32 v3, 3, v0')
    A('v_mul_u32_u24 v3, 576, v3')
    A(f's_mul_i32 s{sT2}, s{sT1}, 144')
    A(f'v_add_u32 v3, s{sT2}, v3')
    A('v_lshrrev_b32 v34, 5, v0')
    A('v_lshlrev_b32 v34, 12, v34')
    A('v_and_b32 v2, 7, v0')
    A('v_lshl_add_u32 v34, v2, 5, v34')
    A('v_and_b32 v2, 16, v0')
    A('v_add_u32 v34, v34, v2')
    A(f's_lshl_b32 s{sT2}, s{sH}, 13')
    A(f's_lshl_b32 s{sT1}, s{sT1}, 10')
    A(f's_add_u32 s{sT2}, s{sT2}, s{sT1}')
    A(f's_lshl_b32 s{sT0}, s{sT0}, 8')
    A(f's_add_u32 s{sT2}, s{sT2}, s{sT0}')
    A(f's_add_u32 s{sT2}, s{sT2}, {WS_QP}')
    A('s_waitcnt vmcnt(18)')
    stamp(1)
    A(f'v_readfirstlane_b32 s{sT0}, v33')
    A(f'ds_write_b32 v35, v33 offset:{L_TAG}')
    for n in range(9):
        A(f'v_lshlrev_b32 v{XF+2*n}, 16, v{XR+n}')
        A(f'v_and_b32 v{XF+2*n+1}, 0xffff0000, v{XR+n}')
    mk_tags(sT0)
    A(f'v_add_f32 v8, v{XF}, v{XF+1}')
    A(f'v_add_f32 v9, v{XF+2}, v{XF+3}')
    for i in range(4, 18, 2):
        A(f'v_add_f32 v8, v8, v{XF+i}')
        A(f'v_add_f32 v9, v9, v{XF+i+1}')
    A('v_add_f32 v8, v8, v9')
    row_sum16(8)
    xor16('v_add_f32', 8, 9)
    A(f'v_mul_f32 v8, {f32(1/576)}, v8')
    A(f'v_sub_f32 v12, v{XF}, v8')
    A(f'v_sub_f32 v13, v{XF+1}, v8')
    A('v_mul_f32 v10, v12, v12')
    A('v_mul_f32 v11, v13, v13')
    for i in range(2, 18, 2):
        A(f'v_sub_f32 v12, v{XF+i}, v8')
        A(f'v_sub_f32 v13, v{XF+i+1}, v8')
        A('v_fmac_f32 v10, v12, v12')
        A('v_fmac_f32 v11, v13, v13')
    A('v_add_f32 v10, v10, v11')
    row_sum16(10)
    xor16('v_add_f32', 10, 9)
    A(f'v_mul_f32 v10, {f32(1/576)}, v10')
    rnd_bf16(8, 8)
    rnd_bf16(10, 10)
    A(f'v_add_f32 v10, {f32(1e-5)}, v10')
    rnd_bf16(10, 10)
    A('v_sqrt_f32 v10, v10')
    rnd_bf16(10, 10)
    A('v_rcp_f32 v10, v10')
    for n in range(9):
        a, b = XF + 2*n, XF + 2*n + 1
        A(f'v_sub_f32 v{a}, v{a}, v8')
        A(f'v_sub_f32 v{b}, v{b}, v8')
        A(f'v_cvt_pk_bf16_f32 v{b}, v{a}, v{b}')
        A(f'v_lshlrev_b32 v{a}, 16, v{b}')
        A(f'v_and_b32 v{b}, 0xffff0000, v{b}')
        A(f'v_mul_f32 v{a}, v{a}, v10')
        A(f'v_mul_f32 v{b}, v{b}, v10')
        A(f'v_cvt_pk_bf16_f32 v{a}, v{a}, v{a}')
        A(f'v_cvt_pk_bf16_f32 v{b}, v{b}, v{b}')
        A(f'ds_write_b32 v1, v{a} offset:{L_T + n*64}')
        A(f'ds_write_b32 v1, v{b} offset:{L_T + 1152 + n*64}')
    A('s_waitcnt lgkmcnt(0)')
    for q in range(9): A(f'ds_read_b128 {v4(XF+4*q)}, v3 offset:{L_T + q*16}')
    for r in range(8): A(f'v_mov_b32 v{8+r}, 0')
    def qmf(u):
        b0 = 40 + 8*(u & 1)
        A(f'v_mfma_f32_16x16x32_bf16 v[8:11], {v4(b0)}, {v4(WQ+4*u)}, v[8:11]')
        A(f'v_mfma_f32_16x16x32_bf16 v[12:15], {v4(b0+4)}, {v4(WQ+4*u)}, v[12:15]')
    for u in range(18):
        if u % 2 == 0: A(f's_waitcnt lgkmcnt({8 - u//2})')
        b0 = 40 + 8*(u & 1)
        mkA(b0, XF + 2*u)
        mkA(b0 + 4, XF + 2*u + 1)
        if u >= 1:
            if (u - 1) % 6 == 0: A(f's_waitcnt vmcnt({12 - (u-1)})')
            qmf(u - 1)
    qmf(17)
    for r in range(4):
        A(f'v_add_f32_dpp v{8+r}, v{12+r}, v{8+r} row_ror:8 {DPP}')
    publish(8, 34, sT2, sLo8)
    stamp(2)
    A('v_mov_b32 v192, v37')
    mk_srd(rO, sOUT, None, 2304)
    GR = 128
    A(f's_cmp_lg_u32 s{sRole}, 1')
    A('s_cbranch_scc1 L_nogu')
    gu_srds()
    off8(3, 9216)
    A(f's_mov_b32 s{sOff}, {512*9216}')
    for u in range(8):
        A(f'buffer_load_dwordx4 {v4(GR+8*u)}, v3, {srd(rA)}, s{sOff} offen {wflags}')
        A(f'buffer_load_dwordx4 {v4(GR+8*u+4)}, v3, {srd(rB)}, s{sOff} offen {wflags}')
        if u < 7: A(f's_add_u32 s{sOff}, s{sOff}, {8*9216}')
    A('L_nogu:')
    A(f's_lshl_b32 s{sT2}, s{sH}, 1')
    A(f's_add_u32 s{sT2}, s{sT2}, s{sB}')
    A(f's_lshl_b32 s{sT2}, s{sT2}, 12')
    A(f's_add_u32 s{sT2}, s{sT2}, {WS_QP}')
    A('v_lshlrev_b32 v1, 4, v0')
    A('v_lshlrev_b32 v3, 3, v0')
    if qsleep:
        A('s_waitcnt vmcnt(0)')
        A(f's_sleep {qsleep}')
    A('L_q_poll:')
    if qsleep2: A(f's_sleep {qsleep2}')
    for i in range(4):
        A(f'buffer_load_dwordx4 {v4(64+4*i)}, v1, {srd(rWS)}, s{sT2} offen offset:{i*1024} {ldf}')
    A('s_waitcnt vmcnt(0)')
    check_tags(quads(64, 4), 8, 9, 'L_q_poll', 'L_q')
    for i in range(16): A(f'v_and_b32 v{64+i}, -16, v{64+i}')
    for r in range(4):
        A(f'v_add_f32 v{64+r}, v{64+r}, v{68+r}')
        A(f'v_add_f32 v{72+r}, v{72+r}, v{76+r}')
    for r in range(4): A(f'v_add_f32 v{64+r}, v{64+r}, v{72+r}')
    A('v_cvt_pk_bf16_f32 v8, v64, v65')
    A('v_cvt_pk_bf16_f32 v9, v66, v67')
    A(f'ds_write_b64 v3, v[8:9] offset:{L_Q}')
    A('s_waitcnt lgkmcnt(0)')
    stamp(3)
    A('s_barrier')
    A('s_setprio 0')
    if dbgt:
        A(f's_memrealtime s[{sSt}:{sSt+1}]')
        A('s_waitcnt lgkmcnt(0)')
        A(f's_mov_b32 s{sSt+5}, s{sSt}')
    A(f's_cmp_eq_u32 s{sRole}, 1')
    A('s_cbranch_scc1 L_ffn')
    q_addr()
    A(f'ds_read_b128 {v4(vQ)}, v1 offset:{L_Q}')
    A(f'v_lshlrev_b32 v1, 4, v0')
    A(f'v_add_u32 v1, {L_KV}, v1')
    A(f'v_and_b32 v{vSb}, 0x38, v0')
    A(f's_mov_b32 s{sCnt}, 0')
    A('L_cu_loop:')
    for n in range(4): A(f'ds_read_b128 {v4(BUF[0]+4*n)}, v1 offset:{n*1024}')
    A('v_add_u32 v1, 4096, v1')
    A(f's_and_b32 s{sT1}, s{sCnt}, 3')
    A(f's_lshl_b32 s{sT1}, s{sT1}, 12')
    A(f's_lshr_b32 s{sT2}, s{sCnt}, 2')
    A(f's_add_u32 s{sT2}, s{sT2}, {NC}')
    A(f's_lshl_b32 s{sT2}, s{sT2}, 6')
    A(f's_add_u32 s{sT1}, s{sT1}, s{sT2}')
    A(f'v_add_u32 v{vSa}, s{sT1}, v{vSb}')
    A('s_waitcnt lgkmcnt(0)')
    for c in k_parts(BUF[0]): c()
    A(f's_add_u32 s{sCnt}, s{sCnt}, 1')
    A(f's_cmp_lg_u32 s{sCnt}, 32')
    A('s_cbranch_scc1 L_cu_loop')
    A('v_lshlrev_b32 v1, 2, v0')
    A('s_waitcnt lgkmcnt(0)')
    A('s_mov_b32 exec_lo, 0')
    A(f's_mov_b32 exec_hi, 0x{0xff << (NC - 32):x}')
    A(f'ds_write_b32 v1, v192 offset:{L_TQ + 4*NC}')
    A('s_mov_b64 exec, -1')
    stamp(7)
    A('s_branch L_agent')
    A('L_ffn:')
    FA = 24
    for r in range(16): A(f'v_mov_b32 v{FA+r}, 0')
    A('v_lshrrev_b32 v1, 3, v0')
    A('v_mul_u32_u24 v1, 576, v1')
    A('v_lshlrev_b32 v3, 4, v0')
    A(f'v_add_u32 v3, {L_KV}, v3')
    A(f's_mov_b32 s{sCnt}, 32')
    def gu_step(g0):
        for uu in range(2):
            mkA(56, 8 + 2*uu)
            mkA(60, 9 + 2*uu)
            g = g0 + 8*uu
            A(f'v_mfma_f32_16x16x32_bf16 {v4(FA)}, v[56:59], {v4(g)}, {v4(FA)}')
            A(f'v_mfma_f32_16x16x32_bf16 {v4(FA+4)}, v[60:63], {v4(g)}, {v4(FA+4)}')
            A(f'v_mfma_f32_16x16x32_bf16 {v4(FA+8)}, v[56:59], {v4(g+4)}, {v4(FA+8)}')
            A(f'v_mfma_f32_16x16x32_bf16 {v4(FA+12)}, v[60:63], {v4(g+4)}, {v4(FA+12)}')
    A('L_ffn_loop:')
    A(f'ds_read_b128 v[8:11], v1 offset:{L_T}')
    for n in range(4): A(f'ds_read_b128 {v4(64+4*n)}, v3 offset:{n*1024}')
    A('v_add_u32 v1, 16, v1')
    A('v_add_u32 v3, 4096, v3')
    A('s_waitcnt lgkmcnt(0)')
    gu_step(64)
    A(f's_sub_u32 s{sCnt}, s{sCnt}, 1')
    A(f's_cmp_lg_u32 s{sCnt}, 0')
    A('s_cbranch_scc1 L_ffn_loop')
    for i in range(4):
        A(f'ds_read_b128 v[8:11], v1 offset:{L_T + 16*i}')
        A('s_waitcnt lgkmcnt(0)')
        gu_step(GR + 16*i)
    A('v_lshrrev_b32 v1, 5, v0')
    A('v_lshlrev_b32 v1, 7, v1')
    A('v_and_b32 v2, 7, v0')
    A('v_lshl_add_u32 v1, v2, 3, v1')
    A('v_bfe_u32 v2, v0, 4, 1')
    A('v_lshl_add_u32 v1, v2, 2, v1')
    for r in range(4):
        A(f'v_add_f32_dpp v{FA+r}, v{FA+4+r}, v{FA+r} row_ror:8 {DPP}')
        A(f'v_add_f32_dpp v{FA+8+r}, v{FA+12+r}, v{FA+8+r} row_ror:8 {DPP}')
    for r in range(4):
        rnd_bf16(FA+r, FA+r)
        rnd_bf16(FA+8+r, FA+8+r)
        silu(FA+r, FA+r, FA+4+r)
        rnd_bf16(FA+r, FA+r)
        A(f'v_mul_f32 v{FA+r}, v{FA+r}, v{FA+8+r}')
        A(f'v_cvt_pk_bf16_f32 v{FA+r}, v{FA+r}, v{FA+r}')
    A(f's_mov_b64 exec, s[{sLo8}:{sLo8+1}]')
    for r in range(4): A(f'ds_write_b32 v1, v{FA+r} offset:{L_T2 + r*256}')
    A('s_mov_b64 exec, -1')
    A('L_agent:')
    stamp(4)
    A('v_mov_b32 v1, 0')
    A(f's_mov_b32 s{sCnt}, {NC*8 + 32}')
    A(f's_cmp_eq_u32 s{sRole}, 1')
    A(f's_cselect_b32 s{sCnt}, {NC*8 + 8*EXF}, s{sCnt}')
    sNL, sNP = sAP, sAML
    heavy(sT1)
    A(f's_cselect_b32 s{sNL}, {2*LF}, {3*LF}')
    A(f's_add_u32 s{sNP}, s{sNL}, {NPB}')
    A(f's_mov_b32 s{sT1}, 0')
    A(f's_cmp_eq_u32 s{sRole}, 1')
    A(f's_cselect_b32 s{sT1}, {THF}, s{sT1}')
    A(f's_cmp_eq_u32 s{sRole}, 3')
    A(f's_cselect_b32 s{sT1}, {THO}, s{sT1}')
    A(f's_sub_u32 s{sAoff}, s{sNP}, s{sT1}')
    A('L_ag_wait:')
    A('s_sleep 2')
    A(f'ds_read_b128 v[8:11], v1 offset:{L_PG}')
    A(f's_sub_u32 s{sT1}, s{sCnt}, {4*lead}')
    A('s_waitcnt lgkmcnt(0)')
    A(f'v_{trig}3_u32 v8, v8, v9, v10')
    A(f'v_{trig}_u32 v8, v8, v11')
    A(f'v_cmp_gt_u32 vcc, s{sT1}, v8')
    spin_check('L_ag_wait', 'L_ag')
    A('v_mov_b32 v8, 1')
    A('s_mov_b64 exec, 1')
    A(f'buffer_atomic_add v8, off, {srd(rWS)}, s{sXoff} sc0')
    A('s_mov_b64 exec, -1')
    A(f'v_mov_b32 v9, s{sCnt}')
    A('s_waitcnt vmcnt(0)')
    A(f'v_readfirstlane_b32 s{sT1}, v8')
    A(f's_add_u32 s{sCnt}, s{sCnt}, 8')
    A(f's_min_u32 s{sT1}, s{sT1}, s{sNP}')
    A(f's_sub_u32 s{sT2}, s{sT1}, s{sNL}')
    A(f's_add_u32 s{sT2}, s{sT2}, {(NC + 8)*8}')
    A(f's_lshr_b32 s{sF0}, s{sT1}, {2 if LF == 4 else 3}')
    A(f's_add_u32 s{sF0}, s{sF0}, s{sG}')
    A(f's_add_u32 s{sF0}, s{sF0}, 1')
    A(f's_and_b32 s{sF0}, s{sF0}, 7')
    A(f's_and_b32 s{sF1}, s{sT1}, {LF - 1}')
    A(f's_add_u32 s{sF1}, s{sF1}, {NC + EXF}')
    A(f's_lshl_b32 s{sF1}, s{sF1}, 3')
    A(f's_add_u32 s{sF0}, s{sF0}, s{sF1}')
    A(f's_cmp_lt_u32 s{sT1}, s{sNL}')
    A(f's_cselect_b32 s{sT2}, s{sF0}, s{sT2}')
    A(f's_and_b32 s{sF0}, s{sT2}, 7')
    A(f's_lshl_b32 s{sF0}, s{sF0}, 9')
    A(f's_lshr_b32 s{sT2}, s{sT2}, 3')
    A(f's_lshl_b32 s{sT2}, s{sT2}, 17')
    A(f's_add_u32 s{sT2}, s{sT2}, s{sF0}')
    A(f's_add_u32 s{sT2}, s{sT2}, {(63 << 24) + 1}')
    A(f'v_mov_b32 v10, s{sT2}')
    A('v_or_b32 v11, 2, v10')
    A(f'ds_write_b64 v9, v[10:11] offset:{L_TQ}')
    A(f's_cmp_lt_u32 s{sT1}, s{sAoff}')
    A('s_cbranch_scc1 L_ag_wait')
    A(f'v_mov_b32 v10, {(63 << 24) + (1 << 23) + 1}')
    A('v_or_b32 v11, 2, v10')
    A(f'ds_write_b64 v9, v[10:11] offset:{L_TQ + 8}')
    A('s_waitcnt lgkmcnt(0)')
    stamp(8)
    if codepf & 2:
        A(f's_getpc_b64 s[{sP}:{sP+1}]')
        A('L_pcref:')
        A(f's_sub_u32 s{sP}, s{sP}, L_pcref-L_loop_done')
        A(f's_subb_u32 s{sP+1}, s{sP+1}, 0')
        A('v_lshlrev_b32 v1, 4, v0')
        for i in range(4): A(f'global_load_dwordx4 v[224:227], v1, s[{sP}:{sP+1}] offset:{i*1024}')
    A(f's_cmp_lg_u32 s{sRole}, 2')
    A(f's_cbranch_scc1 {LEND}')
    A('s_setprio 3')
    A('L_red:')
    mk_srd(rB, sX, None, 2304)
    A('v_and_b32 v18, 3, v0')
    A('v_lshlrev_b32 v18, 2, v18')
    A('v_lshrrev_b32 v2, 4, v0')
    A('v_add_lshl_u32 v18, v18, v2, 1')
    A(f's_lshl_b32 s{sCnt}, s{sUnit}, 5')
    A(f'buffer_load_ushort v19, v18, {srd(rB)}, s{sCnt} offen')
    A(f's_lshr_b32 s{sT1}, s{sUnit}, 1')
    A(f's_and_b32 s{sT2}, s{sUnit}, 1')
    A(f's_lshl_b32 s{sT2}, s{sT2}, 6')
    A(f's_mul_i32 s{sOff}, s{sT1}, {72*128}')
    A(f's_add_u32 s{sOff}, s{sOff}, s{sT2}')
    A(f's_add_u32 s{sOff}, s{sOff}, {WS_DP}')
    A(f's_lshl_b32 s{sT1}, s{sT1}, 13')
    A(f's_add_u32 s{sT1}, s{sT1}, s{sT2}')
    A(f's_add_u32 s{sT1}, s{sT1}, {WS_SP}')
    A('v_lshrrev_b32 v1, 2, v0')
    A('v_lshlrev_b32 v1, 7, v1')
    A('v_and_b32 v2, 3, v0')
    A('v_lshl_add_u32 v1, v2, 4, v1')
    A('v_add_u32 v2, 4096, v1')
    A('v_and_b32 v3, 0x3ff, v1')
    A('v_add_u32 v3, 8192, v3')
    A(f's_mov_b32 s{sP}, 0x000f000f')
    A(f's_mov_b32 s{sP+1}, 0x000f000f')
    A('s_barrier')
    def sum_red(b, n):
        for r in range(4):
            A(f'v_add_f32 v{b+r}, v{b+r}, v{b+4+r}')
            A(f'v_add_f32 v{b+8+r}, v{b+8+r}, v{b+12+r}')
        if n == 5:
            for r in range(4): A(f'v_add_f32 v{b+r}, v{b+r}, v{b+16+r}')
        for r in range(4): A(f'v_add_f32 v{b+r}, v{b+r}, v{b+8+r}')
        rscatter4(b)
        A(f'v_add_f32_dpp v{b}, v{b}, v{b} row_ror:4 {DPP}')
        A(f'v_add_f32_dpp v{b}, v{b}, v{b} row_ror:8 {DPP}')
    def sp_loads():
        for i in range(4):
            A(f'buffer_load_dwordx4 {v4(64+4*i)}, v{1 + i//2}, {srd(rWS)}, s{sT1} offen offset:{(i&1)*2048} {ldf}')
    A('L_dp_poll:')
    for i in range(5):
        A(f'buffer_load_dwordx4 {v4(84+4*i)}, v{1 + i//2}, {srd(rWS)}, s{sOff} offen offset:{(i&1)*2048} {ldf}')
    sp_loads()
    A('s_waitcnt vmcnt(4)')
    check_tags(quads(84, 5), 8, 9, 'L_dp_poll', 'L_dp')
    for r in range(4): A(f'v_cndmask_b32 v{100+r}, v{100+r}, 0, s[{sHi}:{sHi+1}]')
    sum_red(84, 5)
    rnd_bf16(24, 84)
    silu(24, 24, 26)
    rnd_bf16(24, 24)
    A('v_lshlrev_b32 v26, 16, v19')
    stamp(5)
    A('s_branch L_sp_chk')
    A('L_sp_poll:')
    sp_loads()
    A('L_sp_chk:')
    A('s_waitcnt vmcnt(0)')
    check_tags(quads(64, 4), 8, 9, 'L_sp_poll', 'L_sp')
    stamp(6)
    sum_red(64, 4)
    rnd_bf16(28, 64)
    A('v_mul_f32 v28, v28, v24')
    rnd_bf16(28, 28)
    A('v_add_f32 v28, v28, v26')
    A('v_cvt_pk_bf16_f32 v28, v28, v28')
    A(f's_mov_b64 exec, s[{sP}:{sP+1}]')
    A(f'buffer_store_short v28, v18, {srd(rO)}, s{sCnt} offen')
    if dbgt:
        A(f's_memrealtime s[{sSt}:{sSt+1}]')
        A('s_mov_b64 exec, 1')
        A('s_waitcnt lgkmcnt(0)')
        A(f's_not_b32 s{sSt+2}, s{sSt+2}')
        A(f'v_mov_b32 v30, s{sSt+2}')
        A(f'v_mov_b32 v31, s{sSt}')
        A(f'v_mov_b32 v32, s{sSt+4}')
        A(f'v_mov_b32 v33, s{sSt+5}')
        A('v_mov_b32 v29, 0')
        A(f'global_atomic_umax v29, v30, s[{sDBG}:{sDBG+1}]')
        A(f'global_atomic_umax v29, v31, s[{sDBG}:{sDBG+1}] offset:4')
        A(f'global_atomic_umax v29, v32, s[{sDBG}:{sDBG+1}] offset:8')
        A(f'global_atomic_umax v29, v33, s[{sDBG}:{sDBG+1}] offset:12')
    A(f's_cmp_lg_u32 s{sUnit}, 0')
    A(f's_cbranch_scc1 {LEND}')
    A('s_mov_b64 exec, 1')
    A(f'v_mov_b32 v1, s{sTg}')
    A(f'buffer_store_dword v1, off, {srd(rWS)}, 0')
    if stamps:
        A('L_exit:')
        A('s_mov_b64 exec, 1')
        A(f's_mul_i32 s{sSt}, s2, 5')
        A(f's_add_u32 s{sSt}, s{sSt}, s{sWave}')
        A(f's_lshl_b32 s{sSt}, s{sSt}, 6')
        A(f's_add_u32 s{sSt}, s{sSt}, {WS_ST}')
        for q in range(3):
            for r in range(4):
                i = 4*q + r
                A(f'v_mov_b32 v{224+i}, ' + (f's{sSt+2+i}' if i < 10 else (f'v{vTQ}' if i == 10 else '0')))
            A(f'buffer_store_dwordx4 {v4(224+4*q)}, off, {srd(rWS)}, s{sSt} offset:{16*q}')
    A('L_end:')
    A('s_endpgm')
    A('.fill 1024, 4, 0xbf810000')

    body = A.finish()
    out = HEADER
    out += f'; @launch grid=(256,1,1) block=(320,1,1) lds={LDS_BYTES}\n'
    out += '.amdgcn_target "amdgcn-amd-amdhsa--gfx950"\n.text\n'
    out += f'.globl {KNAME}\n.p2align 8\n.type {KNAME},@function\n'
    out += body
    out += f'''.section .rodata,"a"
.p2align 6
.amdhsa_kernel {KNAME}
  .amdhsa_next_free_vgpr 240
  .amdhsa_next_free_sgpr 100
  .amdhsa_accum_offset 240
  .amdhsa_group_segment_fixed_size 0
  .amdhsa_kernarg_size 96
  .amdhsa_user_sgpr_count 2
  .amdhsa_user_sgpr_kernarg_segment_ptr 1
  .amdhsa_system_sgpr_workgroup_id_x 1
  .amdhsa_float_denorm_mode_32 3
.end_amdhsa_kernel
'''
    return out

if __name__ == '__main__':
    import argparse
    ap = argparse.ArgumentParser()
    ap.add_argument('-o', default='k.s')
    ap.add_argument('-W', default='5555')
    ap.add_argument('--Wp', type=int, default=6)
    ap.add_argument('--NC', type=int, default=54)
    ap.add_argument('--lead', type=int, default=3)
    ap.add_argument('--rdpos', type=int, default=2)
    ap.add_argument('--vsched', default='0,0,1')
    ap.add_argument('--ffnw', type=int, default=2)
    ap.add_argument('--THO', type=int, default=13)
    ap.add_argument('--trig', default='min')
    ap.add_argument('--prio', type=int, default=1)
    ap.add_argument('--slabpos', type=int, default=1)
    ap.add_argument('--stf', default='sc1')
    ap.add_argument('--WV', default=None)
    ap.add_argument('--dbgt', action='store_true')
    ap.add_argument('--bar1', type=int, default=1)
    ap.add_argument('--epf', default='sc1')
    ap.add_argument('--WpF', type=int, default=6)
    ap.add_argument('--XF', type=int, default=0)
    ap.add_argument('--ldf', default='sc1')
    ap.add_argument('--THF', type=int, default=10)
    ap.add_argument('--stamps', action='store_true')
    ap.add_argument('--codepf', type=int, default=4)
    ap.add_argument('--qsleep', type=int, default=10)
    ap.add_argument('--qsleep2', type=int, default=4)
    ap.add_argument('--abl', default='')
    a = ap.parse_args()
    open(a.o, 'w').write(gen(W=tuple(int(c) for c in a.W), Wp=a.Wp, stamps=a.stamps, codepf=a.codepf,
                             qsleep=a.qsleep, qsleep2=a.qsleep2, abl=a.abl, NC=a.NC, lead=a.lead, rdpos=a.rdpos,
                             vsched=tuple(int(x) for x in a.vsched.split(',')), ffnw=a.ffnw, THO=a.THO, THF=a.THF, trig=a.trig, prio=a.prio, slabpos=a.slabpos, stf=a.stf, ldf=a.ldf, WV=None if a.WV is None else tuple(int(c) for c in a.WV), EXF=a.XF, WpF=a.WpF, bar1=a.bar1, epf=a.epf, dbgt=a.dbgt))
```

```python
import sys, struct
from asmlib import Asm

KNAME = 'recurrent_scan__gqa_block_cached__swiglu_ffn__decode_kernel'
def f32(x): return '0x%08x' % struct.unpack('<I', struct.pack('<f', x))[0]

WS_EPOCH = 0x0
WS_CNT = 0x1000
CNT_STRIDE = 4352
WS_QP = 0x40000
WS_AP = 0x60000
WS_AML = 0xA0000
WS_SP = 0xB0000
WS_DP = 0x100000
WS_ST = 0x200000
WS_SIZE = 0x400000
L_T = 0
L_Q = 4608
L_T2 = 5120
L_XO = 6144
L_XM = 10240
L_TAG = 10304
L_PG = 10320
L_TQ = 10368
L_SC = 11392
L_KV = 27776
LDS_BYTES = L_KV + 131072
SLAB = 64 * 1152

HEADER = open('recurrent_scan__gqa_block_cached__swiglu_ffn__decode.s.ref').read().split('; Override launch')[0]

def gen(W=(5,5,5,5), Wp=6, stamps=False, kvflags='nt', wflags='nt', NC=54, codepf=4, qsleep=10, qsleep2=4,
        abl='', lead=3, rdpos=2, vsched=(0,0,1), ffnw=2, THO=13, THF=10, trig='min', prio=1, slabpos=1, stf='sc1', ldf='sc1', WV=None, EXF=0, WpF=6, bar1=1, epf='sc1', dbgt=False, thr=0):
    NPB = 512 - 8*NC - 64
    LF = 8 - EXF
    assert LF in (4, 8)
    NP = NPB + 3*LF
    assert NC + 8 <= 63 and 2*NC + 8 + 2*NP + 4 <= 256 and all(4 <= x <= 8 for x in W)
    IOFF = [0, 256, 0, 256]
    A = Asm()
    sX, sK, sV, sWQ, sWO, sWG, sWU, sWD, sOUT, sDBG, sWSP = 4, 6, 8, 10, 12, 16, 18, 20, 22, 24, 26
    rI, rS, rWS, rA, rB, rO = 28, 32, 36, 40, 44, 48
    sWave, sG, sJ, sB, sH, sRole, sUnit, sOff, sCnt, sT0, sT1, sT2 = 3, 52, 53, 54, 55, 56, 57, 58, 59, 60, 61, 62
    sScale, sLog2e, sNLog2e, sSpin = 63, 64, 65, 66
    sA = 67
    sHi = 68
    sLo8 = 70
    sF0, sF1 = 72, 73
    sAoff, sXoff = 74, 75
    sTg = 76
    sP = 80
    sAP, sAML = 82, 83
    sSt = 84
    sE = [96, 97, 98]
    sOff2 = 99
    sPub2 = 15
    sPub = 14
    sKb, sVb = 4, 6
    def srd(r): return f's[{r}:{r+3}]'
    def v4(r): return f'v[{r}:{r+3}]'
    def v2(r): return f'v[{r}:{r+1}]'
    def stamp(idx):
        if not stamps: return
        A(f's_memrealtime s[{sSt}:{sSt+1}]')
        A('s_waitcnt lgkmcnt(0)')
        A(f's_mov_b32 s{sSt+2+idx}, s{sSt}')
    def endpgm():
        A('s_branch L_exit' if stamps else 's_endpgm')
    LEND = 'L_exit' if stamps else 'L_end'

    def mk_srd(r, base, off_sgpr, size):
        if off_sgpr is None:
            A(f's_mov_b32 s{r}, s{base}')
            A(f's_mov_b32 s{r+1}, s{base+1}')
        else:
            A(f's_add_u32 s{r}, s{base}, s{off_sgpr}')
            A(f's_addc_u32 s{r+1}, s{base+1}, 0')
        if isinstance(size, int): A(f's_mov_b32 s{r+2}, {size}')
        else: A(size)
        A(f's_mov_b32 s{r+3}, 0x20000')
    def xor16(op, x, t):
        A(f'v_mov_b32 v{t}, v{x}')
        A(f'v_permlane16_swap_b32 v{x}, v{t}')
        A(f'{op} v{x}, v{x}, v{t}')
    def xor32(op, x, t):
        A(f'v_mov_b32 v{t}, v{x}')
        A(f'v_permlane32_swap_b32 v{x}, v{t}')
        A(f'{op} v{x}, v{x}, v{t}')
    DPP = 'row_mask:0xf bank_mask:0xf'
    def row_sum16(x):
        A(f'v_add_f32_dpp v{x}, v{x}, v{x} quad_perm:[1,0,3,2] {DPP}')
        A(f'v_add_f32_dpp v{x}, v{x}, v{x} quad_perm:[2,3,0,1] {DPP}')
        A(f'v_add_f32_dpp v{x}, v{x}, v{x} row_half_mirror {DPP}')
        A(f'v_add_f32_dpp v{x}, v{x}, v{x} row_mirror {DPP}')
    def rscatter4(x):
        A(f'v_permlane32_swap_b32 v{x}, v{x+2}')
        A(f'v_permlane32_swap_b32 v{x+1}, v{x+3}')
        A(f'v_add_f32 v{x}, v{x}, v{x+2}')
        A(f'v_add_f32 v{x+1}, v{x+1}, v{x+3}')
        A(f'v_permlane16_swap_b32 v{x}, v{x+1}')
        A(f'v_add_f32 v{x}, v{x}, v{x+1}')
    def rnd_bf16(dst, src):
        A(f'v_cvt_pk_bf16_f32 v{dst}, v{src}, v{src}')
        A(f'v_and_b32 v{dst}, 0xffff0000, v{dst}')
    def mkA(dst, x):
        for w in range(4):
            A(f'v_and_b32 v{dst+w}, v{x}, v{4+w}')
    def spin_check(retry_label, name):
        A(f's_cbranch_vccz {name}_ok')
        A(f's_sub_u32 s{sSpin}, s{sSpin}, 1')
        A(f's_cmp_gt_i32 s{sSpin}, 0')
        A(f's_cbranch_scc1 {retry_label}')
        A(f'{name}_ok:')
    def tag_vcc(words, t0, t1):
        acc_ = [t0, t1]
        for i, (w, tg) in enumerate(words):
            if i < 2: A(f'v_xor_b32 v{acc_[i]}, s{tg}, v{w}')
            else: A(f'v_bitop3_b32 v{acc_[i&1]}, v{w}, s{tg}, v{acc_[i&1]} bitop3:0xbe')
        A(f'v_bitop3_b32 v{t0}, v{t0}, v{t1}, 15 bitop3:0xa8')
        A(f'v_cmp_ne_u32 vcc, 0, v{t0}')
    def check_tags(words, t0, t1, retry_label, name):
        tag_vcc(words, t0, t1)
        spin_check(retry_label, name)
    def quads(base, n): return [(base + i, sTg + (i & 3)) for i in range(4*n)]
    def silu(dst, x, t):
        A(f'v_mul_f32 v{t}, s{sNLog2e}, v{x}')
        A(f'v_exp_f32 v{t}, v{t}')
        A(f'v_add_f32 v{t}, 1.0, v{t}')
        A(f'v_rcp_f32 v{t}, v{t}')
        A(f'v_mul_f32 v{dst}, v{x}, v{t}')
    def tagq(dst, src):
        for r in range(4): A(f'v_bfi_b32 v{dst+r}, 15, s{sTg+r}, v{src+r}')
    def publish(vals, voff, soff, mask=None):
        tagq(vals, vals)
        if mask: A(f's_mov_b64 exec, s[{mask}:{mask+1}]')
        A(f'buffer_store_dwordx4 {v4(vals)}, v{voff}, {srd(rWS)}, s{soff} offen {stf}')
        if mask: A('s_mov_b64 exec, -1')
    def mk_tags(src):
        A(f's_add_u32 s{sTg}, s{src}, 1')
        A(f's_add_u32 s{sTg+1}, s{src}, 6')
        A(f's_add_u32 s{sTg+2}, s{src}, 11')
        A(f's_add_u32 s{sTg+3}, s{src}, 14')
    def off8(dst, stride, t=2):
        A(f'v_lshrrev_b32 v{dst}, 4, v0')
        A(f'v_bfe_u32 v{t}, v0, 3, 1')
        A(f'v_lshl_add_u32 v{dst}, v{t}, 2, v{dst}')
        A(f'v_mul_u32_u24 v{dst}, {stride}, v{dst}')
        A(f'v_and_b32 v{t}, 7, v0')
        A(f'v_lshl_add_u32 v{dst}, v{t}, 4, v{dst}')
    def off4(dst, stride, t=2):
        A(f'v_lshrrev_b32 v{dst}, 4, v0')
        A(f'v_mul_u32_u24 v{dst}, {stride}, v{dst}')
        A(f'v_and_b32 v{t}, 15, v0')
        A(f'v_lshl_add_u32 v{dst}, v{t}, 4, v{dst}')
    def consts():
        A(f's_mov_b32 s{sScale}, {f32(128 ** -0.5)}')
        A(f's_mov_b32 s{sLog2e}, {f32(1.4426950408889634)}')
        A(f's_mov_b32 s{sNLog2e}, {f32(-1.4426950408889634)}')
        A(f's_mov_b32 s{sSpin}, 0x40000')
        A(f's_mov_b32 s{sHi}, 0')
        A(f's_mov_b32 s{sHi+1}, -1')
        A(f's_mov_b32 s{sLo8}, 0x00ff00ff')
        A(f's_mov_b32 s{sLo8+1}, 0x00ff00ff')
        A('v_and_b32 v1, 1, v0')
        A('v_lshlrev_b32 v1, 4, v1')
        A('v_mov_b32 v2, 0xffff')
        A('v_lshlrev_b32 v1, v1, v2')
        A('v_bfe_u32 v2, v0, 1, 2')
        for w in range(4):
            A(f'v_cmp_eq_u32 vcc, {w}, v2')
            A(f'v_cndmask_b32 v{4+w}, 0, v1, vcc')
    def heavy(dst):
        A(f's_lshr_b32 s{dst}, s{sG}, 3')
        A(f's_xor_b32 s{dst}, s{dst}, s{sG}')
        A(f's_and_b32 s{dst}, s{dst}, 3')
    def roles():
        A(f's_sub_u32 s{sF0}, s{sJ}, s{sG}')
        A(f's_and_b32 s{sF0}, s{sF0}, 7')
        A(f's_cmp_le_u32 s{sF0}, 3')
        A(f's_cselect_b32 s{sRole}, 1, 2')
        A(f's_cselect_b32 s{sT1}, 1, 4')
        A(f's_sub_u32 s{sT1}, s{sF0}, s{sT1}')
        A(f's_and_b32 s{sUnit}, s{sG}, 7')
        A(f's_lshl_b32 s{sUnit}, s{sUnit}, 1')
        A(f's_add_u32 s{sUnit}, s{sUnit}, s{sT1}')
        A(f's_lshl_b32 s{sUnit}, s{sUnit}, 2')
        A(f's_lshr_b32 s{sT2}, s{sG}, 3')
        A(f's_add_u32 s{sUnit}, s{sUnit}, s{sT2}')
        heavy(sT2)
        A(f's_cselect_b32 s{sT2}, 0, s{sRole}')
        A(f's_lshr_b32 s{sP}, s{sG}, 2')
        A(f's_add_u32 s{sP}, s{sP}, 64')
        A(f's_cmp_eq_u32 s{sT1}, 2')
        A(f's_cselect_b32 s{sRole}, s{sT2}, s{sRole}')
        A(f's_cselect_b32 s{sUnit}, s{sP}, s{sUnit}')
        A(f's_lshl_b32 s{sF1}, s{sG}, 1')
        A(f's_and_b32 s{sT1}, s{sF0}, 1')
        A(f's_add_u32 s{sF1}, s{sF1}, s{sT1}')
        A(f's_add_u32 s{sF0}, s{sF0}, 1')
        A(f's_and_b32 s{sF0}, s{sF0}, 6')
        A(f's_cselect_b32 s{sRole}, s{sRole}, 3')
        A(f's_cselect_b32 s{sUnit}, s{sUnit}, s{sF1}')
    def role_slab(vpub):
        A(f's_cmp_lg_u32 s{sRole}, 3')
        A(f's_cselect_b64 s[{sP}:{sP+1}], s[{sWD}:{sWD+1}], s[{sWO}:{sWO+1}]')
        A(f's_mov_b32 s{sT2}, {64*128}')
        A(f's_cselect_b32 s{sT2}, {72*128}, s{sT2}')
        A(f's_mov_b32 s{sPub}, {WS_SP}')
        A(f's_cselect_b32 s{sPub}, {WS_DP}, s{sPub}')
        A(f's_mul_i32 s{sT1}, s{sUnit}, {SLAB}')
        mk_srd(rS, sP, sT1, SLAB)
        A(f's_lshl_b32 s{sT1}, s{sUnit}, 7')
        A(f's_add_u32 s{sPub}, s{sPub}, s{sT1}')
        A(f's_lshl_b32 s{sT1}, s{sA}, 2')
        A(f's_mul_i32 s{sT1}, s{sT1}, s{sT2}')
        A(f's_add_u32 s{sPub}, s{sPub}, s{sT1}')
        A(f's_lshl_b32 s{sT1}, s{sT2}, 2')
        A(f's_add_u32 s{sPub2}, s{sPub}, s{sT1}')
        A(f'v_lshrrev_b32 v{vpub}, 5, v0')
        A(f'v_mul_u32_u24 v{vpub}, 18, v{vpub}')
        A('v_bfe_u32 v2, v0, 2, 2')
        A(f'v_add_u32 v{vpub}, v{vpub}, v2')
        A(f'v_mul_u32_u24 v{vpub}, s{sT2}, v{vpub}')
        A('v_and_b32 v2, 3, v0')
        A(f'v_lshl_add_u32 v{vpub}, v2, 5, v{vpub}')
        A('v_and_b32 v2, 16, v0')
        A(f'v_add_u32 v{vpub}, v{vpub}, v2')

    vKoff, vVoff, vM, vML, vQ, acc, vL = 8, 9, 10, 11, 12, 16, 20
    vXO, vXM, vTQ, vTK, vPG = 3, 21, 22, 23, 2
    D = 24; S = 40; U = 44; T = 46; T2 = 47; AF = 48
    BUF = [64, 80, 96]
    vIoff, vSb, vSa, vL16 = 112, 113, 114, 115
    SCR = 116
    vPub, vSlab, vXr, vOg, vTw, vAPo = 118, 119, 120, 121, 122, 123
    WOR = 128
    def unpack4(src):
        A(f'v_lshlrev_b32 v{S}, 16, v{src}')
        A(f'v_and_b32 v{S+1}, 0xffff0000, v{src}')
        A(f'v_lshlrev_b32 v{S+2}, 16, v{src+1}')
        A(f'v_and_b32 v{S+3}, 0xffff0000, v{src+1}')
    def k_parts(buf):
        def qk():
            for n in range(4):
                A(f'v_mfma_f32_16x16x32_bf16 {v4(D+4*n)}, {v4(buf+4*n)}, {v4(vQ)}, 0')
        def red():
            for r in range(4):
                for n in range(4):
                    if r == 0: A(f'v_mov_b32_dpp v{S+n}, v{D+4*n} quad_perm:[0,0,0,0] {DPP}')
                    else: A(f'v_add_f32_dpp v{S+n}, v{D+4*n+r}, v{S+n} quad_perm:[{r},{r},{r},{r}] {DPP}')
        def scale():
            A(f'v_cvt_pk_bf16_f32 v{U}, v{S}, v{S+1}')
            A(f'v_cvt_pk_bf16_f32 v{U+1}, v{S+2}, v{S+3}')
            unpack4(U)
            for n in range(4): A(f'v_mul_f32 v{S+n}, s{sScale}, v{S+n}')
            A(f'v_cvt_pk_bf16_f32 v{U}, v{S}, v{S+1}')
            A(f'v_cvt_pk_bf16_f32 v{U+1}, v{S+2}, v{S+3}')
            A(f'ds_write_b64 v{vSa}, {v2(U)} offset:{L_SC}')
        return qk, red, scale
    def v_parts(buf, name):
        def soft():
            unpack4(SCR)
            A(f'v_max3_f32 v{T}, v{S}, v{S+1}, v{S+2}')
            A(f'v_max_f32 v{T}, v{T}, v{S+3}')
            A(f'v_cmp_gt_f32 vcc, v{T}, v{vM}')
            A(f's_cbranch_vccnz L_resc{name}')
            A(f'L_back{name}:')
            for n in range(4): A(f'v_fma_f32 v{S+n}, v{S+n}, s{sLog2e}, v{vML}')
            for n in range(4): A(f'v_exp_f32 v{S+n}, v{S+n}')
            A(f'v_add_f32 v{T}, v{S}, v{S+1}')
            A(f'v_add_f32 v{T2}, v{S+2}, v{S+3}')
            for n in range(4): A(f'v_cvt_pk_bf16_f32 v{S+n}, v{S+n}, v{S+n}')
            A(f'v_add_f32 v{T}, v{T}, v{T2}')
            A(f'v_add_f32 v{vL}, v{vL}, v{T}')
        def masks():
            for n in range(4): mkA(AF + 4*n, S + n)
        def pv():
            for n in range(4):
                A(f'v_mfma_f32_16x16x32_bf16 {v4(acc)}, {v4(AF+4*n)}, {v4(buf+4*n)}, {v4(acc)}')
        return soft, masks, pv
    def resc(name):
        A(f'L_resc{name}:')
        A(f'v_max_f32 v{T}, v{T}, v{vM}')
        xor16('v_max_f32', T, T2)
        xor32('v_max_f32', T, T2)
        A(f'v_sub_f32 v{T2}, v{vM}, v{T}')
        A(f'v_mul_f32 v{T2}, s{sLog2e}, v{T2}')
        A(f'v_exp_f32 v{T2}, v{T2}')
        A(f'v_mov_b32 v{vM}, v{T}')
        A(f'v_mul_f32 v{vML}, s{sNLog2e}, v{T}')
        A(f'v_mul_f32 v{vL}, v{vL}, v{T2}')
        A(f'v_readlane_b32 s{sF0}, v{T2}, 0')
        A(f'v_readlane_b32 s{sF1}, v{T2}, 8')
        A(f'v_mov_b32 v{T}, s{sF0}')
        A(f'v_mov_b32 v{T2}, s{sF1}')
        A(f'v_cndmask_b32 v{T}, v{T}, v{T2}, s[{sHi}:{sHi+1}]')
        for r in range(4): A(f'v_mul_f32 v{acc+r}, v{acc+r}, v{T}')
        A(f's_branch L_back{name}')
    def q_addr():
        A('v_bfe_u32 v1, v0, 3, 1')
        A('v_lshlrev_b32 v1, 8, v1')
        A('v_and_b32 v2, 3, v0')
        A('v_lshl_add_u32 v1, v2, 6, v1')
        A('v_lshrrev_b32 v2, 4, v0')
        A('v_lshl_add_u32 v1, v2, 4, v1')

    A(f'{KNAME}:')
    A('s_cmp_ge_u32 s2, 256')
    A('s_cbranch_scc1 L_end')
    if dbgt or thr: A(f's_memrealtime s[{sSt+2}:{sSt+3}]')
    A('s_load_dwordx16 s[4:19], s[0:1], 0')
    A('s_load_dwordx8 s[20:27], s[0:1], 64')
    if codepf & 1:
        A(f's_getpc_b64 s[{sP}:{sP+1}]')
        A('v_lshlrev_b32 v1, 4, v0')
        A('v_add_u32 v2, 5120, v1')
        A('v_add_u32 v3, 10240, v1')
        A(f'global_load_dwordx4 v[224:227], v1, s[{sP}:{sP+1}]')
        A(f'global_load_dwordx4 v[228:231], v2, s[{sP}:{sP+1}]')
        A(f'global_load_dwordx4 v[232:235], v3, s[{sP}:{sP+1}]')
    A('v_lshrrev_b32 v1, 6, v0')
    A('v_and_b32 v0, 63, v0')
    A(f'v_readfirstlane_b32 s{sWave}, v1')
    A(f's_lshr_b32 s{sG}, s2, 3')
    A(f's_and_b32 s{sJ}, s2, 7')
    A(f's_lshr_b32 s{sB}, s2, 7')
    A(f's_and_b32 s{sH}, s{sG}, 15')
    roles()
    if stamps:
        for i in range(10): A(f's_mov_b32 s{sSt+2+i}, 0')
    A(f's_cmp_eq_u32 s{sWave}, 0')
    A('s_cbranch_scc1 L_side')

    A(f's_sub_u32 s{sA}, s{sWave}, 1')
    A(f's_lshl_b32 s{sAoff}, s{sA}, 15')
    A(f's_lshl_b32 s{sE[0]}, s{sJ}, 9')
    A(f's_add_u32 s{sOff}, s{sE[0]}, s{sAoff}')
    A(f's_add_u32 s{sXoff}, s{sOff}, {NC << 17}')
    A(f'v_bfe_u32 v{vKoff}, v0, 2, 2')
    A(f'v_lshlrev_b32 v{vKoff}, 13, v{vKoff}')
    A('v_and_b32 v1, 3, v0')
    A(f'v_lshl_add_u32 v{vKoff}, v1, 6, v{vKoff}')
    A('v_lshrrev_b32 v1, 4, v0')
    A(f'v_lshl_add_u32 v{vKoff}, v1, 4, v{vKoff}')
    A(f'v_lshlrev_b32 v{vVoff}, 13, v1')
    A('v_and_b32 v1, 15, v0')
    A(f'v_lshl_add_u32 v{vVoff}, v1, 4, v{vVoff}')
    A(f's_lshl_b32 s{sT0}, s{sA}, 12')
    A(f's_add_u32 s{sT0}, s{sT0}, {L_KV}')
    A(f's_mov_b32 s{sCnt}, 8')
    A(f's_lshl_b32 s{sT1}, s{sG}, 23')
    A(f's_mov_b32 s{rI+2}, {1 << 23}')
    A(f's_mov_b32 s{rI+3}, 0x20000')
    A('s_waitcnt lgkmcnt(0)')
    A(f's_add_u32 s{rI}, s{sK}, s{sT1}')
    A(f's_addc_u32 s{rI+1}, s{sK+1}, 0')
    stamp(0)
    A(f's_cmp_eq_u32 s{sRole}, 1')
    A('s_cbranch_scc1 L_pro_ffn')
    A('L_pro_loop:')
    A(f's_add_u32 s{sOff2}, s{sXoff}, 4096')
    for n in range(4):
        A(f's_add_u32 m0, s{sT0}, {n*1024 - IOFF[n]}')
        A(f's_waitcnt vmcnt({Wp-1})')
        A(f'buffer_load_dwordx4 v{vKoff}, {srd(rI)}, s{sXoff if n < 2 else sOff2} offen offset:{IOFF[n]} {kvflags} lds')
    A(f's_add_u32 s{sT0}, s{sT0}, 16384')
    A(f's_add_u32 s{sXoff}, s{sXoff}, {1 << 17}')
    A(f's_sub_u32 s{sCnt}, s{sCnt}, 1')
    A(f's_cmp_lg_u32 s{sCnt}, 0')
    A('s_cbranch_scc1 L_pro_loop')
    A('s_branch L_pro_join')
    def gu_srds():
        A(f's_lshl_b32 s{sT2}, s{sUnit}, 7')
        mk_srd(rA, sWG, sT2, f's_sub_u32 s{rA+2}, {576*9216}, s{sT2}')
        mk_srd(rB, sWU, sT2, f's_sub_u32 s{rB+2}, {576*9216}, s{sT2}')
    A('L_pro_ffn:')
    gu_srds()
    off8(1, 9216)
    A(f's_mul_i32 s{sXoff}, s{sA}, {16*9216}')
    if bar1: A('s_barrier')
    A('L_pf_loop:')
    A(f's_add_u32 s{sOff2}, s{sXoff}, {8*9216}')
    for n in range(4):
        A(f's_add_u32 m0, s{sT0}, {n*1024}')
        A(f's_waitcnt vmcnt({WpF-1})')
        A(f'buffer_load_dwordx4 v1, {srd(rB if n & 1 else rA)}, s{sXoff if n < 2 else sOff2} offen {wflags} lds')
    A(f's_add_u32 s{sT0}, s{sT0}, 16384')
    A(f's_add_u32 s{sXoff}, s{sXoff}, {64*9216}')
    A(f's_sub_u32 s{sCnt}, s{sCnt}, 1')
    A(f's_cmp_lg_u32 s{sCnt}, 0')
    A('s_cbranch_scc1 L_pf_loop')

    A('L_pro_join:')
    def setup0():
        A(f's_mov_b64 s[{sKb}:{sKb+1}], s[{rI}:{rI+1}]')
        A(f's_add_u32 s{sVb}, s{sV}, s{sT1}')
        A(f's_addc_u32 s{sVb+1}, s{sV+1}, 0')
        mk_srd(rWS, sWSP, None, WS_SIZE)
        A(f's_add_u32 s{sE[1]}, s{sE[0]}, {(1 << 17) + (1 << 24)}')
        A(f's_add_u32 s{sE[2]}, s{sE[0]}, {(2 << 17) + (2 << 24)}')
        consts()
    def setup1():
        A(f'v_mov_b32 v{vM}, 0xff800000')
        A(f'v_mov_b32 v{vML}, 0')
        A(f'v_mov_b32 v{vL}, 0')
        for r in range(4): A(f'v_mov_b32 v{acc+r}, 0')
        A(f'v_lshrrev_b32 v{vXO}, 5, v0')
        A(f'v_lshlrev_b32 v{vXO}, 9, v{vXO}')
        A('v_and_b32 v2, 15, v0')
        A(f'v_lshl_add_u32 v{vXO}, v2, 5, v{vXO}')
        A('v_and_b32 v2, 16, v0')
        A(f'v_add_u32 v{vXO}, v{vXO}, v2')
        A(f's_lshl_b32 s{sT1}, s{sA}, 10')
        A(f'v_add_u32 v{vXO}, s{sT1}, v{vXO}')
        A(f'v_and_b32 v{vXM}, 8, v0')
        A(f's_lshl_b32 s{sT1}, s{sA}, 4')
        A(f'v_add_u32 v{vXM}, s{sT1}, v{vXM}')
        A(f'v_and_b32 v{vSb}, 0x38, v0')
        A(f's_lshl_b32 s{sT1}, s{sA}, 12')
        A(f'v_add_u32 v{vSb}, s{sT1}, v{vSb}')
        A(f'v_mov_b32 v{vSa}, v{vSb}')
        A(f'v_lshlrev_b32 v{vL16}, 4, v0')
        A(f'v_mov_b32 v{vTQ}, 12')
        A(f'v_mov_b32 v{vTK}, 0')
    def setup2():
        role_slab(vPub)
    def setup3():
        A(f's_lshl_b32 s{sT1}, s{sH}, 2')
        A(f's_add_u32 s{sT1}, s{sT1}, s{sB}')
        A(f's_lshl_b32 s{sT1}, s{sT1}, 3')
        A(f's_add_u32 s{sT1}, s{sT1}, s{sJ}')
        A(f's_lshl_b32 s{sAP}, s{sT1}, 9')
        A(f's_add_u32 s{sAP}, s{sAP}, {WS_AP}')
        A(f's_lshl_b32 s{sAML}, s2, 7')
        A(f's_add_u32 s{sAML}, s{sAML}, {WS_AML}')
        A(f'v_lshrrev_b32 v{vAPo}, 5, v0')
        A(f'v_lshlrev_b32 v{vAPo}, 13, v{vAPo}')
        A(f'v_and_b32 v2, 0x1f0, v{vL16}')
        A(f'v_add_u32 v{vAPo}, v{vAPo}, v2')
        off4(vSlab, 1152)
        A(f's_lshl_b32 s{sT1}, s{sA}, 8')
        A(f'v_add_u32 v{vSlab}, s{sT1}, v{vSlab}')
    def setup4():
        A(f'v_lshrrev_b32 v{vOg}, 3, v0')
        A(f'v_lshlrev_b32 v{vXr}, 7, v{vOg}')
        A(f'v_lshlrev_b32 v{vOg}, 9, v{vOg}')
        A('v_and_b32 v2, 7, v0')
        A(f'v_lshl_add_u32 v{vOg}, v2, 4, v{vOg}')
        A(f'v_lshrrev_b32 v{vTw}, 4, v0')
        A(f'v_lshlrev_b32 v{vTw}, 8, v{vTw}')
        A(f'v_lshl_add_u32 v{vTw}, v2, 2, v{vTw}')
        A(f's_lshr_b32 s{sT1}, s{sA}, 1')
        A(f's_lshl_b32 s{sT1}, s{sT1}, 7')
        A(f's_and_b32 s{sT2}, s{sA}, 1')
        A(f's_lshl_b32 s{sT2}, s{sT2}, 5')
        A(f's_add_u32 s{sT1}, s{sT1}, s{sT2}')
        A(f'v_add_u32 v{vTw}, s{sT1}, v{vTw}')
    def setup5():
        q_addr()
        A(f's_lshl_b32 s{sT1}, s{sA}, 2')
        A(f'v_mov_b32 v{vPG}, s{sT1}')
    fill = [setup0, setup1, setup2, setup3, setup4, setup5]
    for u in range(2):
        A(f's_add_u32 s{sOff2}, s{sOff}, 4096')
        for n in range(4):
            A(f's_waitcnt vmcnt({Wp-1})')
            A(f'buffer_load_dwordx4 {v4(BUF[u]+4*n)}, v{vKoff}, {srd(rI)}, s{sOff if n < 2 else sOff2} offen offset:{IOFF[n]} {kvflags}')
            if fill: fill.pop(0)()
        if u == 0: A(f's_add_u32 s{sOff}, s{sOff}, {1 << 17}')
    stamp(6)
    A('s_barrier')
    A(f'ds_read_b128 {v4(vQ)}, v1 offset:{L_Q}')
    A(f'ds_read_b32 v{vTK}, v{vTK} offset:{L_TAG}')
    A('v_lshrrev_b32 v1, 5, v0')
    A('v_lshlrev_b32 v1, 3, v1')
    A('s_waitcnt lgkmcnt(0)')
    A(f'v_readfirstlane_b32 s{sT1}, v{vTK}')
    mk_tags(sT1)
    if prio: A(f's_setprio {prio}')
    stamp(1)
    WW = W if len(W) == 12 else W * 3
    if stamps: A(f's_mov_b32 s{sCnt}, 0')
    A('L_loop:')
    for p in range(3):
        q = (p + 2) % 3
        nx = (p + 1) % 3
        Wk = WW[4*p:4*p+4]
        kq = min(k for k in range(4) if any(8 + kk - Wk[kk] >= 3 for kk in range(k + 1)))
        def issue(k, Wk=Wk):
            A(f's_waitcnt vmcnt({Wk[k]-1})')
            A(f'buffer_load_dwordx4 {v4(BUF[q]+4*k)}, v{vIoff}, {srd(rI)}, s{sOff if k < 2 else sOff2} offen offset:{IOFF[k]} {kvflags}')
            if k == 0: A(f'ds_write_b32 v{vPG}, v{vTQ} offset:{L_PG}')
            if k == rdpos: A(f'ds_read_b32 v{vTK}, v{vTQ} offset:{L_TQ}')
        if stamps:
            for idx, val in ((7, 24), (8, NC), (9, 2*NC)):
                A(f's_cmp_lg_u32 s{sCnt}, {val}')
                A(f's_cbranch_scc1 L_ns{p}_{idx}')
                stamp(idx)
                A(f'L_ns{p}_{idx}:')
            A(f's_add_u32 s{sCnt}, s{sCnt}, 1')
        A(f's_and_b32 s{sOff}, s{sE[q]}, 0x00fe0e00')
        A(f's_add_u32 s{sOff}, s{sOff}, s{sAoff}')
        A(f's_add_u32 s{sOff2}, s{sOff}, 4096')
        A(f's_bitcmp1_b32 s{sE[q]}, 1')
        A(f's_cselect_b64 s[{rI}:{rI+1}], s[{sVb}:{sVb+1}], s[{sKb}:{sKb+1}]')
        A(f's_cselect_b64 s[{sP}:{sP+1}], -1, 0')
        A(f'v_cndmask_b32 v{vIoff}, v{vKoff}, v{vVoff}, s[{sP}:{sP+1}]')
        A(f's_lshr_b32 s{sT0}, s{sE[nx]}, 24')
        A(f's_lshl_b32 s{sT0}, s{sT0}, 6')
        A(f's_bitcmp1_b32 s{sE[p]}, 1')
        A(f's_cbranch_scc1 L_V{p}')
        def scpre():
            A(f'v_add_u32 v{vSa}, s{sT0}, v{vSb}')
            A(f'ds_read_b64 {v2(SCR)}, v{vSa} offset:{L_SC}')
        qk, red, scale = k_parts(BUF[p])
        sched = {k: [] for k in range(4)}
        for i, c in enumerate([qk, red, scale]): sched[min(kq + i, 3)].append(c)
        sched[min(kq + 2, 3)].append(scpre)
        for k in range(4):
            issue(k)
            for c in sched[k]: c()
        A(f's_branch L_tk{p}')
        A(f'L_V{p}:')
        soft, masks, pv = v_parts(BUF[p], str(p))
        ksoft, kmask, kpv = vsched
        Wv = Wk if WV is None else (WV if len(WV) == 12 else WV * 3)[4*p:4*p+4]
        kpv = max(min(k for k in range(4) if any(8 + kk - Wv[kk] >= 3 for kk in range(k + 1))), kpv)
        if ksoft < 0: soft()
        if kmask < 0: masks()
        for k in range(4):
            issue(k, Wv)
            if k == ksoft: soft()
            if k == kmask: masks()
            if k == kpv:
                pv()
                A(f's_bitcmp1_b32 s{sE[nx]}, 23')
                A('s_cbranch_scc1 L_loop_done')
            if k == 2: scpre()
        A(f'L_tk{p}:')
        A('s_waitcnt lgkmcnt(0)')
        A(f'v_readfirstlane_b32 s{sE[p]}, v{vTK}')
        A(f's_cmp_eq_u32 s{sE[p]}, 0')
        A(f's_cbranch_scc1 L_tkw{p}')
        A(f'v_add_u32 v{vTQ}, 4, v{vTQ}')
    A('s_branch L_loop')
    for p in range(3):
        A(f'L_tkw{p}:')
        A(f's_sub_u32 s{sSpin}, s{sSpin}, 1')
        A(f's_cmp_le_i32 s{sSpin}, 0')
        A('s_cbranch_scc1 L_loop_done')
        A(f'ds_read_b32 v{vTK}, v{vTQ} offset:{L_TQ}')
        A(f's_branch L_tk{p}')
    for p in range(3): resc(str(p))
    A('L_loop_done:')
    stamp(2)
    xor16('v_add_f32', vL, T)
    xor32('v_add_f32', vL, T)
    A(f'ds_write_b128 v{vXO}, {v4(acc)} offset:{L_XO}')
    A(f'v_mov_b32 v{vML}, v{vL}')
    A(f'ds_write_b64 v{vXM}, {v2(vM)} offset:{L_XM}')
    WOT = WOR + 64
    def slab_loads():
        A(f's_mov_b32 s{sOff}, 0')
        for t in range(16):
            A(f'buffer_load_dwordx4 {v4(WOR+4*t)}, v{vSlab}, {srd(rS)}, s{sOff} offen {wflags}')
            if t < 15: A(f's_add_u32 s{sOff}, s{sOff}, {4*1152}')
        A(f's_cmp_lg_u32 s{sA}, 3')
        A('s_cbranch_scc1 L_notail')
        off8(8, 1152, 9)
        A(f's_mov_b32 s{sOff}, 1024')
        for u in range(8):
            A(f'buffer_load_dwordx4 {v4(WOT+4*u)}, v8, {srd(rS)}, s{sOff} offen {wflags}')
            if u < 7: A(f's_add_u32 s{sOff}, s{sOff}, {8*1152}')
        for r in range(8): A(f'v_mov_b32 v{56+r}, 0')
        A('L_notail:')
    if slabpos == 0:
        A(f's_bitcmp0_b32 s{sRole}, 0')
        A('s_cbranch_scc1 L_noslab')
        slab_loads()
        A('L_noslab:')
    A('s_waitcnt lgkmcnt(0)')
    A('s_barrier')
    A(f's_cmp_lg_u32 s{sA}, 0')
    A('s_cbranch_scc1 L_att_nopub')
    for a in range(4): A(f'ds_read_b64 {v2(44+2*a)}, v1 offset:{L_XM + a*16}')
    for a in range(4): A(f'ds_read_b128 {v4(24+4*a)}, v{vL16} offset:{L_XO + a*1024}')
    A('s_waitcnt lgkmcnt(4)')
    A('v_max3_f32 v56, v44, v46, v48')
    A('v_max_f32 v56, v56, v50')
    for a in range(4): A(f'v_sub_f32 v{44+2*a}, v{44+2*a}, v56')
    for a in range(4): A(f'v_mul_f32 v{44+2*a}, s{sLog2e}, v{44+2*a}')
    for a in range(4): A(f'v_exp_f32 v{44+2*a}, v{44+2*a}')
    A('v_mov_b32 v58, v56')
    A('v_mul_f32 v57, v45, v44')
    for a in range(1, 4): A(f'v_fmac_f32 v57, v{45+2*a}, v{44+2*a}')
    A('v_permlane32_swap_b32 v56, v58')
    A('v_mov_b32 v59, v57')
    A('s_waitcnt lgkmcnt(0)')
    for r in range(4): A(f'v_mul_f32 v{24+r}, v{24+r}, v44')
    A('v_permlane32_swap_b32 v57, v59')
    for a in range(1, 4):
        for r in range(4): A(f'v_fmac_f32 v{24+r}, v{24+4*a+r}, v{44+2*a}')
    tagq(56, 56)
    publish(24, vAPo, sAP)
    A('s_mov_b64 exec, 0xff')
    A(f'buffer_store_dwordx4 v[56:59], v{vL16}, {srd(rWS)}, s{sAML} offen {stf}')
    A('s_mov_b64 exec, -1')
    A('L_att_nopub:')
    stamp(3)
    A(f's_bitcmp0_b32 s{sRole}, 0')
    A(f's_cbranch_scc1 {LEND}')
    if slabpos == 1: slab_loads()
    for r in range(4): A(f'v_mov_b32 v{acc+r}, 0')
    A(f's_cmp_lg_u32 s{sRole}, 1')
    A('s_cbranch_scc1 L_owner')
    A('s_waitcnt vmcnt(0)')
    A('s_branch L_proj')
    A('L_owner:')
    A(f's_lshr_b32 s{sT1}, s{sA}, 1')
    A(f's_lshl_b32 s{sT2}, s{sG}, 1')
    A(f's_add_u32 s{sT2}, s{sT2}, s{sT1}')
    A(f's_lshl_b32 s{sOff}, s{sT2}, 12')
    A(f's_and_b32 s{sCnt}, s{sA}, 1')
    A(f's_and_b32 s{sT0}, s{sUnit}, 1')
    A(f's_lshl_b32 s{sF0}, s{sT0}, 1')
    A(f's_add_u32 s{sF0}, s{sF0}, s{sCnt}')
    A(f's_lshl_b32 s{sF0}, s{sF0}, 7')
    A(f's_add_u32 s{sOff}, s{sOff}, s{sF0}')
    A(f's_add_u32 s{sOff}, s{sOff}, {WS_AP}')
    A(f's_lshl_b32 s{sT2}, s{sT1}, 4')
    A(f's_lshr_b32 s{sF0}, s{sG}, 1')
    A(f's_add_u32 s{sT2}, s{sT2}, s{sF0}')
    A(f's_lshl_b32 s{sT2}, s{sT2}, 10')
    A(f's_add_u32 s{sT2}, s{sT2}, {WS_AML}')
    A(f's_and_b32 s{sF0}, s{sG}, 1')
    A(f's_cselect_b64 s[{sP}:{sP+1}], -1, 0')
    A('L_own_poll:')
    A(f'buffer_load_dwordx4 v[28:31], v{vL16}, {srd(rWS)}, s{sT2} offen {ldf}')
    A(f'buffer_load_dwordx4 v[24:27], v{vOg}, {srd(rWS)}, s{sOff} offen {ldf}')
    A('s_waitcnt vmcnt(0)')
    check_tags(quads(24, 2), 32, 33, 'L_own_poll', 'L_own')
    stamp(4)
    A(f'v_cndmask_b32 v28, v28, v30, s[{sP}:{sP+1}]')
    A(f'v_cndmask_b32 v29, v29, v31, s[{sP}:{sP+1}]')
    A(f'v_max_f32_dpp v30, v28, v28 row_ror:8 {DPP}')
    xor16('v_max_f32', 30, 31)
    xor32('v_max_f32', 30, 31)
    A('v_sub_f32 v28, v28, v30')
    A(f'v_mul_f32 v28, s{sLog2e}, v28')
    A('v_exp_f32 v28, v28')
    A('v_mul_f32 v29, v29, v28')
    for r in range(4): A(f'v_mul_f32 v{24+r}, v{24+r}, v28')
    A(f'v_add_f32_dpp v29, v29, v29 row_ror:8 {DPP}')
    A('v_permlane32_swap_b32 v24, v26')
    A('v_permlane32_swap_b32 v25, v27')
    A('v_mov_b32 v31, v29')
    A('v_add_f32 v24, v24, v26')
    A('v_add_f32 v25, v25, v27')
    A('v_permlane16_swap_b32 v29, v31')
    A('v_add_f32 v29, v29, v31')
    A('v_permlane16_swap_b32 v24, v25')
    A('v_mov_b32 v31, v29')
    A('v_add_f32 v24, v24, v25')
    A('v_permlane32_swap_b32 v29, v31')
    A('v_add_f32 v29, v29, v31')
    A(f'v_add_f32_dpp v24, v24, v24 row_ror:8 {DPP}')
    A('v_rcp_f32 v29, v29')
    A('v_mul_f32 v24, v24, v29')
    A('v_cvt_pk_bf16_f32 v24, v24, v24')
    A(f'ds_write_b32 v{vTw}, v24 offset:{L_T2}')
    A('s_waitcnt lgkmcnt(0)')
    A('s_barrier')
    A('L_proj:')
    for q in range(4): A(f'ds_read_b128 {v4(24+4*q)}, v{vXr} offset:{L_T2 + q*16}')
    A(f's_cmp_eq_u32 s{sA}, 3')
    A('s_cbranch_scc1 L_proj3')
    for tail in (0, 1):
        if tail: A('L_proj3:')
        def pmf(t):
            A(f'v_mfma_f32_16x16x32_bf16 {v4(acc)}, {v4(40 + 4*(t&3))}, {v4(WOR+4*t)}, {v4(acc)}')
            if tail: A(f'v_mfma_f32_16x16x32_bf16 {v4(56 + 4*(t&1))}, {v4(40 + 4*(t&3))}, {v4(WOT+4*(t>>1))}, {v4(56 + 4*(t&1))}')
        for t in range(16):
            if t % 4 == 0: A(f's_waitcnt lgkmcnt({3 - t//4})')
            mkA(40 + 4*(t & 3), 24 + t)
            if t >= 1: pmf(t - 1)
        pmf(15)
        publish(acc, vPub, sPub)
        if tail:
            for r in range(4):
                A(f'v_add_f32_dpp v{56+r}, v{60+r}, v{56+r} row_ror:8 {DPP}')
            publish(56, vPub, sPub2, sLo8)
        stamp(5)
        endpgm()

    A('L_side:')
    A('s_setprio 3')
    if codepf & 4:
        A(f's_getpc_b64 s[{sP}:{sP+1}]')
        A('v_lshlrev_b32 v1, 4, v0')
        A('v_add_u32 v2, 4096, v1')
        for i in range(1, 6): A(f'global_load_dwordx4 v[224:227], v{1 + i//4}, s[{sP}:{sP+1}] offset:{(i&3)*1024}')
    XR = 24
    XF = 136
    WQ = 64
    A(f's_mov_b32 s{sA}, 4')
    A('v_lshrrev_b32 v1, 5, v0')
    A('v_mul_u32_u24 v1, 1152, v1')
    A('v_and_b32 v2, 31, v0')
    A('v_lshl_add_u32 v1, v2, 2, v1')
    off8(3, 8192)
    A(f's_lshl_b32 s{sT0}, s{sB}, 3')
    A(f's_add_u32 s{sT0}, s{sT0}, s{sJ}')
    A(f's_lshr_b32 s{sT1}, s{sT0}, 2')
    A(f's_add_u32 s{sT0}, s{sT0}, s{sH}')
    A(f's_lshr_b32 s{sT2}, s{sH}, 2')
    A(f's_add_u32 s{sT0}, s{sT0}, s{sT2}')
    A(f's_and_b32 s{sT0}, s{sT0}, 3')
    A(f's_mul_i32 s{sT2}, s{sT1}, {144*8192}')
    A(f's_lshl_b32 s{sOff}, s{sH}, 9')
    A(f's_add_u32 s{sT2}, s{sT2}, s{sOff}')
    A(f's_lshl_b32 s{sOff}, s{sT0}, 7')
    A(f's_add_u32 s{sT2}, s{sT2}, s{sOff}')
    A(f's_mul_i32 s{sXoff}, s{sG}, {CNT_STRIDE}')
    A(f's_add_u32 s{sXoff}, s{sXoff}, {WS_CNT}')
    A(f's_cmp_eq_u32 s{sJ}, 0')
    A(f's_cselect_b32 s{sCnt}, s{sXoff}, {WS_SIZE}')
    A('v_mov_b32 v35, 0')
    A('s_waitcnt lgkmcnt(0)')
    if dbgt or thr:
        A(f's_memrealtime s[{sSt}:{sSt+1}]')
        A('s_waitcnt lgkmcnt(0)')
        A(f's_mov_b32 s{sSt+4}, s{sSt}')
    mk_srd(rWS, sWSP, None, WS_SIZE)
    A(f'buffer_store_dword v35, off, {srd(rWS)}, s{sCnt} sc1')
    mk_srd(rB, sX, None, 2304)
    for n in range(9): A(f'buffer_load_dword v{XR+n}, v1, {srd(rB)}, 0 offen offset:{n*128}')
    A(f'buffer_load_dword v33, off, {srd(rWS)}, 0 {epf}')
    mk_srd(rA, sWQ, sT2, f's_sub_u32 s{rA+2}, {576*8192}, s{sT2}')
    A(f's_mov_b32 s{sOff}, 0')
    for u in range(18):
        A(f'buffer_load_dwordx4 {v4(WQ+4*u)}, v3, {srd(rA)}, s{sOff} offen {wflags}')
        if u < 17: A(f's_add_u32 s{sOff}, s{sOff}, 65536')
    if bar1:
        A(f's_cmp_lg_u32 s{sRole}, 1')
        A('s_cbranch_scc1 L_nobar1')
        A('s_barrier')
        A('L_nobar1:')
    stamp(0)
    consts()
    A('v_lshlrev_b32 v1, 2, v0')
    A(f'ds_write_b32 v1, v35 offset:{L_PG}')
    for i in range(4): A(f'ds_write_b32 v1, v35 offset:{L_TQ + 256*i}')
    A(f's_lshl_b32 s{sCnt}, s{sJ}, 9')
    A(f's_add_u32 s{sCnt}, s{sCnt}, 1')
    A(f'v_lshl_add_u32 v36, v0, 17, s{sCnt}')
    A('v_lshl_add_u32 v36, v0, 24, v36')
    A('v_or_b32 v37, 2, v36')
    A(f's_cmp_eq_u32 s{sRole}, 1')
    A(f's_mov_b32 s{sF0}, 0x{(1 << (NC - 32)) - 1:x}')
    A(f's_cselect_b32 s{sF0}, 0x{(1 << (NC + EXF - 32)) - 1:x}, s{sF0}')
    A(f's_cselect_b32 s{sF1}, {4*EXF}, 0')
    A(f'v_add_u32 v2, s{sF1}, v1')
    A(f's_mov_b32 exec_hi, s{sF0}')
    A(f'ds_write_b32 v1, v36 offset:{L_TQ}')
    A(f'ds_write_b32 v2, v37 offset:{L_TQ + 4*NC}')
    A('s_mov_b64 exec, -1')
    A('v_and_b32 v1, 1, v0')
    A('v_lshlrev_b32 v1, 2, v1')
    A('v_lshrrev_b32 v2, 5, v0')
    A('v_add_u32 v1, v1, v2')
    A('v_mul_u32_u24 v1, 576, v1')
    A('v_bfe_u32 v2, v0, 1, 4')
    A('v_lshl_add_u32 v1, v2, 2, v1')
    A('v_lshrrev_b32 v3, 3, v0')
    A('v_mul_u32_u24 v3, 576, v3')
    A(f's_mul_i32 s{sT2}, s{sT1}, 144')
    A(f'v_add_u32 v3, s{sT2}, v3')
    A('v_lshrrev_b32 v34, 5, v0')
    A('v_lshlrev_b32 v34, 12, v34')
    A('v_and_b32 v2, 7, v0')
    A('v_lshl_add_u32 v34, v2, 5, v34')
    A('v_and_b32 v2, 16, v0')
    A('v_add_u32 v34, v34, v2')
    A(f's_lshl_b32 s{sT2}, s{sH}, 13')
    A(f's_lshl_b32 s{sT1}, s{sT1}, 10')
    A(f's_add_u32 s{sT2}, s{sT2}, s{sT1}')
    A(f's_lshl_b32 s{sT0}, s{sT0}, 8')
    A(f's_add_u32 s{sT2}, s{sT2}, s{sT0}')
    A(f's_add_u32 s{sT2}, s{sT2}, {WS_QP}')
    A('s_waitcnt vmcnt(18)')
    stamp(1)
    A(f'v_readfirstlane_b32 s{sT0}, v33')
    A(f'ds_write_b32 v35, v33 offset:{L_TAG}')
    for n in range(9):
        A(f'v_lshlrev_b32 v{XF+2*n}, 16, v{XR+n}')
        A(f'v_and_b32 v{XF+2*n+1}, 0xffff0000, v{XR+n}')
    mk_tags(sT0)
    A(f'v_add_f32 v8, v{XF}, v{XF+1}')
    A(f'v_add_f32 v9, v{XF+2}, v{XF+3}')
    for i in range(4, 18, 2):
        A(f'v_add_f32 v8, v8, v{XF+i}')
        A(f'v_add_f32 v9, v9, v{XF+i+1}')
    A('v_add_f32 v8, v8, v9')
    row_sum16(8)
    xor16('v_add_f32', 8, 9)
    A(f'v_mul_f32 v8, {f32(1/576)}, v8')
    A(f'v_sub_f32 v12, v{XF}, v8')
    A(f'v_sub_f32 v13, v{XF+1}, v8')
    A('v_mul_f32 v10, v12, v12')
    A('v_mul_f32 v11, v13, v13')
    for i in range(2, 18, 2):
        A(f'v_sub_f32 v12, v{XF+i}, v8')
        A(f'v_sub_f32 v13, v{XF+i+1}, v8')
        A('v_fmac_f32 v10, v12, v12')
        A('v_fmac_f32 v11, v13, v13')
    A('v_add_f32 v10, v10, v11')
    row_sum16(10)
    xor16('v_add_f32', 10, 9)
    A(f'v_mul_f32 v10, {f32(1/576)}, v10')
    rnd_bf16(8, 8)
    rnd_bf16(10, 10)
    A(f'v_add_f32 v10, {f32(1e-5)}, v10')
    rnd_bf16(10, 10)
    A('v_sqrt_f32 v10, v10')
    rnd_bf16(10, 10)
    A('v_rcp_f32 v10, v10')
    for n in range(9):
        a, b = XF + 2*n, XF + 2*n + 1
        A(f'v_sub_f32 v{a}, v{a}, v8')
        A(f'v_sub_f32 v{b}, v{b}, v8')
        A(f'v_cvt_pk_bf16_f32 v{b}, v{a}, v{b}')
        A(f'v_lshlrev_b32 v{a}, 16, v{b}')
        A(f'v_and_b32 v{b}, 0xffff0000, v{b}')
        A(f'v_mul_f32 v{a}, v{a}, v10')
        A(f'v_mul_f32 v{b}, v{b}, v10')
        A(f'v_cvt_pk_bf16_f32 v{a}, v{a}, v{a}')
        A(f'v_cvt_pk_bf16_f32 v{b}, v{b}, v{b}')
        A(f'ds_write_b32 v1, v{a} offset:{L_T + n*64}')
        A(f'ds_write_b32 v1, v{b} offset:{L_T + 1152 + n*64}')
    A('s_waitcnt lgkmcnt(0)')
    for q in range(9): A(f'ds_read_b128 {v4(XF+4*q)}, v3 offset:{L_T + q*16}')
    for r in range(8): A(f'v_mov_b32 v{8+r}, 0')
    def qmf(u):
        b0 = 40 + 8*(u & 1)
        A(f'v_mfma_f32_16x16x32_bf16 v[8:11], {v4(b0)}, {v4(WQ+4*u)}, v[8:11]')
        A(f'v_mfma_f32_16x16x32_bf16 v[12:15], {v4(b0+4)}, {v4(WQ+4*u)}, v[12:15]')
    for u in range(18):
        if u % 2 == 0: A(f's_waitcnt lgkmcnt({8 - u//2})')
        b0 = 40 + 8*(u & 1)
        mkA(b0, XF + 2*u)
        mkA(b0 + 4, XF + 2*u + 1)
        if u >= 1:
            if (u - 1) % 6 == 0: A(f's_waitcnt vmcnt({12 - (u-1)})')
            qmf(u - 1)
    qmf(17)
    for r in range(4):
        A(f'v_add_f32_dpp v{8+r}, v{12+r}, v{8+r} row_ror:8 {DPP}')
    publish(8, 34, sT2, sLo8)
    stamp(2)
    A('v_mov_b32 v192, v37')
    mk_srd(rO, sOUT, None, 2304)
    GR = 128
    A(f's_cmp_lg_u32 s{sRole}, 1')
    A('s_cbranch_scc1 L_nogu')
    gu_srds()
    off8(3, 9216)
    A(f's_mov_b32 s{sOff}, {512*9216}')
    for u in range(8):
        A(f'buffer_load_dwordx4 {v4(GR+8*u)}, v3, {srd(rA)}, s{sOff} offen {wflags}')
        A(f'buffer_load_dwordx4 {v4(GR+8*u+4)}, v3, {srd(rB)}, s{sOff} offen {wflags}')
        if u < 7: A(f's_add_u32 s{sOff}, s{sOff}, {8*9216}')
    A('L_nogu:')
    A(f's_lshl_b32 s{sT2}, s{sH}, 1')
    A(f's_add_u32 s{sT2}, s{sT2}, s{sB}')
    A(f's_lshl_b32 s{sT2}, s{sT2}, 12')
    A(f's_add_u32 s{sT2}, s{sT2}, {WS_QP}')
    A('v_lshlrev_b32 v1, 4, v0')
    A('v_lshlrev_b32 v3, 3, v0')
    if qsleep:
        A('s_waitcnt vmcnt(0)')
        A(f's_sleep {qsleep}')
    A('L_q_poll:')
    if qsleep2: A(f's_sleep {qsleep2}')
    for i in range(4):
        A(f'buffer_load_dwordx4 {v4(64+4*i)}, v1, {srd(rWS)}, s{sT2} offen offset:{i*1024} {ldf}')
    A('s_waitcnt vmcnt(0)')
    check_tags(quads(64, 4), 8, 9, 'L_q_poll', 'L_q')
    for i in range(16): A(f'v_and_b32 v{64+i}, -16, v{64+i}')
    for r in range(4):
        A(f'v_add_f32 v{64+r}, v{64+r}, v{68+r}')
        A(f'v_add_f32 v{72+r}, v{72+r}, v{76+r}')
    for r in range(4): A(f'v_add_f32 v{64+r}, v{64+r}, v{72+r}')
    A('v_cvt_pk_bf16_f32 v8, v64, v65')
    A('v_cvt_pk_bf16_f32 v9, v66, v67')
    A(f'ds_write_b64 v3, v[8:9] offset:{L_Q}')
    A('s_waitcnt lgkmcnt(0)')
    stamp(3)
    A('s_barrier')
    A('s_setprio 0')
    if dbgt or thr:
        A(f's_memrealtime s[{sSt}:{sSt+1}]')
        A('s_waitcnt lgkmcnt(0)')
        A(f's_mov_b32 s{sSt+5}, s{sSt}')
    A(f's_cmp_eq_u32 s{sRole}, 1')
    A('s_cbranch_scc1 L_ffn')
    q_addr()
    A(f'ds_read_b128 {v4(vQ)}, v1 offset:{L_Q}')
    A(f'v_lshlrev_b32 v1, 4, v0')
    A(f'v_add_u32 v1, {L_KV}, v1')
    A(f'v_and_b32 v{vSb}, 0x38, v0')
    A(f's_mov_b32 s{sCnt}, 0')
    A('L_cu_loop:')
    for n in range(4): A(f'ds_read_b128 {v4(BUF[0]+4*n)}, v1 offset:{n*1024}')
    A('v_add_u32 v1, 4096, v1')
    A(f's_and_b32 s{sT1}, s{sCnt}, 3')
    A(f's_lshl_b32 s{sT1}, s{sT1}, 12')
    A(f's_lshr_b32 s{sT2}, s{sCnt}, 2')
    A(f's_add_u32 s{sT2}, s{sT2}, {NC}')
    A(f's_lshl_b32 s{sT2}, s{sT2}, 6')
    A(f's_add_u32 s{sT1}, s{sT1}, s{sT2}')
    A(f'v_add_u32 v{vSa}, s{sT1}, v{vSb}')
    A('s_waitcnt lgkmcnt(0)')
    for c in k_parts(BUF[0]): c()
    A(f's_add_u32 s{sCnt}, s{sCnt}, 1')
    A(f's_cmp_lg_u32 s{sCnt}, 32')
    A('s_cbranch_scc1 L_cu_loop')
    A('v_lshlrev_b32 v1, 2, v0')
    A('s_waitcnt lgkmcnt(0)')
    A('s_mov_b32 exec_lo, 0')
    A(f's_mov_b32 exec_hi, 0x{0xff << (NC - 32):x}')
    A(f'ds_write_b32 v1, v192 offset:{L_TQ + 4*NC}')
    A('s_mov_b64 exec, -1')
    stamp(7)
    A('s_branch L_agent')
    A('L_ffn:')
    FA = 24
    for r in range(16): A(f'v_mov_b32 v{FA+r}, 0')
    A('v_lshrrev_b32 v1, 3, v0')
    A('v_mul_u32_u24 v1, 576, v1')
    A('v_lshlrev_b32 v3, 4, v0')
    A(f'v_add_u32 v3, {L_KV}, v3')
    A(f's_mov_b32 s{sCnt}, 32')
    def gu_step(g0):
        for uu in range(2):
            mkA(56, 8 + 2*uu)
            mkA(60, 9 + 2*uu)
            g = g0 + 8*uu
            A(f'v_mfma_f32_16x16x32_bf16 {v4(FA)}, v[56:59], {v4(g)}, {v4(FA)}')
            A(f'v_mfma_f32_16x16x32_bf16 {v4(FA+4)}, v[60:63], {v4(g)}, {v4(FA+4)}')
            A(f'v_mfma_f32_16x16x32_bf16 {v4(FA+8)}, v[56:59], {v4(g+4)}, {v4(FA+8)}')
            A(f'v_mfma_f32_16x16x32_bf16 {v4(FA+12)}, v[60:63], {v4(g+4)}, {v4(FA+12)}')
    A('L_ffn_loop:')
    A(f'ds_read_b128 v[8:11], v1 offset:{L_T}')
    for n in range(4): A(f'ds_read_b128 {v4(64+4*n)}, v3 offset:{n*1024}')
    A('v_add_u32 v1, 16, v1')
    A('v_add_u32 v3, 4096, v3')
    A('s_waitcnt lgkmcnt(0)')
    gu_step(64)
    A(f's_sub_u32 s{sCnt}, s{sCnt}, 1')
    A(f's_cmp_lg_u32 s{sCnt}, 0')
    A('s_cbranch_scc1 L_ffn_loop')
    for i in range(4):
        A(f'ds_read_b128 v[8:11], v1 offset:{L_T + 16*i}')
        A('s_waitcnt lgkmcnt(0)')
        gu_step(GR + 16*i)
    A('v_lshrrev_b32 v1, 5, v0')
    A('v_lshlrev_b32 v1, 7, v1')
    A('v_and_b32 v2, 7, v0')
    A('v_lshl_add_u32 v1, v2, 3, v1')
    A('v_bfe_u32 v2, v0, 4, 1')
    A('v_lshl_add_u32 v1, v2, 2, v1')
    for r in range(4):
        A(f'v_add_f32_dpp v{FA+r}, v{FA+4+r}, v{FA+r} row_ror:8 {DPP}')
        A(f'v_add_f32_dpp v{FA+8+r}, v{FA+12+r}, v{FA+8+r} row_ror:8 {DPP}')
    for r in range(4):
        rnd_bf16(FA+r, FA+r)
        rnd_bf16(FA+8+r, FA+8+r)
        silu(FA+r, FA+r, FA+4+r)
        rnd_bf16(FA+r, FA+r)
        A(f'v_mul_f32 v{FA+r}, v{FA+r}, v{FA+8+r}')
        A(f'v_cvt_pk_bf16_f32 v{FA+r}, v{FA+r}, v{FA+r}')
    A(f's_mov_b64 exec, s[{sLo8}:{sLo8+1}]')
    for r in range(4): A(f'ds_write_b32 v1, v{FA+r} offset:{L_T2 + r*256}')
    A('s_mov_b64 exec, -1')
    A('L_agent:')
    stamp(4)
    A('v_mov_b32 v1, 0')
    A(f's_mov_b32 s{sCnt}, {NC*8 + 32}')
    A(f's_cmp_eq_u32 s{sRole}, 1')
    A(f's_cselect_b32 s{sCnt}, {NC*8 + 8*EXF}, s{sCnt}')
    sNL, sNP = sAP, sAML
    heavy(sT1)
    A(f's_cselect_b32 s{sNL}, {2*LF}, {3*LF}')
    A(f's_add_u32 s{sNP}, s{sNL}, {NPB}')
    A(f's_mov_b32 s{sT1}, 0')
    A(f's_cmp_eq_u32 s{sRole}, 1')
    A(f's_cselect_b32 s{sT1}, {THF}, s{sT1}')
    A(f's_cmp_eq_u32 s{sRole}, 3')
    A(f's_cselect_b32 s{sT1}, {THO}, s{sT1}')
    A(f's_sub_u32 s{sAoff}, s{sNP}, s{sT1}')
    A('L_ag_wait:')
    A('s_sleep 2')
    A(f'ds_read_b128 v[8:11], v1 offset:{L_PG}')
    A(f's_sub_u32 s{sT1}, s{sCnt}, {4*lead}')
    A('s_waitcnt lgkmcnt(0)')
    A(f'v_{trig}3_u32 v8, v8, v9, v10')
    A(f'v_{trig}_u32 v8, v8, v11')
    A(f'v_cmp_gt_u32 vcc, s{sT1}, v8')
    spin_check('L_ag_wait', 'L_ag')
    A('v_mov_b32 v8, 1')
    A('s_mov_b64 exec, 1')
    A(f'buffer_atomic_add v8, off, {srd(rWS)}, s{sXoff} sc0')
    A('s_mov_b64 exec, -1')
    A(f'v_mov_b32 v9, s{sCnt}')
    A('s_waitcnt vmcnt(0)')
    A(f'v_readfirstlane_b32 s{sT1}, v8')
    A(f's_add_u32 s{sCnt}, s{sCnt}, 8')
    A(f's_min_u32 s{sT1}, s{sT1}, s{sNP}')
    A(f's_sub_u32 s{sT2}, s{sT1}, s{sNL}')
    A(f's_add_u32 s{sT2}, s{sT2}, {(NC + 8)*8}')
    A(f's_lshr_b32 s{sF0}, s{sT1}, {2 if LF == 4 else 3}')
    A(f's_add_u32 s{sF0}, s{sF0}, s{sG}')
    A(f's_add_u32 s{sF0}, s{sF0}, 1')
    A(f's_and_b32 s{sF0}, s{sF0}, 7')
    A(f's_and_b32 s{sF1}, s{sT1}, {LF - 1}')
    A(f's_add_u32 s{sF1}, s{sF1}, {NC + EXF}')
    A(f's_lshl_b32 s{sF1}, s{sF1}, 3')
    A(f's_add_u32 s{sF0}, s{sF0}, s{sF1}')
    A(f's_cmp_lt_u32 s{sT1}, s{sNL}')
    A(f's_cselect_b32 s{sT2}, s{sF0}, s{sT2}')
    A(f's_and_b32 s{sF0}, s{sT2}, 7')
    A(f's_lshl_b32 s{sF0}, s{sF0}, 9')
    A(f's_lshr_b32 s{sT2}, s{sT2}, 3')
    A(f's_lshl_b32 s{sT2}, s{sT2}, 17')
    A(f's_add_u32 s{sT2}, s{sT2}, s{sF0}')
    A(f's_add_u32 s{sT2}, s{sT2}, {(63 << 24) + 1}')
    A(f'v_mov_b32 v10, s{sT2}')
    A('v_or_b32 v11, 2, v10')
    A(f'ds_write_b64 v9, v[10:11] offset:{L_TQ}')
    A(f's_cmp_lt_u32 s{sT1}, s{sAoff}')
    A('s_cbranch_scc1 L_ag_wait')
    A(f'v_mov_b32 v10, {(63 << 24) + (1 << 23) + 1}')
    A('v_or_b32 v11, 2, v10')
    A(f'ds_write_b64 v9, v[10:11] offset:{L_TQ + 8}')
    A('s_waitcnt lgkmcnt(0)')
    stamp(8)
    if codepf & 2:
        A(f's_getpc_b64 s[{sP}:{sP+1}]')
        A('L_pcref:')
        A(f's_sub_u32 s{sP}, s{sP}, L_pcref-L_loop_done')
        A(f's_subb_u32 s{sP+1}, s{sP+1}, 0')
        A('v_lshlrev_b32 v1, 4, v0')
        for i in range(4): A(f'global_load_dwordx4 v[224:227], v1, s[{sP}:{sP+1}] offset:{i*1024}')
    A(f's_cmp_lg_u32 s{sRole}, 2')
    A(f's_cbranch_scc1 {LEND}')
    A('s_setprio 3')
    A('L_red:')
    mk_srd(rB, sX, None, 2304)
    A('v_and_b32 v18, 3, v0')
    A('v_lshlrev_b32 v18, 2, v18')
    A('v_lshrrev_b32 v2, 4, v0')
    A('v_add_lshl_u32 v18, v18, v2, 1')
    A(f's_lshl_b32 s{sCnt}, s{sUnit}, 5')
    A(f'buffer_load_ushort v19, v18, {srd(rB)}, s{sCnt} offen')
    A(f's_lshr_b32 s{sT1}, s{sUnit}, 1')
    A(f's_and_b32 s{sT2}, s{sUnit}, 1')
    A(f's_lshl_b32 s{sT2}, s{sT2}, 6')
    A(f's_mul_i32 s{sOff}, s{sT1}, {72*128}')
    A(f's_add_u32 s{sOff}, s{sOff}, s{sT2}')
    A(f's_add_u32 s{sOff}, s{sOff}, {WS_DP}')
    A(f's_lshl_b32 s{sT1}, s{sT1}, 13')
    A(f's_add_u32 s{sT1}, s{sT1}, s{sT2}')
    A(f's_add_u32 s{sT1}, s{sT1}, {WS_SP}')
    A('v_lshrrev_b32 v1, 2, v0')
    A('v_lshlrev_b32 v1, 7, v1')
    A('v_and_b32 v2, 3, v0')
    A('v_lshl_add_u32 v1, v2, 4, v1')
    A('v_add_u32 v2, 4096, v1')
    A('v_and_b32 v3, 0x3ff, v1')
    A('v_add_u32 v3, 8192, v3')
    A(f's_mov_b32 s{sP}, 0x000f000f')
    A(f's_mov_b32 s{sP+1}, 0x000f000f')
    A('s_barrier')
    def sum_red(b, n):
        for r in range(4):
            A(f'v_add_f32 v{b+r}, v{b+r}, v{b+4+r}')
            A(f'v_add_f32 v{b+8+r}, v{b+8+r}, v{b+12+r}')
        if n == 5:
            for r in range(4): A(f'v_add_f32 v{b+r}, v{b+r}, v{b+16+r}')
        for r in range(4): A(f'v_add_f32 v{b+r}, v{b+r}, v{b+8+r}')
        rscatter4(b)
        A(f'v_add_f32_dpp v{b}, v{b}, v{b} row_ror:4 {DPP}')
        A(f'v_add_f32_dpp v{b}, v{b}, v{b} row_ror:8 {DPP}')
    def sp_loads():
        for i in range(4):
            A(f'buffer_load_dwordx4 {v4(64+4*i)}, v{1 + i//2}, {srd(rWS)}, s{sT1} offen offset:{(i&1)*2048} {ldf}')
    A('L_dp_poll:')
    for i in range(5):
        A(f'buffer_load_dwordx4 {v4(84+4*i)}, v{1 + i//2}, {srd(rWS)}, s{sOff} offen offset:{(i&1)*2048} {ldf}')
    sp_loads()
    A('s_waitcnt vmcnt(4)')
    check_tags(quads(84, 5), 8, 9, 'L_dp_poll', 'L_dp')
    for r in range(4): A(f'v_cndmask_b32 v{100+r}, v{100+r}, 0, s[{sHi}:{sHi+1}]')
    sum_red(84, 5)
    rnd_bf16(24, 84)
    silu(24, 24, 26)
    rnd_bf16(24, 24)
    A('v_lshlrev_b32 v26, 16, v19')
    stamp(5)
    A('s_branch L_sp_chk')
    A('L_sp_poll:')
    sp_loads()
    A('L_sp_chk:')
    A('s_waitcnt vmcnt(0)')
    check_tags(quads(64, 4), 8, 9, 'L_sp_poll', 'L_sp')
    stamp(6)
    sum_red(64, 4)
    rnd_bf16(28, 64)
    A('v_mul_f32 v28, v28, v24')
    rnd_bf16(28, 28)
    A('v_add_f32 v28, v28, v26')
    if thr:
        A(f's_memrealtime s[{sSt}:{sSt+1}]')
        A('s_waitcnt lgkmcnt(0)')
        A(f's_sub_u32 s{sSt}, s{sSt}, s{sSt+2}')
        A(f's_cmp_lt_u32 s{sSt}, {thr}')
        A('s_cbranch_scc1 L_thr')
        A(f's_sub_u32 s{sSt}, s{sSt}, 7000')
        A(f's_sub_u32 s{sSt+4}, s{sSt+4}, s{sSt+2}')
        A(f's_sub_u32 s{sSt+5}, s{sSt+5}, s{sSt+2}')
        A(f'v_cvt_f32_u32 v28, s{sSt}')
        A(f'v_cvt_f32_u32 v29, s{sSt+4}')
        A(f'v_cvt_f32_u32 v30, s{sSt+5}')
        A('v_cmp_gt_u32 vcc, 16, v0')
        A('v_cndmask_b32 v28, v29, v28, vcc')
        A('v_cmp_gt_u32 vcc, 32, v0')
        A('v_cndmask_b32 v28, v30, v28, vcc')
        A('L_thr:')
    A('v_cvt_pk_bf16_f32 v28, v28, v28')
    A(f's_mov_b64 exec, s[{sP}:{sP+1}]')
    A(f'buffer_store_short v28, v18, {srd(rO)}, s{sCnt} offen')
    if dbgt:
        A(f's_memrealtime s[{sSt}:{sSt+1}]')
        A('s_mov_b64 exec, 1')
        A('s_waitcnt lgkmcnt(0)')
        A(f's_not_b32 s{sSt+2}, s{sSt+2}')
        A(f'v_mov_b32 v30, s{sSt+2}')
        A(f'v_mov_b32 v31, s{sSt}')
        A(f'v_mov_b32 v32, s{sSt+4}')
        A(f'v_mov_b32 v33, s{sSt+5}')
        A('v_mov_b32 v29, 0')
        A(f'global_atomic_umax v29, v30, s[{sDBG}:{sDBG+1}]')
        A(f'global_atomic_umax v29, v31, s[{sDBG}:{sDBG+1}] offset:4')
        A(f'global_atomic_umax v29, v32, s[{sDBG}:{sDBG+1}] offset:8')
        A(f'global_atomic_umax v29, v33, s[{sDBG}:{sDBG+1}] offset:12')
    A(f's_cmp_lg_u32 s{sUnit}, 0')
    A(f's_cbranch_scc1 {LEND}')
    A('s_mov_b64 exec, 1')
    A(f'v_mov_b32 v1, s{sTg}')
    A(f'buffer_store_dword v1, off, {srd(rWS)}, 0')
    if stamps:
        A('L_exit:')
        A('s_mov_b64 exec, 1')
        A(f's_mul_i32 s{sSt}, s2, 5')
        A(f's_add_u32 s{sSt}, s{sSt}, s{sWave}')
        A(f's_lshl_b32 s{sSt}, s{sSt}, 6')
        A(f's_add_u32 s{sSt}, s{sSt}, {WS_ST}')
        for q in range(3):
            for r in range(4):
                i = 4*q + r
                A(f'v_mov_b32 v{224+i}, ' + (f's{sSt+2+i}' if i < 10 else (f'v{vTQ}' if i == 10 else '0')))
            A(f'buffer_store_dwordx4 {v4(224+4*q)}, off, {srd(rWS)}, s{sSt} offset:{16*q}')
    A('L_end:')
    A('s_endpgm')
    A('.fill 1024, 4, 0xbf810000')

    body = A.finish()
    out = HEADER
    out += f'; @launch grid=(256,1,1) block=(320,1,1) lds={LDS_BYTES}\n'
    out += '.amdgcn_target "amdgcn-amd-amdhsa--gfx950"\n.text\n'
    out += f'.globl {KNAME}\n.p2align 8\n.type {KNAME},@function\n'
    out += body
    out += f'''.section .rodata,"a"
.p2align 6
.amdhsa_kernel {KNAME}
  .amdhsa_next_free_vgpr 240
  .amdhsa_next_free_sgpr 100
  .amdhsa_accum_offset 240
  .amdhsa_group_segment_fixed_size 0
  .amdhsa_kernarg_size 96
  .amdhsa_user_sgpr_count 2
  .amdhsa_user_sgpr_kernarg_segment_ptr 1
  .amdhsa_system_sgpr_workgroup_id_x 1
  .amdhsa_float_denorm_mode_32 3
.end_amdhsa_kernel
'''
    return out

if __name__ == '__main__':
    import argparse
    ap = argparse.ArgumentParser()
    ap.add_argument('-o', default='k.s')
    ap.add_argument('-W', default='5555')
    ap.add_argument('--Wp', type=int, default=6)
    ap.add_argument('--NC', type=int, default=54)
    ap.add_argument('--lead', type=int, default=3)
    ap.add_argument('--rdpos', type=int, default=2)
    ap.add_argument('--vsched', default='0,0,1')
    ap.add_argument('--ffnw', type=int, default=2)
    ap.add_argument('--THO', type=int, default=13)
    ap.add_argument('--trig', default='min')
    ap.add_argument('--prio', type=int, default=1)
    ap.add_argument('--slabpos', type=int, default=1)
    ap.add_argument('--stf', default='sc1')
    ap.add_argument('--WV', default=None)
    ap.add_argument('--thr', type=int, default=0)
    ap.add_argument('--dbgt', action='store_true')
    ap.add_argument('--bar1', type=int, default=1)
    ap.add_argument('--epf', default='sc1')
    ap.add_argument('--WpF', type=int, default=6)
    ap.add_argument('--XF', type=int, default=0)
    ap.add_argument('--ldf', default='sc1')
    ap.add_argument('--THF', type=int, default=10)
    ap.add_argument('--stamps', action='store_true')
    ap.add_argument('--codepf', type=int, default=4)
    ap.add_argument('--qsleep', type=int, default=10)
    ap.add_argument('--qsleep2', type=int, default=4)
    ap.add_argument('--abl', default='')
    a = ap.parse_args()
    open(a.o, 'w').write(gen(W=tuple(int(c) for c in a.W), Wp=a.Wp, stamps=a.stamps, codepf=a.codepf,
                             qsleep=a.qsleep, qsleep2=a.qsleep2, abl=a.abl, NC=a.NC, lead=a.lead, rdpos=a.rdpos,
                             vsched=tuple(int(x) for x in a.vsched.split(',')), ffnw=a.ffnw, THO=a.THO, THF=a.THF, trig=a.trig, prio=a.prio, slabpos=a.slabpos, stf=a.stf, ldf=a.ldf, WV=None if a.WV is None else tuple(int(c) for c in a.WV), EXF=a.XF, WpF=a.WpF, bar1=a.bar1, epf=a.epf, dbgt=a.dbgt, thr=a.thr))
```

```python
import sys, struct
from asmlib import Asm

KNAME = 'recurrent_scan__gqa_block_cached__swiglu_ffn__decode_kernel'
def f32(x): return '0x%08x' % struct.unpack('<I', struct.pack('<f', x))[0]

WS_EPOCH = 0x0
WS_CNT = 0x1000
CNT_STRIDE = 4352
WS_QP = 0x40000
WS_AP = 0x60000
WS_AML = 0xA0000
WS_SP = 0xB0000
WS_DP = 0x100000
WS_ST = 0x200000
WS_SIZE = 0x400000
L_T = 0
L_Q = 4608
L_T2 = 5120
L_XO = 6144
L_EQ = L_XO
L_XM = 10240
L_TAG = 10304
L_LND = 10312
L_SLB = 10316
L_N = 10320
L_TF = 10336
L_SF = 10340
L_FF = 10352
L_SC = 10368
L_KV = 26752
L_FP = L_KV + 131072
LDS_BYTES = L_FP + 4096
SLAB = 64 * 1152

HEADER = open('recurrent_scan__gqa_block_cached__swiglu_ffn__decode.s.ref').read().split('; Override launch')[0]

def gen(W=21, stamps=False, kvflags='nt', wflags='nt', NR=62, codepf=5, qsleep=10, qsleep2=4,
        THO=48, THF=38, stf='sc1', ldf='sc1', LF=8, WF=24, TD=2, csleep=1, outf='', HB=160, PFW=64, WP=24, PS=2):
    NPB = (64 - NR) * 32
    TBASE = 0x1000
    assert max(W, WP) - 1 <= 8*PS*TD - 3 and WP >= W and NR <= 62 and LF in (4, 8) and 2*NR + (NPB + 12*LF) // 2 + 4 <= 256
    KPUB = (W - 1) % 4
    LAG = (W - 1 - KPUB) // 4
    KPUBP = (WP - 1) % 4
    LAGP = (WP - 1) // 4
    assert not HB or KPUB < 3
    IOFF = [0, 256, 0, 256]
    dbgt = False; thr = 0; epf = 'sc1'
    A = Asm()
    sX, sK, sV, sWQ, sWO, sWG, sWU, sWD, sOUT, sDBG, sWSP = 4, 6, 8, 10, 12, 16, 18, 20, 22, 24, 26
    rI, rS, rWS, rA, rB, rO = 28, 32, 36, 40, 44, 48
    sWave, sG, sJ, sB, sH, sRole, sUnit, sOff, sCnt, sT0, sT1, sT2 = 3, 52, 53, 54, 55, 56, 57, 58, 59, 60, 61, 62
    sScale, sLog2e, sNLog2e, sSpin = 63, 64, 65, 66
    sA = 67
    sHi = 68
    sLo8 = 70
    sF0, sF1 = 72, 73
    sAoff, sXoff = 74, 75
    sTg = 76
    sP = 80
    sAP, sAML = 82, 83
    sSt = 84
    sEnt, sSeq, sLnd, sSlot = 96, 97, 98, 100
    sOff2 = 99
    rV = 44
    sPub2 = 15
    sPub = 14
    sKb, sVb = 4, 6
    def srd(r): return f's[{r}:{r+3}]'
    def v4(r): return f'v[{r}:{r+3}]'
    def v2(r): return f'v[{r}:{r+1}]'
    def stamp(idx):
        if not stamps: return
        A(f's_memrealtime s[{sSt}:{sSt+1}]')
        A('s_waitcnt lgkmcnt(0)')
        A(f's_mov_b32 s{sSt+2+idx}, s{sSt}')
    def endpgm():
        A('s_branch L_exit' if stamps else 's_endpgm')
    LEND = 'L_exit' if stamps else 'L_end'

    def mk_srd(r, base, off_sgpr, size):
        if off_sgpr is None:
            A(f's_mov_b32 s{r}, s{base}')
            A(f's_mov_b32 s{r+1}, s{base+1}')
        else:
            A(f's_add_u32 s{r}, s{base}, s{off_sgpr}')
            A(f's_addc_u32 s{r+1}, s{base+1}, 0')
        if isinstance(size, int): A(f's_mov_b32 s{r+2}, {size}')
        else: A(size)
        A(f's_mov_b32 s{r+3}, 0x20000')
    def xor16(op, x, t):
        A(f'v_mov_b32 v{t}, v{x}')
        A(f'v_permlane16_swap_b32 v{x}, v{t}')
        A(f'{op} v{x}, v{x}, v{t}')
    def xor32(op, x, t):
        A(f'v_mov_b32 v{t}, v{x}')
        A(f'v_permlane32_swap_b32 v{x}, v{t}')
        A(f'{op} v{x}, v{x}, v{t}')
    DPP = 'row_mask:0xf bank_mask:0xf'
    def row_sum16(x):
        A(f'v_add_f32_dpp v{x}, v{x}, v{x} quad_perm:[1,0,3,2] {DPP}')
        A(f'v_add_f32_dpp v{x}, v{x}, v{x} quad_perm:[2,3,0,1] {DPP}')
        A(f'v_add_f32_dpp v{x}, v{x}, v{x} row_half_mirror {DPP}')
        A(f'v_add_f32_dpp v{x}, v{x}, v{x} row_mirror {DPP}')
    def rscatter4(x):
        A(f'v_permlane32_swap_b32 v{x}, v{x+2}')
        A(f'v_permlane32_swap_b32 v{x+1}, v{x+3}')
        A(f'v_add_f32 v{x}, v{x}, v{x+2}')
        A(f'v_add_f32 v{x+1}, v{x+1}, v{x+3}')
        A(f'v_permlane16_swap_b32 v{x}, v{x+1}')
        A(f'v_add_f32 v{x}, v{x}, v{x+1}')
    def rnd_bf16(dst, src):
        A(f'v_cvt_pk_bf16_f32 v{dst}, v{src}, v{src}')
        A(f'v_and_b32 v{dst}, 0xffff0000, v{dst}')
    def mkA(dst, x):
        for w in range(4):
            A(f'v_and_b32 v{dst+w}, v{x}, v{4+w}')
    def spin_check(retry_label, name):
        A(f's_cbranch_vccz {name}_ok')
        A(f's_sub_u32 s{sSpin}, s{sSpin}, 1')
        A(f's_cmp_gt_i32 s{sSpin}, 0')
        A(f's_cbranch_scc1 {retry_label}')
        A(f'{name}_ok:')
    def tag_vcc(words, t0, t1):
        acc_ = [t0, t1]
        for i, (w, tg) in enumerate(words):
            if i < 2: A(f'v_xor_b32 v{acc_[i]}, s{tg}, v{w}')
            else: A(f'v_bitop3_b32 v{acc_[i&1]}, v{w}, s{tg}, v{acc_[i&1]} bitop3:0xbe')
        A(f'v_bitop3_b32 v{t0}, v{t0}, v{t1}, 15 bitop3:0xa8')
        A(f'v_cmp_ne_u32 vcc, 0, v{t0}')
    def check_tags(words, t0, t1, retry_label, name):
        tag_vcc(words, t0, t1)
        spin_check(retry_label, name)
    def quads(base, n): return [(base + i, sTg + (i & 3)) for i in range(4*n)]
    def silu(dst, x, t):
        A(f'v_mul_f32 v{t}, s{sNLog2e}, v{x}')
        A(f'v_exp_f32 v{t}, v{t}')
        A(f'v_add_f32 v{t}, 1.0, v{t}')
        A(f'v_rcp_f32 v{t}, v{t}')
        A(f'v_mul_f32 v{dst}, v{x}, v{t}')
    def tagq(dst, src):
        for r in range(4): A(f'v_bfi_b32 v{dst+r}, 15, s{sTg+r}, v{src+r}')
    def publish(vals, voff, soff, mask=None):
        tagq(vals, vals)
        if mask: A(f's_mov_b64 exec, s[{mask}:{mask+1}]')
        A(f'buffer_store_dwordx4 {v4(vals)}, v{voff}, {srd(rWS)}, s{soff} offen {stf}')
        if mask: A('s_mov_b64 exec, -1')
    def mk_tags(src):
        A(f's_add_u32 s{sTg}, s{src}, 1')
        A(f's_add_u32 s{sTg+1}, s{src}, 6')
        A(f's_add_u32 s{sTg+2}, s{src}, 11')
        A(f's_add_u32 s{sTg+3}, s{src}, 14')
    def off8(dst, stride, t=2):
        A(f'v_lshrrev_b32 v{dst}, 4, v0')
        A(f'v_bfe_u32 v{t}, v0, 3, 1')
        A(f'v_lshl_add_u32 v{dst}, v{t}, 2, v{dst}')
        A(f'v_mul_u32_u24 v{dst}, {stride}, v{dst}')
        A(f'v_and_b32 v{t}, 7, v0')
        A(f'v_lshl_add_u32 v{dst}, v{t}, 4, v{dst}')
    def off4(dst, stride, t=2):
        A(f'v_lshrrev_b32 v{dst}, 4, v0')
        A(f'v_mul_u32_u24 v{dst}, {stride}, v{dst}')
        A(f'v_and_b32 v{t}, 15, v0')
        A(f'v_lshl_add_u32 v{dst}, v{t}, 4, v{dst}')
    def consts():
        A(f's_mov_b32 s{sScale}, {f32(128 ** -0.5)}')
        A(f's_mov_b32 s{sLog2e}, {f32(1.4426950408889634)}')
        A(f's_mov_b32 s{sNLog2e}, {f32(-1.4426950408889634)}')
        A(f's_mov_b32 s{sHi}, 0')
        A(f's_mov_b32 s{sHi+1}, -1')
        A(f's_mov_b32 s{sLo8}, 0x00ff00ff')
        A(f's_mov_b32 s{sLo8+1}, 0x00ff00ff')
        A('v_and_b32 v1, 1, v0')
        A('v_lshlrev_b32 v1, 4, v1')
        A('v_mov_b32 v2, 0xffff')
        A('v_lshlrev_b32 v1, v1, v2')
        A('v_bfe_u32 v2, v0, 1, 2')
        for w in range(4):
            A(f'v_cmp_eq_u32 vcc, {w}, v2')
            A(f'v_cndmask_b32 v{4+w}, 0, v1, vcc')
    def heavy(dst):
        A(f's_lshr_b32 s{dst}, s{sG}, 3')
        A(f's_xor_b32 s{dst}, s{dst}, s{sG}')
        A(f's_and_b32 s{dst}, s{dst}, 3')
    def roles():
        A(f's_sub_u32 s{sF0}, s{sJ}, s{sG}')
        A(f's_and_b32 s{sF0}, s{sF0}, 7')
        A(f's_cmp_le_u32 s{sF0}, 3')
        A(f's_cselect_b32 s{sRole}, 1, 2')
        A(f's_cselect_b32 s{sT1}, 1, 4')
        A(f's_sub_u32 s{sT1}, s{sF0}, s{sT1}')
        A(f's_and_b32 s{sUnit}, s{sG}, 7')
        A(f's_lshl_b32 s{sUnit}, s{sUnit}, 1')
        A(f's_add_u32 s{sUnit}, s{sUnit}, s{sT1}')
        A(f's_lshl_b32 s{sUnit}, s{sUnit}, 2')
        A(f's_lshr_b32 s{sT2}, s{sG}, 3')
        A(f's_add_u32 s{sUnit}, s{sUnit}, s{sT2}')
        heavy(sT2)
        A(f's_cselect_b32 s{sT2}, 0, s{sRole}')
        A(f's_lshr_b32 s{sP}, s{sG}, 2')
        A(f's_add_u32 s{sP}, s{sP}, 64')
        A(f's_cmp_eq_u32 s{sT1}, 2')
        A(f's_cselect_b32 s{sRole}, s{sT2}, s{sRole}')
        A(f's_cselect_b32 s{sUnit}, s{sP}, s{sUnit}')
        A(f's_lshl_b32 s{sF1}, s{sG}, 1')
        A(f's_and_b32 s{sT1}, s{sF0}, 1')
        A(f's_add_u32 s{sF1}, s{sF1}, s{sT1}')
        A(f's_add_u32 s{sF0}, s{sF0}, 1')
        A(f's_and_b32 s{sF0}, s{sF0}, 6')
        A(f's_cselect_b32 s{sRole}, s{sRole}, 3')
        A(f's_cselect_b32 s{sUnit}, s{sUnit}, s{sF1}')
    def slab_srd():
        A(f's_cmp_lg_u32 s{sRole}, 3')
        A(f's_cselect_b64 s[{sP}:{sP+1}], s[{sWD}:{sWD+1}], s[{sWO}:{sWO+1}]')
        A(f's_mul_i32 s{sT1}, s{sUnit}, {SLAB}')
        mk_srd(rS, sP, sT1, SLAB)
    def role_pub(vpub):
        A(f's_cmp_lg_u32 s{sRole}, 3')
        A(f's_mov_b32 s{sT2}, {64*128}')
        A(f's_cselect_b32 s{sT2}, {72*128}, s{sT2}')
        A(f's_mov_b32 s{sPub}, {WS_SP}')
        A(f's_cselect_b32 s{sPub}, {WS_DP}, s{sPub}')
        A(f's_lshl_b32 s{sT1}, s{sUnit}, 7')
        A(f's_add_u32 s{sPub}, s{sPub}, s{sT1}')
        A(f's_lshl_b32 s{sT1}, s{sA}, 2')
        A(f's_mul_i32 s{sT1}, s{sT1}, s{sT2}')
        A(f's_add_u32 s{sPub}, s{sPub}, s{sT1}')
        A(f's_lshl_b32 s{sT1}, s{sT2}, 2')
        A(f's_add_u32 s{sPub2}, s{sPub}, s{sT1}')
        A(f'v_lshrrev_b32 v{vpub}, 5, v0')
        A(f'v_mul_u32_u24 v{vpub}, 18, v{vpub}')
        A('v_bfe_u32 v2, v0, 2, 2')
        A(f'v_add_u32 v{vpub}, v{vpub}, v2')
        A(f'v_mul_u32_u24 v{vpub}, s{sT2}, v{vpub}')
        A('v_and_b32 v2, 3, v0')
        A(f'v_lshl_add_u32 v{vpub}, v2, 5, v{vpub}')
        A('v_and_b32 v2, 16, v0')
        A(f'v_add_u32 v{vpub}, v{vpub}, v2')

    vKoff, vVoff, vM, vML, vQ, acc, vL = 8, 9, 10, 11, 12, 16, 20
    vXO, vXM, vTQ, vTK, vPG = 3, 21, 22, 124, 2
    vZero, vTa = 23, 126
    D = 24; S = 40; U = 44; T = 46; T2 = 47; AF = 48
    BUF = [64, 80, 96]
    vIoff, vSb, vSa, vL16 = 112, 113, 114, 115
    SCR = 116
    vPub, vSlab, vXr, vOg, vTw, vAPo = 118, 119, 120, 121, 122, 123
    WOR = 128
    def unpack4(src):
        A(f'v_lshlrev_b32 v{S}, 16, v{src}')
        A(f'v_and_b32 v{S+1}, 0xffff0000, v{src}')
        A(f'v_lshlrev_b32 v{S+2}, 16, v{src+1}')
        A(f'v_and_b32 v{S+3}, 0xffff0000, v{src+1}')
    def k_parts(buf):
        def qk():
            for n in range(4):
                A(f'v_mfma_f32_16x16x32_bf16 {v4(D+4*n)}, {v4(buf+4*n)}, {v4(vQ)}, 0')
        def red():
            for r in range(4):
                for n in range(4):
                    if r == 0: A(f'v_mov_b32_dpp v{S+n}, v{D+4*n} quad_perm:[0,0,0,0] {DPP}')
                    else: A(f'v_add_f32_dpp v{S+n}, v{D+4*n+r}, v{S+n} quad_perm:[{r},{r},{r},{r}] {DPP}')
        def scale():
            A(f'v_cvt_pk_bf16_f32 v{U}, v{S}, v{S+1}')
            A(f'v_cvt_pk_bf16_f32 v{U+1}, v{S+2}, v{S+3}')
            unpack4(U)
            for n in range(4): A(f'v_mul_f32 v{S+n}, s{sScale}, v{S+n}')
            A(f'v_cvt_pk_bf16_f32 v{U}, v{S}, v{S+1}')
            A(f'v_cvt_pk_bf16_f32 v{U+1}, v{S+2}, v{S+3}')
            A(f'ds_write_b64 v{vSa}, {v2(U)} offset:{L_SC}')
        return qk, red, scale
    def v_parts(buf, name):
        def soft():
            unpack4(SCR)
            A(f'v_max3_f32 v{T}, v{S}, v{S+1}, v{S+2}')
            A(f'v_max_f32 v{T}, v{T}, v{S+3}')
            A(f'v_cmp_gt_f32 vcc, v{T}, v{vM}')
            A(f's_cbranch_vccnz L_resc{name}')
            A(f'L_back{name}:')
            for n in range(4): A(f'v_fma_f32 v{S+n}, v{S+n}, s{sLog2e}, v{vML}')
            for n in range(4): A(f'v_exp_f32 v{S+n}, v{S+n}')
            A(f'v_add_f32 v{T}, v{S}, v{S+1}')
            A(f'v_add_f32 v{T2}, v{S+2}, v{S+3}')
            for n in range(4): A(f'v_cvt_pk_bf16_f32 v{S+n}, v{S+n}, v{S+n}')
            A(f'v_add_f32 v{T}, v{T}, v{T2}')
            A(f'v_add_f32 v{vL}, v{vL}, v{T}')
        def masks():
            for n in range(4): mkA(AF + 4*n, S + n)
        def pv():
            for n in range(4):
                A(f'v_mfma_f32_16x16x32_bf16 {v4(acc)}, {v4(AF+4*n)}, {v4(buf+4*n)}, {v4(acc)}')
        return soft, masks, pv
    def resc(name):
        A(f'L_resc{name}:')
        A(f'v_max_f32 v{T}, v{T}, v{vM}')
        xor16('v_max_f32', T, T2)
        xor32('v_max_f32', T, T2)
        A(f'v_sub_f32 v{T2}, v{vM}, v{T}')
        A(f'v_mul_f32 v{T2}, s{sLog2e}, v{T2}')
        A(f'v_exp_f32 v{T2}, v{T2}')
        A(f'v_mov_b32 v{vM}, v{T}')
        A(f'v_mul_f32 v{vML}, s{sNLog2e}, v{T}')
        A(f'v_mul_f32 v{vL}, v{vL}, v{T2}')
        A(f'v_readlane_b32 s{sF0}, v{T2}, 0')
        A(f'v_readlane_b32 s{sF1}, v{T2}, 8')
        A(f'v_mov_b32 v{T}, s{sF0}')
        A(f'v_mov_b32 v{T2}, s{sF1}')
        A(f'v_cndmask_b32 v{T}, v{T}, v{T2}, s[{sHi}:{sHi+1}]')
        for r in range(4): A(f'v_mul_f32 v{acc+r}, v{acc+r}, v{T}')
        A(f's_branch L_back{name}')
    def q_addr():
        A('v_bfe_u32 v1, v0, 3, 1')
        A('v_lshlrev_b32 v1, 8, v1')
        A('v_and_b32 v2, 3, v0')
        A('v_lshl_add_u32 v1, v2, 6, v1')
        A('v_lshrrev_b32 v2, 4, v0')
        A('v_lshl_add_u32 v1, v2, 4, v1')

    A(f'{KNAME}:')
    A('s_cmp_ge_u32 s2, 256')
    A('s_cbranch_scc1 L_end')
    A('s_load_dwordx16 s[4:19], s[0:1], 0')
    A('s_load_dwordx8 s[20:27], s[0:1], 64')
    if codepf & 1:
        A(f's_cmp_ge_u32 s2, {PFW}')
        A('s_cbranch_scc1 L_nopf')
        A(f's_getpc_b64 s[{sP}:{sP+1}]')
        A('v_lshlrev_b32 v1, 4, v0')
        A('v_add_u32 v2, 6144, v1')
        A('v_add_u32 v3, 12288, v1')
        for i in range(3): A(f'global_load_dwordx4 v[224:227], v{1+i}, s[{sP}:{sP+1}]')
        A('L_nopf:')
    A('v_lshrrev_b32 v1, 6, v0')
    A('v_and_b32 v0, 63, v0')
    A(f'v_readfirstlane_b32 s{sWave}, v1')
    A('v_and_b32 v1, 15, v0')
    A('v_and_b32 v2, 12, v0')
    A('v_cmp_eq_u32 vcc, 4, v2')
    A('v_lshlrev_b32 v1, 2, v1')
    A('v_cndmask_b32 v2, 0, -1, vcc')
    A(f'ds_write_b32 v1, v2 offset:{L_TAG}')
    A(f's_lshr_b32 s{sG}, s2, 3')
    A(f's_and_b32 s{sJ}, s2, 7')
    A(f's_lshr_b32 s{sB}, s2, 7')
    A(f's_and_b32 s{sH}, s{sG}, 15')
    roles()
    if stamps:
        for i in range(10): A(f's_mov_b32 s{sSt+2+i}, 0')
    A(f's_mov_b32 s{sSpin}, 0x100000')
    assert L_N == L_TAG + 16
    vLI, vLL, vLN = 10, 11, 12
    vTk = [20, 21, 22, 23, 24, 25]
    sRow, sPh, sC, sQp, sNL, sNP, sLim = sXoff, sAoff, sA, sAP, sAML, sEnt, sLnd
    A(f'v_bfe_u32 v{vKoff}, v0, 2, 2')
    A(f'v_lshlrev_b32 v{vKoff}, 13, v{vKoff}')
    A('v_and_b32 v1, 3, v0')
    A(f'v_lshl_add_u32 v{vKoff}, v1, 6, v{vKoff}')
    A('v_lshrrev_b32 v1, 4, v0')
    A(f'v_lshl_add_u32 v{vKoff}, v1, 4, v{vKoff}')
    A(f'v_lshlrev_b32 v{vVoff}, 13, v1')
    A('v_and_b32 v1, 15, v0')
    A(f'v_lshl_add_u32 v{vVoff}, v1, 4, v{vVoff}')
    A(f'v_mov_b32 v{vLI}, v{vKoff}')
    A('v_mov_b32 v1, 0')
    A(f'v_mov_b32 v{vLL}, {-LAG}')
    A(f's_mov_b32 s{sSeq}, 0')
    A(f's_mov_b32 s{sSlot}, 0')
    A(f's_lshl_b32 s{sRow}, s{sJ}, 9')
    A(f's_mov_b32 s{sPh}, 0')
    sBst = 101
    if HB:
        heavy(sT1)
        A(f's_cselect_b32 s{sBst}, 0, {HB}')
    A(f's_lshl_b32 s{sT1}, s{sG}, 23')
    A(f's_mov_b32 s{rI+2}, {1 << 23}')
    A(f's_mov_b32 s{rI+3}, 0x20000')
    A(f's_cmp_eq_u32 s{sRole}, 1')
    A(f's_cselect_b32 s{sCnt}, {NR - LF}, {NR}')
    A('s_waitcnt lgkmcnt(0)')
    A('s_barrier')
    A(f's_cmp_eq_u32 s{sWave}, 1')
    A('s_cbranch_scc1 L_side')
    A(f's_cmp_lg_u32 s{sWave}, 0')
    A('s_cbranch_scc1 L_cons')

    def gu_srds():
        A(f's_lshl_b32 s{sT2}, s{sUnit}, 7')
        mk_srd(rA, sWG, sT2, f's_sub_u32 s{rA+2}, {576*9216}, s{sT2}')
        mk_srd(rB, sWU, sT2, f's_sub_u32 s{rB+2}, {576*9216}, s{sT2}')
    def pub_landed():
        A(f'ds_write_b32 v1, v{vLL} offset:{L_LND}')
        A(f'v_add_u32 v{vLL}, 1, v{vLL}')
    def marks_read():
        A(f'ds_read_b128 {v4(vLN)}, v1 offset:{L_N}')
    def room(name, ntiles):
        A(f's_sub_u32 s{sT0}, s{sSeq}, {33 - ntiles}')
        A(f's_cmp_lt_i32 s{sT0}, 0')
        A(f's_cbranch_scc1 {name}_ok')
        A(f'{name}_chk:')
        A('s_waitcnt lgkmcnt(0)')
        A(f'v_min3_i32 v{vLN}, v{vLN}, v{vLN+1}, v{vLN+2}')
        A(f'v_min_i32 v{vLN}, v{vLN}, v{vLN+3}')
        A(f'v_cmp_gt_i32 vcc, s{sT0}, v{vLN}')
        A(f's_cbranch_vccnz {name}_wait')
        A(f'{name}_ok:')
        marks_read()
    def room_wait(name):
        A(f'{name}_wait:')
        A(f's_sub_u32 s{sSpin}, s{sSpin}, 1')
        A(f's_cmp_le_i32 s{sSpin}, 0')
        A(f's_cbranch_scc1 {name}_ok')
        marks_read()
        A(f's_branch {name}_chk')
    A('s_setprio 3')
    A(f's_add_u32 s{rI}, s{sK}, s{sT1}')
    A(f's_addc_u32 s{rI+1}, s{sK+1}, 0')
    stamp(0)
    A(f's_cmp_lg_u32 s{sRole}, 1')
    A('s_cbranch_scc1 L_ld_row')
    gu_srds()
    off8(3, 9216)
    A(f's_mov_b32 s{sOff}, 0')
    A('L_sw:')
    A(f'ds_read_b32 v2, v1 offset:{L_SF}')
    A('s_waitcnt lgkmcnt(0)')
    A('v_cmp_eq_u32 vcc, 0, v2')
    spin_check('L_sw', 'L_sw')
    marks_read()
    A('L_ld_f:')
    room('L_rf', 1)
    A(f's_add_u32 s{sOff2}, s{sOff}, {8*9216}')
    for n in range(4):
        A(f's_add_u32 m0, s{sSlot}, {L_KV + n*1024}')
        A(f's_waitcnt vmcnt({W-1})')
        A(f'buffer_load_dwordx4 v3, {srd(rB if n & 1 else rA)}, s{sOff if n < 2 else sOff2} offen {wflags} lds')
        if n == KPUB: pub_landed()
    A(f's_add_u32 s{sOff}, s{sOff}, {16*9216}')
    A(f's_add_u32 s{sSlot}, s{sSlot}, 4096')
    A(f's_and_b32 s{sSlot}, s{sSlot}, 0x1ffff')
    A(f's_add_u32 s{sSeq}, s{sSeq}, 1')
    A(f's_cmp_lt_u32 s{sSeq}, 36')
    A('s_cbranch_scc1 L_ld_f')
    def tile(srdr, voff, slot_add, boost=0, fill=None):
        for n in range(4):
            A(f's_add_u32 m0, s{sSlot}, {L_KV + slot_add + n*1024 - IOFF[n]}')
            A(f's_waitcnt vmcnt({W-1+boost})')
            A(f'buffer_load_dwordx4 v{voff}, {srd(srdr)}, s{sOff if n < 2 else sOff2} offen offset:{IOFF[n]} {kvflags} lds')
            if n == KPUB + boost: pub_landed()
            if fill and fill[n]: fill[n]()
    A('L_ld_row:')
    if stamps:
        for idx, val in ((4, 32), (5, 40), (6, 64), (1, 16)):
            A(f's_cmp_lg_u32 s{sSeq}, {val}')
            A(f's_cbranch_scc1 L_ns_{idx}')
            stamp(idx)
            A(f'L_ns_{idx}:')
    room('L_rr', 4)
    if HB:
        A(f's_cmp_lt_u32 s{sSeq}, s{sBst}')
        A('s_cbranch_scc1 L_ld_rowB')
    for boost in range(2 if HB else 1):
        if boost:
            A('s_branch L_ld_rowE')
            A('L_ld_rowB:')
        for a in range(4):
            A(f's_add_u32 s{sOff}, s{sRow}, {a << 15}')
            A(f's_add_u32 s{sOff2}, s{sRow}, {(a << 15) + 4096}')
            tile(rI, vLI, a*4096, boost)
    A('L_ld_rowE:')
    A(f's_add_u32 s{sRow}, s{sRow}, {1 << 17}')
    A(f's_add_u32 s{sSlot}, s{sSlot}, 16384')
    A(f's_and_b32 s{sSlot}, s{sSlot}, 0x1ffff')
    A(f's_add_u32 s{sSeq}, s{sSeq}, 4')
    A(f's_sub_u32 s{sCnt}, s{sCnt}, 1')
    A(f's_cmp_gt_u32 s{sCnt}, 2')
    A('s_cbranch_scc1 L_ld_row')
    A(f's_cmp_lg_u32 s{sPh}, 0')
    A('s_cbranch_scc1 L_ld_edgeV')
    A(f's_cmp_lg_u32 s{sCnt}, 0')
    A('s_cbranch_scc1 L_ld_row')
    stamp(8)
    A(f's_lshl_b32 s{sT1}, s{sG}, 23')
    A(f's_mov_b64 s[{sKb}:{sKb+1}], s[{rI}:{rI+1}]')
    A(f's_add_u32 s{rI}, s{sV}, s{sT1}')
    A(f's_addc_u32 s{rI+1}, s{sV+1}, 0')
    A(f'v_mov_b32 v{vLI}, v{vVoff}')
    A(f's_lshl_b32 s{sRow}, s{sJ}, 9')
    A(f's_mov_b32 s{sPh}, 1')
    A(f's_cmp_eq_u32 s{sRole}, 1')
    A(f's_cselect_b32 s{sCnt}, {NR - LF}, {NR}')
    A('s_branch L_ld_row')
    A('L_ld_edgeV:')
    A(f's_cmp_eq_u32 s{sCnt}, 1')
    A('s_cbranch_scc1 L_ld_row')
    A(f's_cmp_eq_u32 s{sCnt}, 0')
    A('s_cbranch_scc1 L_ld_pool')
    mk_srd(rWS, sWSP, None, WS_SIZE)
    A(f's_mul_i32 s{sF1}, s{sG}, {CNT_STRIDE}')
    A(f's_add_u32 s{sF1}, s{sF1}, {WS_CNT}')
    A('s_mov_b64 exec, 1')
    A(f'v_mov_b32 v{vTk[0]}, {PS*(TD + 1)}')
    A(f'buffer_atomic_add v{vTk[0]}, off, {srd(rWS)}, s{sF1} sc0')
    A('s_mov_b64 exec, -1')
    heavy(sT1)
    A(f's_cselect_b32 s{sNL}, {8*LF}, {12*LF}')
    A(f's_add_u32 s{sNP}, s{sNL}, {NPB}')
    A(f's_mov_b32 s{sT1}, 0')
    A(f's_cmp_eq_u32 s{sRole}, 1')
    A(f's_cselect_b32 s{sT1}, {THF}, s{sT1}')
    A(f's_mov_b32 s{sQp}, {8*NR}')
    A(f's_cselect_b32 s{sQp}, {8*(NR - LF)}, s{sQp}')
    A(f's_cmp_eq_u32 s{sRole}, 3')
    A(f's_cselect_b32 s{sT1}, {THO}, s{sT1}')
    A(f's_sub_u32 s{sLim}, s{sNP}, s{sT1}')
    A(f's_mov_b32 s{sC}, 0')
    A('s_branch L_ld_row')
    room_wait('L_rf')
    room_wait('L_rr')
    A('L_ld_pool:')
    stamp(9)
    mk_srd(rWS, sWSP, None, WS_SIZE)
    A(f's_mov_b64 s[{rV}:{rV+1}], s[{rI}:{rI+1}]')
    A(f's_mov_b32 s{rV+2}, {1 << 23}')
    A(f's_mov_b32 s{rV+3}, 0x20000')
    A(f's_mov_b64 s[{rI}:{rI+1}], s[{sKb}:{sKb+1}]')
    sOffN = sRow
    def rdtk(i, name):
        A(f'v_readfirstlane_b32 s{sCnt}, v{vTk[i]}')
        A(f's_cmp_ge_u32 s{sCnt}, {TBASE}')
        A(f's_cbranch_scc1 {name}')
        A('s_waitcnt vmcnt(0)')
        A(f'v_readfirstlane_b32 s{sCnt}, v{vTk[i]}')
        A(f'{name}:')
        A(f's_sub_u32 s{sCnt}, s{sCnt}, {TBASE}')
    def take(i, name):
        rdtk(i, name + 'r')
        A(f'v_mov_b32 v{vTk[i]}, 0x10000')
        A(f's_cmp_ge_u32 s{sCnt}, s{sLim}')
        A(f's_cbranch_scc1 {name}')
        A('s_mov_b64 exec, 1')
        A(f'v_mov_b32 v{vTk[i]}, {PS}')
        A(f'buffer_atomic_add v{vTk[i]}, off, {srd(rWS)}, s{sF1} sc0')
        A('s_mov_b64 exec, -1')
        A(f'{name}:')
    def dec1():
        A(f's_lshr_b32 s{sT2}, s{sCnt}, 2')
        A(f's_lshr_b32 s{sF0}, s{sT2}, {2 if LF == 4 else 3}')
        A(f's_add_u32 s{sF0}, s{sF0}, s{sG}')
        A(f's_add_u32 s{sF0}, s{sF0}, 1')
        A(f's_and_b32 s{sF0}, s{sF0}, 7')
        A(f's_and_b32 s{sT2}, s{sT2}, {LF - 1}')
        A(f's_add_u32 s{sT2}, s{sT2}, {NR - LF}')
        A(f's_lshl_b32 s{sT2}, s{sT2}, 3')
    def dec2():
        A(f's_add_u32 s{sF0}, s{sF0}, s{sT2}')
        A(f's_sub_u32 s{sT2}, s{sCnt}, s{sNL}')
        A(f's_lshr_b32 s{sT2}, s{sT2}, 2')
        A(f's_add_u32 s{sT2}, s{sT2}, {NR*8}')
        A(f's_cmp_lt_u32 s{sCnt}, s{sNL}')
        A(f's_cselect_b32 s{sT2}, s{sF0}, s{sT2}')
        A(f's_and_b32 s{sF0}, s{sT2}, 7')
        A(f's_lshl_b32 s{sF0}, s{sF0}, 9')
    def dec3():
        A(f's_lshr_b32 s{sT2}, s{sT2}, 3')
        A(f's_lshl_b32 s{sT2}, s{sT2}, 17')
        A(f's_add_u32 s{sOffN}, s{sT2}, s{sF0}')
        A(f's_and_b32 s{sT1}, s{sCnt}, 3')
        A(f's_lshl_b32 s{sT1}, s{sT1}, 15')
        A(f's_add_u32 s{sOffN}, s{sOffN}, s{sT1}')
    sPrev, sWp = sPh, sBst
    def entry(isv):
        A(f's_lshl_b32 s{sT1}, s{sSeq}, 16')
        A(f's_add_u32 s{sT1}, s{sT1}, {63*64 + 1 + 2*isv}')
        A(f'v_mov_b32 v4, s{sT1}')
        if isv:
            A(f'v_mov_b32 v6, s{sWp}')
        else:
            A(f's_lshl_b32 s{sT1}, s{sC}, 10')
            A(f's_add_u32 s{sP}, s{sT1}, s{sQp}')
            A(f'v_mov_b32 v6, s{sP}')
        A(f'ds_write_b32 v6, v4 offset:{L_EQ + 4*isv}')
        A(f's_add_u32 s{sSeq}, s{sSeq}, 1')
    def nextc():
        A(f's_add_u32 s{sC}, s{sC}, 1')
        A(f's_and_b32 s{sC}, s{sC}, 3')
        A(f's_cselect_b32 s{sT1}, 0, 8')
        A(f's_add_u32 s{sQp}, s{sQp}, s{sT1}')
    def ptile(isv, fill):
        for n in range(4):
            A(f's_add_u32 m0, s{sSlot}, {L_KV + n*1024 - IOFF[n]}')
            A(f's_waitcnt vmcnt({WP-1})')
            A(f'buffer_load_dwordx4 v{vVoff if isv else vKoff}, {srd(rV if isv else rI)}, s{sOff if n < 2 else sOff2} offen offset:{IOFF[n]} {kvflags} lds')
            if n == (WP - 1) % 4: pub_landed()
            for f in fill[n]: f()
        A(f's_add_u32 s{sSlot}, s{sSlot}, 4096')
        A(f's_and_b32 s{sSlot}, s{sSlot}, 0x1ffff')
    def setoff(src):
        A(f's_mov_b32 s{sOff}, s{src}')
        A(f's_add_u32 s{sOff2}, s{src}, 4096')
    def advance(pos, name):
        if pos % PS: A(f's_add_u32 s{sCnt}, s{sCnt}, 1')
        else: take((pos // PS) % TD, name)
    def keep():
        A(f's_mov_b32 s{sPrev}, s{sOff}')
    if LAGP != LAG: A(f'v_subrev_u32 v{vLL}, {LAGP - LAG}, v{vLL}')
    rdtk(0, 'L_pl_r0')
    for i in range(1, TD): A(f'v_add_u32 v{vTk[i]}, {PS*i}, v{vTk[0]}')
    A(f'v_add_u32 v{vTk[0]}, {PS*TD}, v{vTk[0]}')
    dec1(); dec2(); dec3()
    room('L_rq', 3)
    A(f's_cmp_ge_u32 s{sCnt}, s{sNP}')
    A('s_cbranch_scc1 L_pl_done')
    setoff(sOffN)
    ptile(0, [[lambda: entry(0), nextc], [lambda: advance(1, 'L_pl_na'), dec1], [dec2], [dec3]])
    A(f's_mov_b32 s{sPrev}, s{sOff}')
    A(f's_mov_b32 s{sWp}, s{sP}')
    A('L_pl:')
    NPOS = PS * TD
    for i in range(NPOS):
        A(f's_cmp_ge_u32 s{sCnt}, s{sNP}')
        A('s_cbranch_scc1 L_pl_last')
        setoff(sOffN)
        ptile(0, [[lambda: entry(0)], [nextc], [lambda: room(f'L_rp{i}', 3)], [lambda: advance(i + 2, f'L_pl_na{i}')]])
        A(f's_mov_b32 s{sOff2}, s{sPrev}')
        A(f's_mov_b32 s{sPrev}, s{sOff}')
        setoff(sOff2)
        ptile(1, [[lambda: entry(1)], [dec1], [dec2], [dec3]])
        A(f's_mov_b32 s{sWp}, s{sP}')
    A('s_branch L_pl')
    room_wait('L_rq')
    for i in range(NPOS): room_wait(f'L_rp{i}')
    A('L_pl_last:')
    setoff(sPrev)
    ptile(1, [[lambda: entry(1)], [], [], []])
    A('L_pl_done:')
    stamp(7)
    A(f'v_cmp_gt_u32 vcc, s{sC}, v0')
    A('v_cndmask_b32 v6, 0, 8, vcc')
    A('v_lshl_add_u32 v6, v0, 10, v6')
    A(f'v_add_u32 v6, s{sQp}, v6')
    A('v_mov_b32 v4, 5')
    A('s_mov_b64 exec, 15')
    A(f'ds_write_b32 v6, v4 offset:{L_EQ}')
    A('s_mov_b64 exec, -1')
    A(f's_bitcmp1_b32 s{sRole}, 0')
    A('s_cbranch_scc1 L_ld_slab')
    for i in range(LAGP, -1, -1):
        A(f's_waitcnt vmcnt({4*i})')
        pub_landed()
    A('s_waitcnt lgkmcnt(0)')
    stamp(2)
    A('s_barrier')
    endpgm()
    A('L_ld_slab:')
    slab_srd()
    off4(3, 1152)
    A(f'v_mov_b32 v2, s{sSlot}')
    A(f'ds_write_b32 v1, v2 offset:{L_SLB}')
    NPRE = LAGP + 1
    room('L_rs', NPRE)
    A(f's_mov_b32 s{sOff}, 0')
    for t in range(NPRE):
        for a in range(4):
            A(f's_add_u32 m0, s{sSlot}, {L_KV + a*1024 - a*256}')
            pre = t < NPRE - 1 or a <= KPUBP
            if pre: A(f's_waitcnt vmcnt({WP-1})')
            if pre and a == KPUBP: pub_landed()
            A(f'buffer_load_dwordx4 v3, {srd(rS)}, s{sOff} offen offset:{a*256} {wflags} lds')
        A(f's_add_u32 s{sOff}, s{sOff}, {4*1152}')
        A(f's_add_u32 s{sSlot}, s{sSlot}, 4096')
        A(f's_and_b32 s{sSlot}, s{sSlot}, 0x1ffff')
    A('s_waitcnt lgkmcnt(0)')
    stamp(2)
    A('s_barrier')
    A('s_waitcnt vmcnt(0)')
    stamp(3)
    A('s_barrier')
    endpgm()
    room_wait('L_rs')

    A('L_cons:')
    A(f's_sub_u32 s{sA}, s{sWave}, 2')
    A(f'v_mov_b32 v{vZero}, 0')
    A(f's_lshl_b32 s{sT0}, s{sA}, 10')
    A(f'v_lshl_add_u32 v1, v0, 2, s{sT0}')
    for i in range(4): A(f'ds_write_b32 v1, v{vZero} offset:{L_EQ + 256*i}')
    A(f's_cmp_eq_u32 s{sRole}, 1')
    A(f's_cselect_b32 s{sCnt}, {NR - LF}, {NR}')
    A(f's_cselect_b32 s{sT1}, 36, 0')
    A(f's_add_u32 s{sF0}, s{sT1}, s{sA}')
    A(f's_lshl_b32 s{sF0}, s{sF0}, 16')
    A(f's_add_u32 s{sF0}, s{sF0}, 1')
    A(f'v_lshl_add_u32 v2, v0, 18, s{sF0}')
    A('v_lshl_add_u32 v2, v0, 6, v2')
    A(f's_lshl_b32 s{sF0}, s{sCnt}, 18')
    A(f's_add_u32 s{sF0}, s{sF0}, 2')
    A(f'v_add_u32 v3, s{sF0}, v2')
    A(f's_lshl_b32 s{sF0}, s{sCnt}, 2')
    A(f'v_add_u32 v4, s{sF0}, v1')
    A(f'v_cmp_gt_u32 vcc, s{sCnt}, v0')
    A(f's_lshl_b32 s{sT1}, s{sA}, 2')
    A(f'v_mov_b32 v125, s{sT1}')
    A('s_mov_b64 exec, vcc')
    A(f'ds_write_b32 v1, v2 offset:{L_EQ}')
    A(f'ds_write_b32 v4, v3 offset:{L_EQ}')
    A('s_mov_b64 exec, -1')
    stamp(0)
    mk_srd(rWS, sWSP, None, WS_SIZE)
    consts()
    A(f'v_mov_b32 v{vM}, 0xff800000')
    A(f'v_mov_b32 v{vML}, 0')
    A(f'v_mov_b32 v{vL}, 0')
    for r in range(4): A(f'v_mov_b32 v{acc+r}, 0')
    A(f'v_lshrrev_b32 v{vXO}, 5, v0')
    A(f'v_lshlrev_b32 v{vXO}, 9, v{vXO}')
    A('v_and_b32 v2, 15, v0')
    A(f'v_lshl_add_u32 v{vXO}, v2, 5, v{vXO}')
    A('v_and_b32 v2, 16, v0')
    A(f'v_add_u32 v{vXO}, v{vXO}, v2')
    A(f's_lshl_b32 s{sT1}, s{sA}, 10')
    A(f'v_add_u32 v{vXO}, s{sT1}, v{vXO}')
    A(f'v_mov_b32 v{vTQ}, s{sT1}')
    A(f'v_and_b32 v{vXM}, 8, v0')
    A(f's_lshl_b32 s{sT1}, s{sA}, 4')
    A(f'v_add_u32 v{vXM}, s{sT1}, v{vXM}')
    A(f'v_and_b32 v{vSb}, 0x38, v0')
    A(f's_lshl_b32 s{sT1}, s{sA}, 12')
    A(f'v_add_u32 v{vSb}, s{sT1}, v{vSb}')
    A(f'v_lshlrev_b32 v{vL16}, 4, v0')
    role_pub(vPub)
    A(f's_lshl_b32 s{sT1}, s{sH}, 2')
    A(f's_add_u32 s{sT1}, s{sT1}, s{sB}')
    A(f's_lshl_b32 s{sT1}, s{sT1}, 3')
    A(f's_add_u32 s{sT1}, s{sT1}, s{sJ}')
    A(f's_lshl_b32 s{sAP}, s{sT1}, 9')
    A(f's_add_u32 s{sAP}, s{sAP}, {WS_AP}')
    A(f's_lshl_b32 s{sAML}, s2, 7')
    A(f's_add_u32 s{sAML}, s{sAML}, {WS_AML}')
    A(f'v_lshrrev_b32 v{vAPo}, 5, v0')
    A(f'v_lshlrev_b32 v{vAPo}, 13, v{vAPo}')
    A(f'v_and_b32 v2, 0x1f0, v{vL16}')
    A(f'v_add_u32 v{vAPo}, v{vAPo}, v2')
    A(f'v_lshrrev_b32 v{vOg}, 3, v0')
    A(f'v_lshlrev_b32 v{vXr}, 7, v{vOg}')
    A(f'v_lshlrev_b32 v{vOg}, 9, v{vOg}')
    A('v_and_b32 v2, 7, v0')
    A(f'v_lshl_add_u32 v{vOg}, v2, 4, v{vOg}')
    A(f'v_lshrrev_b32 v{vTw}, 4, v0')
    A(f'v_lshlrev_b32 v{vTw}, 8, v{vTw}')
    A(f'v_lshl_add_u32 v{vTw}, v2, 2, v{vTw}')
    A(f's_lshr_b32 s{sT1}, s{sA}, 1')
    A(f's_lshl_b32 s{sT1}, s{sT1}, 7')
    A(f's_and_b32 s{sT2}, s{sA}, 1')
    A(f's_lshl_b32 s{sT2}, s{sT2}, 5')
    A(f's_add_u32 s{sT1}, s{sT1}, s{sT2}')
    A(f'v_add_u32 v{vTw}, s{sT1}, v{vTw}')
    slab_srd()
    off4(vSlab, 1152)
    A(f's_lshl_b32 s{sT1}, s{sA}, 8')
    A(f'v_add_u32 v{vSlab}, s{sT1}, v{vSlab}')
    A(f's_mov_b32 s{sLnd}, 0')
    B0 = BUF[0]
    def landed(name, extra):
        A(f's_cmp_gt_i32 s{sLnd}, s{sSeq}')
        A(f's_cbranch_scc1 {name}_ok')
        A(f'{name}:')
        A(f'ds_read_b32 v8, v{vZero} offset:{L_LND}')
        A('s_waitcnt lgkmcnt(0)')
        A(f'v_readfirstlane_b32 s{sLnd}, v8')
        A(f's_cmp_gt_i32 s{sLnd}, s{sSeq}')
        A(f's_cbranch_scc1 {name}_ok')
        if csleep: A(f's_sleep {csleep}')
        A(f's_sub_u32 s{sSpin}, s{sSpin}, 1')
        A(f's_cmp_gt_i32 s{sSpin}, 0')
        A(f's_cbranch_scc1 {name}')
        A(f'{name}_ok:')
        for n in range(4): A(f'ds_read_b128 {v4(B0+4*n)}, v{vTa} offset:{L_KV + n*1024}')
        A(extra)
        A(f'v_mov_b32 v9, s{sSeq}')
        A('s_waitcnt lgkmcnt(1)')
        A(f'ds_write_b32 v125, v9 offset:{L_N}')
    NEXT = f'ds_read_b32 v{vTK}, v{vTQ} offset:{L_EQ}'
    A(f's_cmp_lg_u32 s{sRole}, 1')
    A('s_cbranch_scc1 L_noF')
    FA = 80
    for r in range(16): A(f'v_mov_b32 v{FA+r}, 0')
    A('v_lshrrev_b32 v1, 3, v0')
    A('v_mul_u32_u24 v1, 576, v1')
    A(f's_lshl_b32 s{sT1}, s{sA}, 4')
    A(f'v_add_u32 v1, s{sT1}, v1')
    A(f's_mov_b32 s{sSeq}, s{sA}')
    A('L_tw:')
    A('s_sleep 2')
    A(f'ds_read_b32 v8, v{vZero} offset:{L_TF}')
    A('s_waitcnt lgkmcnt(0)')
    A('v_cmp_eq_u32 vcc, 0, v8')
    spin_check('L_tw', 'L_tw')
    A('L_F:')
    A(f's_and_b32 s{sT1}, s{sSeq}, 31')
    A(f's_lshl_b32 s{sT1}, s{sT1}, 12')
    A(f'v_add_u32 v{vTa}, s{sT1}, v{vL16}')
    landed('L_lf', f'ds_read_b128 v[40:43], v1 offset:{L_T}')
    A('v_add_u32 v1, 64, v1')
    A('s_waitcnt lgkmcnt(1)')
    for uu in range(2):
        mkA(48, 40 + 2*uu)
        mkA(52, 41 + 2*uu)
        g = B0 + 8*uu
        A(f'v_mfma_f32_16x16x32_bf16 {v4(FA)}, v[48:51], {v4(g)}, {v4(FA)}')
        A(f'v_mfma_f32_16x16x32_bf16 {v4(FA+4)}, v[52:55], {v4(g)}, {v4(FA+4)}')
        A(f'v_mfma_f32_16x16x32_bf16 {v4(FA+8)}, v[48:51], {v4(g+4)}, {v4(FA+8)}')
        A(f'v_mfma_f32_16x16x32_bf16 {v4(FA+12)}, v[52:55], {v4(g+4)}, {v4(FA+12)}')
    A(f's_add_u32 s{sSeq}, s{sSeq}, 4')
    A(f's_cmp_lt_u32 s{sSeq}, 36')
    A('s_cbranch_scc1 L_F')
    def fp_addr(dst):
        A(f'v_lshrrev_b32 v{dst}, 4, v0')
        A(f'v_lshlrev_b32 v{dst}, 7, v{dst}')
        A('v_and_b32 v2, 7, v0')
        A(f'v_lshl_add_u32 v{dst}, v2, 4, v{dst}')
        A(f'v_add_u32 v{dst}, {L_FP}, v{dst}')
    fp_addr(1)
    A(f's_lshl_b32 s{sT1}, s{sA}, 10')
    A(f'v_add_u32 v1, s{sT1}, v1')
    for r in range(4):
        A(f'v_add_f32_dpp v{FA+r}, v{FA+4+r}, v{FA+r} row_ror:8 {DPP}')
        A(f'v_add_f32_dpp v{FA+8+r}, v{FA+12+r}, v{FA+8+r} row_ror:8 {DPP}')
    A(f's_mov_b64 exec, s[{sLo8}:{sLo8+1}]')
    A(f'ds_write_b128 v1, {v4(FA)}')
    A(f'ds_write_b128 v1, {v4(FA+8)} offset:512')
    A('s_mov_b64 exec, -1')
    A('v_mov_b32 v8, 1')
    A('s_waitcnt lgkmcnt(0)')
    A(f'ds_write_b32 v125, v8 offset:{L_FF}')
    A('L_noF:')
    q_addr()
    A('L_qw:')
    A('s_sleep 2')
    A(f'ds_read_b64 v[48:49], v{vZero} offset:{L_TAG}')
    A('s_waitcnt lgkmcnt(0)')
    A('v_cmp_eq_u32 vcc, 0, v49')
    spin_check('L_qw', 'L_qw')
    A(f'ds_read_b128 {v4(vQ)}, v1 offset:{L_Q}')
    A(f'v_readfirstlane_b32 s{sT1}, v48')
    mk_tags(sT1)
    A('v_lshrrev_b32 v1, 5, v0')
    A('v_lshlrev_b32 v1, 3, v1')
    stamp(1)
    A('L_cre:')
    A(f'ds_read_b32 v{vTK}, v{vTQ} offset:{L_EQ}')
    A('L_loop:')
    A('s_waitcnt lgkmcnt(0)')
    A(f'v_readfirstlane_b32 s{sEnt}, v{vTK}')
    A(f's_cmp_eq_u32 s{sEnt}, 0')
    A('s_cbranch_scc1 L_cw')
    A(f's_bitcmp1_b32 s{sEnt}, 2')
    A('s_cbranch_scc1 L_loop_done')
    A(f's_lshr_b32 s{sSeq}, s{sEnt}, 16')
    A(f's_and_b32 s{sT0}, s{sEnt}, 0xfc0')
    A(f'v_add_u32 v{vSa}, s{sT0}, v{vSb}')
    A(f's_and_b32 s{sT1}, s{sSeq}, 31')
    A(f's_lshl_b32 s{sT1}, s{sT1}, 12')
    A(f'v_add_u32 v{vTa}, s{sT1}, v{vL16}')
    A(f'v_add_u32 v{vTQ}, 4, v{vTQ}')
    A(f's_bitcmp1_b32 s{sEnt}, 1')
    A('s_cbranch_scc1 L_V')
    landed('L_lk', NEXT)
    for c in k_parts(B0): c()
    A('s_branch L_loop')
    A('L_V:')
    A(f'ds_read_b64 {v2(SCR)}, v{vSa} offset:{L_SC}')
    A('s_waitcnt lgkmcnt(0)')
    soft, masks, pv = v_parts(B0, '0')
    soft(); masks()
    landed('L_lv', NEXT)
    pv()
    A('s_branch L_loop')
    A('L_cw:')
    A('s_sleep 1')
    A(f's_sub_u32 s{sSpin}, s{sSpin}, 1')
    A(f's_cmp_gt_i32 s{sSpin}, 0')
    A('s_cbranch_scc1 L_cre')
    A('s_branch L_loop_done')
    resc('0')
    A('L_loop_done:')
    stamp(2)
    xor16('v_add_f32', vL, T)
    xor32('v_add_f32', vL, T)
    A(f'ds_write_b128 v{vXO}, {v4(acc)} offset:{L_XO}')
    A(f'v_mov_b32 v{vML}, v{vL}')
    A(f'ds_write_b64 v{vXM}, {v2(vM)} offset:{L_XM}')
    WOT = WOR + 64
    A('s_waitcnt lgkmcnt(0)')
    A('s_barrier')
    A(f's_cmp_lg_u32 s{sA}, 0')
    A('s_cbranch_scc1 L_att_nopub')
    for a in range(4): A(f'ds_read_b64 {v2(44+2*a)}, v1 offset:{L_XM + a*16}')
    for a in range(4): A(f'ds_read_b128 {v4(24+4*a)}, v{vL16} offset:{L_XO + a*1024}')
    A('s_waitcnt lgkmcnt(4)')
    A('v_max3_f32 v56, v44, v46, v48')
    A('v_max_f32 v56, v56, v50')
    for a in range(4): A(f'v_sub_f32 v{44+2*a}, v{44+2*a}, v56')
    for a in range(4): A(f'v_mul_f32 v{44+2*a}, s{sLog2e}, v{44+2*a}')
    for a in range(4): A(f'v_exp_f32 v{44+2*a}, v{44+2*a}')
    A('v_mov_b32 v58, v56')
    A('v_mul_f32 v57, v45, v44')
    for a in range(1, 4): A(f'v_fmac_f32 v57, v{45+2*a}, v{44+2*a}')
    A('v_permlane32_swap_b32 v56, v58')
    A('v_mov_b32 v59, v57')
    A('s_waitcnt lgkmcnt(0)')
    for r in range(4): A(f'v_mul_f32 v{24+r}, v{24+r}, v44')
    A('v_permlane32_swap_b32 v57, v59')
    for a in range(1, 4):
        for r in range(4): A(f'v_fmac_f32 v{24+r}, v{24+4*a+r}, v{44+2*a}')
    tagq(56, 56)
    publish(24, vAPo, sAP)
    A('s_mov_b64 exec, 0xff')
    A(f'buffer_store_dwordx4 v[56:59], v{vL16}, {srd(rWS)}, s{sAML} offen {stf}')
    A('s_mov_b64 exec, -1')
    A('L_att_nopub:')
    stamp(3)
    A(f's_bitcmp0_b32 s{sRole}, 0')
    A(f's_cbranch_scc1 {LEND}')
    A(f'ds_read_b32 v10, v{vZero} offset:{L_SLB}')
    A(f's_mov_b32 s{sOff}, {NPRE*4*1152}')
    for t in range(NPRE, 16):
        A(f'buffer_load_dwordx4 {v4(WOR+4*t)}, v{vSlab}, {srd(rS)}, s{sOff} offen {wflags}')
        if t < 15: A(f's_add_u32 s{sOff}, s{sOff}, {4*1152}')
    A(f's_cmp_lg_u32 s{sA}, 3')
    A('s_cbranch_scc1 L_notail')
    off8(8, 1152, 9)
    A(f's_mov_b32 s{sOff}, 1024')
    for u in range(8):
        A(f'buffer_load_dwordx4 {v4(WOT+4*u)}, v8, {srd(rS)}, s{sOff} offen {wflags}')
        if u < 7: A(f's_add_u32 s{sOff}, s{sOff}, {8*1152}')
    for r in range(8): A(f'v_mov_b32 v{56+r}, 0')
    A('L_notail:')
    for r in range(4): A(f'v_mov_b32 v{acc+r}, 0')
    A(f's_lshl_b32 s{sT1}, s{sA}, 10')
    A(f'v_add_u32 v9, s{sT1}, v{vL16}')
    A('s_waitcnt lgkmcnt(0)')
    A(f'v_readfirstlane_b32 s{sSlot}, v10')
    A('s_barrier')
    for t in range(NPRE):
        A(f'v_add_u32 v8, s{sSlot}, v9')
        A(f'ds_read_b128 {v4(WOR+4*t)}, v8 offset:{L_KV}')
        A(f's_add_u32 s{sSlot}, s{sSlot}, 4096')
        A(f's_and_b32 s{sSlot}, s{sSlot}, 0x1ffff')
    A(f's_cmp_lg_u32 s{sRole}, 1')
    A('s_cbranch_scc1 L_owner')
    A('s_waitcnt vmcnt(0)')
    stamp(6)
    A('s_branch L_proj')
    A('L_owner:')
    A(f's_lshr_b32 s{sT1}, s{sA}, 1')
    A(f's_lshl_b32 s{sT2}, s{sG}, 1')
    A(f's_add_u32 s{sT2}, s{sT2}, s{sT1}')
    A(f's_lshl_b32 s{sOff}, s{sT2}, 12')
    A(f's_and_b32 s{sCnt}, s{sA}, 1')
    A(f's_and_b32 s{sT0}, s{sUnit}, 1')
    A(f's_lshl_b32 s{sF0}, s{sT0}, 1')
    A(f's_add_u32 s{sF0}, s{sF0}, s{sCnt}')
    A(f's_lshl_b32 s{sF0}, s{sF0}, 7')
    A(f's_add_u32 s{sOff}, s{sOff}, s{sF0}')
    A(f's_add_u32 s{sOff}, s{sOff}, {WS_AP}')
    A(f's_lshl_b32 s{sT2}, s{sT1}, 4')
    A(f's_lshr_b32 s{sF0}, s{sG}, 1')
    A(f's_add_u32 s{sT2}, s{sT2}, s{sF0}')
    A(f's_lshl_b32 s{sT2}, s{sT2}, 10')
    A(f's_add_u32 s{sT2}, s{sT2}, {WS_AML}')
    A(f's_and_b32 s{sF0}, s{sG}, 1')
    A(f's_cselect_b64 s[{sP}:{sP+1}], -1, 0')
    A('L_own_poll:')
    A(f'buffer_load_dwordx4 v[28:31], v{vL16}, {srd(rWS)}, s{sT2} offen {ldf}')
    A(f'buffer_load_dwordx4 v[24:27], v{vOg}, {srd(rWS)}, s{sOff} offen {ldf}')
    A('s_waitcnt vmcnt(0)')
    check_tags(quads(24, 2), 32, 33, 'L_own_poll', 'L_own')
    stamp(4)
    A(f'v_cndmask_b32 v28, v28, v30, s[{sP}:{sP+1}]')
    A(f'v_cndmask_b32 v29, v29, v31, s[{sP}:{sP+1}]')
    A(f'v_max_f32_dpp v30, v28, v28 row_ror:8 {DPP}')
    xor16('v_max_f32', 30, 31)
    xor32('v_max_f32', 30, 31)
    A('v_sub_f32 v28, v28, v30')
    A(f'v_mul_f32 v28, s{sLog2e}, v28')
    A('v_exp_f32 v28, v28')
    A('v_mul_f32 v29, v29, v28')
    for r in range(4): A(f'v_mul_f32 v{24+r}, v{24+r}, v28')
    A(f'v_add_f32_dpp v29, v29, v29 row_ror:8 {DPP}')
    A('v_permlane32_swap_b32 v24, v26')
    A('v_permlane32_swap_b32 v25, v27')
    A('v_mov_b32 v31, v29')
    A('v_add_f32 v24, v24, v26')
    A('v_add_f32 v25, v25, v27')
    A('v_permlane16_swap_b32 v29, v31')
    A('v_add_f32 v29, v29, v31')
    A('v_permlane16_swap_b32 v24, v25')
    A('v_mov_b32 v31, v29')
    A('v_add_f32 v24, v24, v25')
    A('v_permlane32_swap_b32 v29, v31')
    A('v_add_f32 v29, v29, v31')
    A(f'v_add_f32_dpp v24, v24, v24 row_ror:8 {DPP}')
    A('v_rcp_f32 v29, v29')
    A('v_mul_f32 v24, v24, v29')
    A('v_cvt_pk_bf16_f32 v24, v24, v24')
    A(f'ds_write_b32 v{vTw}, v24 offset:{L_T2}')
    A('s_waitcnt lgkmcnt(0)')
    A('s_barrier')
    A('L_proj:')
    for q in range(4): A(f'ds_read_b128 {v4(24+4*q)}, v{vXr} offset:{L_T2 + q*16}')
    A(f's_cmp_eq_u32 s{sA}, 3')
    A('s_cbranch_scc1 L_proj3')
    for tail in (0, 1):
        if tail: A('L_proj3:')
        def pmf(t):
            A(f'v_mfma_f32_16x16x32_bf16 {v4(acc)}, {v4(40 + 4*(t&3))}, {v4(WOR+4*t)}, {v4(acc)}')
            if tail: A(f'v_mfma_f32_16x16x32_bf16 {v4(56 + 4*(t&1))}, {v4(40 + 4*(t&3))}, {v4(WOT+4*(t>>1))}, {v4(56 + 4*(t&1))}')
        for t in range(16):
            if t % 4 == 0: A(f's_waitcnt lgkmcnt({3 - t//4})')
            mkA(40 + 4*(t & 3), 24 + t)
            if t >= 1: pmf(t - 1)
        pmf(15)
        publish(acc, vPub, sPub)
        if tail:
            for r in range(4):
                A(f'v_add_f32_dpp v{56+r}, v{60+r}, v{56+r} row_ror:8 {DPP}')
            publish(56, vPub, sPub2, sLo8)
        stamp(5)
        endpgm()

    A('L_side:')
    A('s_setprio 3')
    if codepf & 4:
        A(f's_getpc_b64 s[{sP}:{sP+1}]')
        A('v_lshlrev_b32 v1, 4, v0')
        A('v_add_u32 v2, 4096, v1')
        for i in range(1, 6): A(f'global_load_dwordx4 v[224:227], v{1 + i//4}, s[{sP}:{sP+1}] offset:{(i&3)*1024}')
    XR = 24
    XF = 136
    WQ = 64
    A(f's_mov_b32 s{sA}, 4')
    A('v_lshrrev_b32 v1, 5, v0')
    A('v_mul_u32_u24 v1, 1152, v1')
    A('v_and_b32 v2, 31, v0')
    A('v_lshl_add_u32 v1, v2, 2, v1')
    off8(3, 8192)
    A(f's_lshl_b32 s{sT0}, s{sB}, 3')
    A(f's_add_u32 s{sT0}, s{sT0}, s{sJ}')
    A(f's_lshr_b32 s{sT1}, s{sT0}, 2')
    A(f's_add_u32 s{sT0}, s{sT0}, s{sH}')
    A(f's_lshr_b32 s{sT2}, s{sH}, 2')
    A(f's_add_u32 s{sT0}, s{sT0}, s{sT2}')
    A(f's_and_b32 s{sT0}, s{sT0}, 3')
    A(f's_mul_i32 s{sT2}, s{sT1}, {144*8192}')
    A(f's_lshl_b32 s{sOff}, s{sH}, 9')
    A(f's_add_u32 s{sT2}, s{sT2}, s{sOff}')
    A(f's_lshl_b32 s{sOff}, s{sT0}, 7')
    A(f's_add_u32 s{sT2}, s{sT2}, s{sOff}')
    A(f's_mul_i32 s{sXoff}, s{sG}, {CNT_STRIDE}')
    A(f's_add_u32 s{sXoff}, s{sXoff}, {WS_CNT}')
    A(f's_cmp_eq_u32 s{sJ}, 0')
    A(f's_cselect_b32 s{sCnt}, s{sXoff}, {WS_SIZE}')
    A('v_mov_b32 v35, 0')
    A('s_waitcnt lgkmcnt(0)')
    if dbgt or thr:
        A(f's_memrealtime s[{sSt}:{sSt+1}]')
        A('s_waitcnt lgkmcnt(0)')
        A(f's_mov_b32 s{sSt+4}, s{sSt}')
    mk_srd(rWS, sWSP, None, WS_SIZE)
    A(f'v_mov_b32 v36, {TBASE}')
    A(f'buffer_store_dword v36, off, {srd(rWS)}, s{sCnt} sc1')
    mk_srd(rB, sX, None, 2304)
    for n in range(9): A(f'buffer_load_dword v{XR+n}, v1, {srd(rB)}, 0 offen offset:{n*128}')
    A(f'buffer_load_dword v33, off, {srd(rWS)}, 0 {epf}')
    mk_srd(rA, sWQ, sT2, f's_sub_u32 s{rA+2}, {576*8192}, s{sT2}')
    A(f's_mov_b32 s{sOff}, 0')
    for u in range(18):
        A(f'buffer_load_dwordx4 {v4(WQ+4*u)}, v3, {srd(rA)}, s{sOff} offen {wflags}')
        if u < 17: A(f's_add_u32 s{sOff}, s{sOff}, 65536')
    A('v_mov_b32 v8, 1')
    A(f'ds_write_b32 v35, v8 offset:{L_SF}')
    stamp(0)
    consts()
    A('v_and_b32 v1, 1, v0')
    A('v_lshlrev_b32 v1, 2, v1')
    A('v_lshrrev_b32 v2, 5, v0')
    A('v_add_u32 v1, v1, v2')
    A('v_mul_u32_u24 v1, 576, v1')
    A('v_bfe_u32 v2, v0, 1, 4')
    A('v_lshl_add_u32 v1, v2, 2, v1')
    A('v_lshrrev_b32 v3, 3, v0')
    A('v_mul_u32_u24 v3, 576, v3')
    A(f's_mul_i32 s{sT2}, s{sT1}, 144')
    A(f'v_add_u32 v3, s{sT2}, v3')
    A('v_lshrrev_b32 v34, 5, v0')
    A('v_lshlrev_b32 v34, 12, v34')
    A('v_and_b32 v2, 7, v0')
    A('v_lshl_add_u32 v34, v2, 5, v34')
    A('v_and_b32 v2, 16, v0')
    A('v_add_u32 v34, v34, v2')
    A(f's_lshl_b32 s{sT2}, s{sH}, 13')
    A(f's_lshl_b32 s{sT1}, s{sT1}, 10')
    A(f's_add_u32 s{sT2}, s{sT2}, s{sT1}')
    A(f's_lshl_b32 s{sT0}, s{sT0}, 8')
    A(f's_add_u32 s{sT2}, s{sT2}, s{sT0}')
    A(f's_add_u32 s{sT2}, s{sT2}, {WS_QP}')
    A('s_waitcnt vmcnt(18)')
    stamp(1)
    A(f'v_readfirstlane_b32 s{sT0}, v33')
    A(f'ds_write_b32 v35, v33 offset:{L_TAG}')
    for n in range(9):
        A(f'v_lshlrev_b32 v{XF+2*n}, 16, v{XR+n}')
        A(f'v_and_b32 v{XF+2*n+1}, 0xffff0000, v{XR+n}')
    mk_tags(sT0)
    A(f'v_add_f32 v8, v{XF}, v{XF+1}')
    A(f'v_add_f32 v9, v{XF+2}, v{XF+3}')
    for i in range(4, 18, 2):
        A(f'v_add_f32 v8, v8, v{XF+i}')
        A(f'v_add_f32 v9, v9, v{XF+i+1}')
    A('v_add_f32 v8, v8, v9')
    row_sum16(8)
    xor16('v_add_f32', 8, 9)
    A(f'v_mul_f32 v8, {f32(1/576)}, v8')
    A(f'v_sub_f32 v12, v{XF}, v8')
    A(f'v_sub_f32 v13, v{XF+1}, v8')
    A('v_mul_f32 v10, v12, v12')
    A('v_mul_f32 v11, v13, v13')
    for i in range(2, 18, 2):
        A(f'v_sub_f32 v12, v{XF+i}, v8')
        A(f'v_sub_f32 v13, v{XF+i+1}, v8')
        A('v_fmac_f32 v10, v12, v12')
        A('v_fmac_f32 v11, v13, v13')
    A('v_add_f32 v10, v10, v11')
    row_sum16(10)
    xor16('v_add_f32', 10, 9)
    A(f'v_mul_f32 v10, {f32(1/576)}, v10')
    rnd_bf16(8, 8)
    rnd_bf16(10, 10)
    A(f'v_add_f32 v10, {f32(1e-5)}, v10')
    rnd_bf16(10, 10)
    A('v_sqrt_f32 v10, v10')
    rnd_bf16(10, 10)
    A('v_rcp_f32 v10, v10')
    for n in range(9):
        a, b = XF + 2*n, XF + 2*n + 1
        A(f'v_sub_f32 v{a}, v{a}, v8')
        A(f'v_sub_f32 v{b}, v{b}, v8')
        A(f'v_cvt_pk_bf16_f32 v{b}, v{a}, v{b}')
        A(f'v_lshlrev_b32 v{a}, 16, v{b}')
        A(f'v_and_b32 v{b}, 0xffff0000, v{b}')
        A(f'v_mul_f32 v{a}, v{a}, v10')
        A(f'v_mul_f32 v{b}, v{b}, v10')
        A(f'v_cvt_pk_bf16_f32 v{a}, v{a}, v{a}')
        A(f'v_cvt_pk_bf16_f32 v{b}, v{b}, v{b}')
        A(f'ds_write_b32 v1, v{a} offset:{L_T + n*64}')
        A(f'ds_write_b32 v1, v{b} offset:{L_T + 1152 + n*64}')
    A('v_mov_b32 v8, 1')
    A('s_waitcnt lgkmcnt(0)')
    A(f'ds_write_b32 v35, v8 offset:{L_TF}')
    for q in range(9): A(f'ds_read_b128 {v4(XF+4*q)}, v3 offset:{L_T + q*16}')
    for r in range(8): A(f'v_mov_b32 v{8+r}, 0')
    def qmf(u):
        b0 = 40 + 8*(u & 1)
        A(f'v_mfma_f32_16x16x32_bf16 v[8:11], {v4(b0)}, {v4(WQ+4*u)}, v[8:11]')
        A(f'v_mfma_f32_16x16x32_bf16 v[12:15], {v4(b0+4)}, {v4(WQ+4*u)}, v[12:15]')
    for u in range(18):
        if u % 2 == 0: A(f's_waitcnt lgkmcnt({8 - u//2})')
        b0 = 40 + 8*(u & 1)
        mkA(b0, XF + 2*u)
        mkA(b0 + 4, XF + 2*u + 1)
        if u >= 1:
            if (u - 1) % 6 == 0: A(f's_waitcnt vmcnt({12 - (u-1)})')
            qmf(u - 1)
    qmf(17)
    for r in range(4):
        A(f'v_add_f32_dpp v{8+r}, v{12+r}, v{8+r} row_ror:8 {DPP}')
    publish(8, 34, sT2, sLo8)
    stamp(2)
    mk_srd(rO, sOUT, None, 2304)
    A(f's_lshl_b32 s{sT2}, s{sH}, 1')
    A(f's_add_u32 s{sT2}, s{sT2}, s{sB}')
    A(f's_lshl_b32 s{sT2}, s{sT2}, 12')
    A(f's_add_u32 s{sT2}, s{sT2}, {WS_QP}')
    A('v_lshlrev_b32 v1, 4, v0')
    A('v_lshlrev_b32 v3, 3, v0')
    if qsleep:
        A('s_waitcnt vmcnt(0)')
        A(f's_sleep {qsleep}')
    A('L_q_poll:')
    if qsleep2: A(f's_sleep {qsleep2}')
    for i in range(4):
        A(f'buffer_load_dwordx4 {v4(64+4*i)}, v1, {srd(rWS)}, s{sT2} offen offset:{i*1024} {ldf}')
    A('s_waitcnt vmcnt(0)')
    check_tags(quads(64, 4), 8, 9, 'L_q_poll', 'L_q')
    for i in range(16): A(f'v_and_b32 v{64+i}, -16, v{64+i}')
    for r in range(4):
        A(f'v_add_f32 v{64+r}, v{64+r}, v{68+r}')
        A(f'v_add_f32 v{72+r}, v{72+r}, v{76+r}')
    for r in range(4): A(f'v_add_f32 v{64+r}, v{64+r}, v{72+r}')
    A('v_cvt_pk_bf16_f32 v8, v64, v65')
    A('v_cvt_pk_bf16_f32 v9, v66, v67')
    A(f'ds_write_b64 v3, v[8:9] offset:{L_Q}')
    A('s_waitcnt lgkmcnt(0)')
    A('v_mov_b32 v8, 1')
    A(f'ds_write_b32 v35, v8 offset:{L_TAG + 4}')
    stamp(3)
    A(f's_cmp_lg_u32 s{sRole}, 1')
    A('s_cbranch_scc1 L_sdone')
    A('s_setprio 0')
    FA = 16
    fp_addr(3)
    A('L_fw:')
    A('s_sleep 4')
    A(f'ds_read_b128 v[8:11], v35 offset:{L_FF}')
    A('s_waitcnt lgkmcnt(0)')
    A('v_min3_u32 v8, v8, v9, v10')
    A('v_min_u32 v8, v8, v11')
    A('v_cmp_eq_u32 vcc, 0, v8')
    spin_check('L_fw', 'L_fw')
    for c in range(4):
        A(f'ds_read_b128 {v4(64+8*c)}, v3 offset:{c*1024}')
        A(f'ds_read_b128 {v4(68+8*c)}, v3 offset:{c*1024 + 512}')
    A('s_waitcnt lgkmcnt(0)')
    for m in range(2):
        for r in range(4):
            A(f'v_add_f32 v{64+4*m+r}, v{64+4*m+r}, v{72+4*m+r}')
            A(f'v_add_f32 v{80+4*m+r}, v{80+4*m+r}, v{88+4*m+r}')
            A(f'v_add_f32 v{FA+8*m+r}, v{64+4*m+r}, v{80+4*m+r}')
    A('v_lshrrev_b32 v1, 5, v0')
    A('v_lshlrev_b32 v1, 7, v1')
    A('v_and_b32 v2, 7, v0')
    A('v_lshl_add_u32 v1, v2, 3, v1')
    A('v_bfe_u32 v2, v0, 4, 1')
    A('v_lshl_add_u32 v1, v2, 2, v1')
    for r in range(4):
        rnd_bf16(FA+r, FA+r)
        rnd_bf16(FA+8+r, FA+8+r)
        silu(FA+r, FA+r, FA+4+r)
        rnd_bf16(FA+r, FA+r)
        A(f'v_mul_f32 v{FA+r}, v{FA+r}, v{FA+8+r}')
        A(f'v_cvt_pk_bf16_f32 v{FA+r}, v{FA+r}, v{FA+r}')
    A(f's_mov_b64 exec, s[{sLo8}:{sLo8+1}]')
    for r in range(4): A(f'ds_write_b32 v1, v{FA+r} offset:{L_T2 + r*256}')
    A('s_mov_b64 exec, -1')
    A('L_sdone:')
    A('s_waitcnt lgkmcnt(0)')
    stamp(4)
    A(f's_cmp_lg_u32 s{sRole}, 2')
    A(f's_cbranch_scc1 {LEND}')
    A('s_setprio 3')
    A('L_red:')
    mk_srd(rB, sX, None, 2304)
    A('v_and_b32 v18, 3, v0')
    A('v_lshlrev_b32 v18, 2, v18')
    A('v_lshrrev_b32 v2, 4, v0')
    A('v_add_lshl_u32 v18, v18, v2, 1')
    A(f's_lshl_b32 s{sCnt}, s{sUnit}, 5')
    A(f'buffer_load_ushort v19, v18, {srd(rB)}, s{sCnt} offen')
    A(f's_lshr_b32 s{sT1}, s{sUnit}, 1')
    A(f's_and_b32 s{sT2}, s{sUnit}, 1')
    A(f's_lshl_b32 s{sT2}, s{sT2}, 6')
    A(f's_mul_i32 s{sOff}, s{sT1}, {72*128}')
    A(f's_add_u32 s{sOff}, s{sOff}, s{sT2}')
    A(f's_add_u32 s{sOff}, s{sOff}, {WS_DP}')
    A(f's_lshl_b32 s{sT1}, s{sT1}, 13')
    A(f's_add_u32 s{sT1}, s{sT1}, s{sT2}')
    A(f's_add_u32 s{sT1}, s{sT1}, {WS_SP}')
    A('v_lshrrev_b32 v1, 2, v0')
    A('v_lshlrev_b32 v1, 7, v1')
    A('v_and_b32 v2, 3, v0')
    A('v_lshl_add_u32 v1, v2, 4, v1')
    A('v_add_u32 v2, 4096, v1')
    A('v_and_b32 v3, 0x3ff, v1')
    A('v_add_u32 v3, 8192, v3')
    A(f's_mov_b32 s{sP}, 0x000f000f')
    A(f's_mov_b32 s{sP+1}, 0x000f000f')
    A('s_barrier')
    def sum_red(b, n):
        for r in range(4):
            A(f'v_add_f32 v{b+r}, v{b+r}, v{b+4+r}')
            A(f'v_add_f32 v{b+8+r}, v{b+8+r}, v{b+12+r}')
        if n == 5:
            for r in range(4): A(f'v_add_f32 v{b+r}, v{b+r}, v{b+16+r}')
        for r in range(4): A(f'v_add_f32 v{b+r}, v{b+r}, v{b+8+r}')
        rscatter4(b)
        A(f'v_add_f32_dpp v{b}, v{b}, v{b} row_ror:4 {DPP}')
        A(f'v_add_f32_dpp v{b}, v{b}, v{b} row_ror:8 {DPP}')
    def sp_loads():
        for i in range(4):
            A(f'buffer_load_dwordx4 {v4(64+4*i)}, v{1 + i//2}, {srd(rWS)}, s{sT1} offen offset:{(i&1)*2048} {ldf}')
    A('L_dp_poll:')
    for i in range(5):
        A(f'buffer_load_dwordx4 {v4(84+4*i)}, v{1 + i//2}, {srd(rWS)}, s{sOff} offen offset:{(i&1)*2048} {ldf}')
    sp_loads()
    A('s_waitcnt vmcnt(4)')
    check_tags(quads(84, 5), 8, 9, 'L_dp_poll', 'L_dp')
    for r in range(4): A(f'v_cndmask_b32 v{100+r}, v{100+r}, 0, s[{sHi}:{sHi+1}]')
    sum_red(84, 5)
    rnd_bf16(24, 84)
    silu(24, 24, 26)
    rnd_bf16(24, 24)
    A('v_lshlrev_b32 v26, 16, v19')
    stamp(5)
    A('s_branch L_sp_chk')
    A('L_sp_poll:')
    sp_loads()
    A('L_sp_chk:')
    A('s_waitcnt vmcnt(0)')
    check_tags(quads(64, 4), 8, 9, 'L_sp_poll', 'L_sp')
    stamp(6)
    sum_red(64, 4)
    rnd_bf16(28, 64)
    A('v_mul_f32 v28, v28, v24')
    rnd_bf16(28, 28)
    A('v_add_f32 v28, v28, v26')
    if thr:
        A(f's_memrealtime s[{sSt}:{sSt+1}]')
        A('s_waitcnt lgkmcnt(0)')
        A(f's_sub_u32 s{sSt}, s{sSt}, s{sSt+2}')
        A(f's_cmp_lt_u32 s{sSt}, {thr}')
        A('s_cbranch_scc1 L_thr')
        A(f's_sub_u32 s{sSt}, s{sSt}, 7000')
        A(f's_sub_u32 s{sSt+4}, s{sSt+4}, s{sSt+2}')
        A(f's_sub_u32 s{sSt+5}, s{sSt+5}, s{sSt+2}')
        A(f'v_cvt_f32_u32 v28, s{sSt}')
        A(f'v_cvt_f32_u32 v29, s{sSt+4}')
        A(f'v_cvt_f32_u32 v30, s{sSt+5}')
        A('v_cmp_gt_u32 vcc, 16, v0')
        A('v_cndmask_b32 v28, v29, v28, vcc')
        A('v_cmp_gt_u32 vcc, 32, v0')
        A('v_cndmask_b32 v28, v30, v28, vcc')
        A('L_thr:')
    A('v_cvt_pk_bf16_f32 v28, v28, v28')
    A(f's_mov_b64 exec, s[{sP}:{sP+1}]')
    A(f'buffer_store_short v28, v18, {srd(rO)}, s{sCnt} offen {outf}')
    if dbgt:
        A(f's_memrealtime s[{sSt}:{sSt+1}]')
        A('s_mov_b64 exec, 1')
        A('s_waitcnt lgkmcnt(0)')
        A(f's_not_b32 s{sSt+2}, s{sSt+2}')
        A(f'v_mov_b32 v30, s{sSt+2}')
        A(f'v_mov_b32 v31, s{sSt}')
        A(f'v_mov_b32 v32, s{sSt+4}')
        A(f'v_mov_b32 v33, s{sSt+5}')
        A('v_mov_b32 v29, 0')
        A(f'global_atomic_umax v29, v30, s[{sDBG}:{sDBG+1}]')
        A(f'global_atomic_umax v29, v31, s[{sDBG}:{sDBG+1}] offset:4')
        A(f'global_atomic_umax v29, v32, s[{sDBG}:{sDBG+1}] offset:8')
        A(f'global_atomic_umax v29, v33, s[{sDBG}:{sDBG+1}] offset:12')
    A(f's_cmp_lg_u32 s{sUnit}, 0')
    A(f's_cbranch_scc1 {LEND}')
    A('s_mov_b64 exec, 1')
    A(f'v_mov_b32 v1, s{sTg}')
    A(f'buffer_store_dword v1, off, {srd(rWS)}, 0 {outf}')
    if stamps:
        A('L_exit:')
        mk_srd(rWS, sWSP, None, WS_SIZE)
        A('s_mov_b64 exec, 1')
        A(f's_mul_i32 s{sSt}, s2, 6')
        A(f's_add_u32 s{sSt}, s{sSt}, s{sWave}')
        A(f's_lshl_b32 s{sSt}, s{sSt}, 6')
        A(f's_add_u32 s{sSt}, s{sSt}, {WS_ST}')
        for q in range(3):
            for r in range(4):
                i = 4*q + r
                A(f'v_mov_b32 v{224+i}, ' + (f's{sSt+2+i}' if i < 10 else (f's{sSeq}' if i == 10 else '0')))
            A(f'buffer_store_dwordx4 {v4(224+4*q)}, off, {srd(rWS)}, s{sSt} offset:{16*q}')
    A('L_end:')
    A('s_endpgm')
    A('.fill 1024, 4, 0xbf810000')

    body = A.finish()
    out = HEADER
    out += f'; @launch grid=(256,1,1) block=(384,1,1) lds={LDS_BYTES}\n'
    out += '.amdgcn_target "amdgcn-amd-amdhsa--gfx950"\n.text\n'
    out += f'.globl {KNAME}\n.p2align 8\n.type {KNAME},@function\n'
    out += body
    out += f'''.section .rodata,"a"
.p2align 6
.amdhsa_kernel {KNAME}
  .amdhsa_next_free_vgpr 240
  .amdhsa_next_free_sgpr 102
  .amdhsa_accum_offset 240
  .amdhsa_group_segment_fixed_size 0
  .amdhsa_kernarg_size 96
  .amdhsa_user_sgpr_count 2
  .amdhsa_user_sgpr_kernarg_segment_ptr 1
  .amdhsa_system_sgpr_workgroup_id_x 1
  .amdhsa_float_denorm_mode_32 3
.end_amdhsa_kernel
'''
    return out

if __name__ == '__main__':
    import argparse
    ap = argparse.ArgumentParser()
    ap.add_argument('-o', default='k.s')
    ap.add_argument('--stamps', action='store_true')
    for k, d in dict(W=21, NR=62, codepf=5, qsleep=10, qsleep2=4, THO=48, THF=38, LF=8, csleep=1, HB=160, PFW=64, WP=24, PS=2, TD=2).items():
        ap.add_argument('--' + k, type=int, default=d)
    ap.add_argument('--outf', default='')
    a = vars(ap.parse_args())
    o = a.pop('o')
    open(o, 'w').write(gen(**a))
```
